```python
import torch

def _softmax(x, axis=-1):
    return torch.softmax(x, dim=axis)
def _gelu(x):
    return torch.nn.functional.gelu(x, approximate="tanh")
def _silu(x):
    return torch.nn.functional.silu(x)
def _sigmoid(x):
    return torch.sigmoid(x)
def _layernorm(x, axis=-1, eps=1e-5):
    m = x.mean(dim=axis, keepdim=True)
    v = x.var(dim=axis, keepdim=True, unbiased=False)
    return (x - m) / torch.sqrt(v + eps)
def _scatter_add(tgt, idx, src, axis=0):
    return tgt.clone().index_add_(axis, idx, src)
def _segment_sum(src, seg, n):
    out = torch.zeros((n,) + src.shape[1:], dtype=src.dtype)
    return out.index_add_(0, seg, src)
def _pad(x, pw):
    flat = tuple(v for pair in reversed(pw) for v in pair)
    return torch.nn.functional.pad(x, flat)

kernel_name = 'recurrent_scan__ssm_conv_h3__dense_activation_mish__prompt'

def setup_inputs():

    _w = (lambda a: (lambda t: t.to(torch.bfloat16) if t.is_floating_point() else t)(torch.as_tensor(a)))
    def _A_setup():
        B, S, D = 1, 2048, 512
        ks = 4
        return {
            "q": _w((lambda *s: torch.randn(*s, dtype=torch.bfloat16) * 0.05)(B, S, D)),
            "k": _w((lambda *s: torch.randn(*s, dtype=torch.bfloat16) * 0.8)(B, S, D)),
            "v": _w((lambda *s: torch.randn(*s, dtype=torch.bfloat16) * 0.8)(B, S, D)),
            "shift_k": _w((lambda *s: torch.randn(*s, dtype=torch.bfloat16) * 0.8)(D, ks) * 0.5),
            "ssm_k": _w((lambda *s: torch.randn(*s, dtype=torch.bfloat16) * 0.8)(D, S) * (1.0 / S ** 0.5)),
            "ssm_D": _w((lambda *s: torch.randn(*s, dtype=torch.bfloat16) * 0.8)(D)),
        }
    _A_in = _A_setup()

    def _B_setup():
        B, S, D, F = 1, 2048, 512, 1792
        return {
            "x": _w((lambda *s: torch.randn(*s, dtype=torch.bfloat16) * 0.05)(B, S, D)),
            "w1": _w((lambda *s: torch.randn(*s, dtype=torch.bfloat16) * 0.8)(D, F) * (D ** -0.5)),
            "b1": _w((lambda *s: torch.randn(*s, dtype=torch.bfloat16) * 0.2)(F)),
            "w2": _w((lambda *s: torch.randn(*s, dtype=torch.bfloat16) * 0.2)(F, D) * (F ** -0.5)),
        }
    _B_in = _B_setup()

    return {
        "A_q": _A_in["q"],
        "A_k": _A_in["k"],
        "A_v": _A_in["v"],
        "A_shift_k": _A_in["shift_k"],
        "A_ssm_k": _A_in["ssm_k"],
        "A_ssm_D": _A_in["ssm_D"],
        "B_x": _B_in["x"],
        "B_w1": _B_in["w1"],
        "B_b1": _B_in["b1"],
        "B_w2": _B_in["w2"],
    }

def reference(A_q, A_k, A_v, A_shift_k, A_ssm_k, A_ssm_D, B_x, B_w1, B_b1, B_w2):
    def _A_ref(q, k, v, shift_k, ssm_k, ssm_D):
        B, S, D = q.shape
        ks = shift_k.shape[-1]
        k_pad = _pad(k, ((0, 0), (ks - 1, 0), (0, 0)))
        k_shift = torch.zeros_like(k)
        for t in range(ks):
            k_shift = k_shift + k_pad[:, t:t + S, :] * shift_k[:, ks - 1 - t][None, None, :]
        kv = k_shift * v
        L = 2 * S
        kv_pad = _pad(kv, ((0, 0), (0, S), (0, 0)))
        kf_pad = _pad(ssm_k, ((0, 0), (0, S)))
        kv_f = (lambda x, axes=(-2,-1): torch.fft.rfft2(x.float(), dim=axes))(kv_pad[:, None, :, :], axes=(1, 2))
        kf_f = (lambda x, axes=(-2,-1): torch.fft.rfft2(x.float(), dim=axes))(kf_pad[:, None, :], axes=(1, 2))
        kf_f = (lambda x, *d: x.permute(*d))(kf_f, 1, 2, 0)
        y_f = kv_f * kf_f[None, :, :, :]
        y = (lambda x, s, axes=(-2,-1): torch.fft.irfft2(x, s=s, dim=axes).to(torch.bfloat16))(y_f, (1, L), axes=(1, 2))[:, 0, :S, :]
        y = y + kv * ssm_D[None, None, :]
        return q * y

    def _B_ref(x, w1, b1, w2):
        h = torch.einsum("bsd,df->bsf", x, w1) + b1
        sp = torch.log1p(torch.exp(-torch.abs(h))) + torch.where(h > 0, h, torch.zeros_like(h))
        act = h * torch.tanh(sp)
        return torch.einsum("bsf,fd->bsd", act, w2)

    x = A_q
    xn = _layernorm(x, axis=-1)
    s = _A_ref(xn, A_k, A_v, A_shift_k, A_ssm_k, A_ssm_D)
    g = _silu(_B_ref(xn, B_w1, B_b1, B_w2))
    return x + s * g
```

```python
class Asm:
    def __init__(self):
        self.lines = []
        self.nlabel = 0
    def __call__(self, s):
        for l in s.strip("\n").split("\n"):
            self.lines.append("    " + l.strip() if not l.strip().endswith(":") else l.strip())
    def label(self, base):
        self.nlabel += 1
        return f"L_{base}_{self.nlabel}"
    def text(self):
        return "\n".join(self.lines) + "\n"

KA = dict(q=0, k=8, v=16, shift=24, ssmk=32, ssmD=40, bx=48, w1=56, b1=64, w2=72, out=80, dbg=88, ws=96)

S, D, F = 2048, 512, 1792
WS_STATS = 0x0
WS_CS    = 0x8000
WS_BL    = 0xA000
WS_KVT   = 0x100000
WS_ACT   = 0x400000
WS_Y2    = 0xC00000
WS_SIZE  = 0x10000000

LOG2E = 0x3FB8AA3B
LN2   = 0x3F317218
NEG2LN2 = 0xBFB17218

def srd(a, dst, base, nbytes):
    a(f"s_mov_b32 s{dst}, s{base}")
    a(f"s_mov_b32 s{dst+1}, s{base+1}")
    a(f"s_mov_b32 s{dst+2}, {nbytes}")
    a(f"s_mov_b32 s{dst+3}, 0x00020000")

def srd_off(a, dst, base, off, nbytes):
    a(f"s_add_u32 s{dst}, s{base}, {off}")
    a(f"s_addc_u32 s{dst+1}, s{base+1}, 0")
    a(f"s_mov_b32 s{dst+2}, {nbytes}")
    a(f"s_mov_b32 s{dst+3}, 0x00020000")

def kernel_begin(a, name):
    a.lines.append(f".globl {name}")
    a.lines.append(".p2align 8")
    a.lines.append(f".type {name},@function")
    a.lines.append(f"{name}:")

def kernel_desc(name, vgpr, sgpr, accum=None):
    if accum is None:
        accum = (vgpr + 3) // 4 * 4
    return f""".p2align 6
.amdhsa_kernel {name}
  .amdhsa_next_free_vgpr {vgpr}
  .amdhsa_next_free_sgpr {sgpr}
  .amdhsa_accum_offset {accum}
  .amdhsa_group_segment_fixed_size 0
  .amdhsa_kernarg_size 104
  .amdhsa_user_sgpr_count 2
  .amdhsa_user_sgpr_kernarg_segment_ptr 1
  .amdhsa_system_sgpr_workgroup_id_x 1
  .amdhsa_float_denorm_mode_32 3
.end_amdhsa_kernel
"""

def bf16_round(a, dst, src, tmp=None):
    a(f"v_cvt_pk_bf16_f32 v{dst}, v{src}, v{src}")
    a(f"v_and_b32 v{dst}, 0xffff0000, v{dst}")
```

```python
from common import *

OB, UB, CHSZ = 4160, 8320, 12928

def emit_conv(a, p, lds_base=0, ex_base=2*CHSZ):
    ACC = 8
    A0, B0, A1, B1 = 40, 72, 104, 136
    VA = 168
    VB = 172
    a(f"""
    s_load_dwordx4 s[4:7], s[0:1], {KA['ssmk']}
    s_load_dwordx2 s[16:17], s[0:1], {KA['ws']}
    v_and_b32 v1, 63, v0
    v_lshrrev_b32 v2, 6, v0
    s_nop 0
    v_readfirstlane_b32 s18, v2
    s_waitcnt lgkmcnt(0)
    """)
    srd(a, 20, 4, D*S*2)
    srd(a, 28, 16, WS_SIZE)
    a(f"""
    s_lshr_b32 s36, s18, 1                         ; ch
    s_and_b32 s37, s18, 1                          ; half
    s_lshl_b32 s38, {p}, 1
    s_add_u32 s38, s38, s36                        ; channel d
    s_lshl_b32 s39, s38, 12                        ; d*4096
    s_add_u32 s8, s4, s39
    s_addc_u32 s9, s5, 0
    s_load_dword s40, s[8:9], 0                    ; (K[0], K[1])
    s_lshl_b32 s41, {p}, 2
    s_add_u32 s8, s6, s41
    s_addc_u32 s9, s7, 0
    s_load_dword s41, s[8:9], 0                    ; (D[d0], D[d0+1])
    s_mul_i32 s42, s36, {CHSZ}
    s_add_u32 s42, s42, {lds_base}
    v_lshlrev_b32 v2, 4, v1
    s_lshl_b32 s43, s37, 1
    s_add_u32 s43, s43, s39
    v_add_u32 v3, s43, v2
    s_mul_i32 s44, s37, {OB}
    s_add_u32 s44, s44, s42
    s_add_u32 s44, s44, 32
    s_mov_b32 s45, 0
    """)
    for i in range(4):
        a(f"s_mov_b32 m0, s44")
        a(f"s_add_u32 s44, s44, 1024")
        a(f"buffer_load_dwordx4 v3, s[20:23], s45 offen lds")
        if i < 3: a(f"s_add_u32 s45, s45, 1024")
    a(f"""
    s_lshl_b32 s45, s37, 11
    s_add_u32 s44, s42, {UB}
    s_add_u32 s44, s44, s45
    s_add_u32 s45, s45, s39
    s_add_u32 s45, s45, {WS_KVT}
    """)
    for i in range(2):
        a(f"s_mov_b32 m0, s44")
        a(f"s_add_u32 s44, s44, 1024")
        a(f"buffer_load_dwordx4 v2, s[28:31], s45 offen lds")
        if i < 1: a(f"s_add_u32 s45, s45, 1024")
    lodd, lpad = a.label("cv_odd"), a.label("cv_pad")
    a(f"""
    v_mov_b32 v4, 0
    v_mov_b32 v5, 0
    v_mov_b32 v6, 0
    v_mov_b32 v7, 0
    s_cmp_eq_u32 s37, 1
    s_cbranch_scc1 {lodd}
    v_add_u32 v3, s42, v2
    s_mov_b64 exec, 3
    ds_write_b128 v3, v[4:7]
    s_mov_b64 exec, 0x3fffffff
    ds_write_b128 v3, v[4:7] offset:{UB+4096}
    s_mov_b64 exec, -1
    s_branch {lpad}
    """)
    a.lines.append(f"{lodd}:")
    a(f"""
    s_waitcnt lgkmcnt(0)
    s_lshl_b32 s40, s40, 16
    v_add_u32 v3, s42, v2
    v_cmp_eq_u32 vcc, 1, v1
    v_mov_b32 v7, s40
    s_nop 0
    v_cndmask_b32 v7, 0, v7, vcc
    s_mov_b64 exec, 3
    ds_write_b128 v3, v[4:7] offset:{OB}
    s_mov_b64 exec, -1
    """)
    a.lines.append(f"{lpad}:")
    a(f"""
    v_and_b32 v2, 15, v1                           ; i / j
    v_lshrrev_b32 v3, 4, v1                        ; g
    v_lshlrev_b32 v4, 3, v3
    v_sub_u32 v4, v2, v4                           ; i - 8g
    v_add_u32 v4, 9, v4
    v_lshlrev_b32 v4, 1, v4                        ; 2*(9 + i - 8g)
    v_and_b32 v5, 1, v2
    v_cmp_eq_u32 vcc, 0, v5
    v_mov_b32 v6, {OB-2}
    s_lshl_b32 s43, s37, 8                         ; 64 * (4*half)
    v_cndmask_b32 v6, 0, v6, vcc
    s_add_u32 s44, s42, 32
    s_add_u32 s44, s44, s43
    v_add3_u32 v{VA}, v4, v6, s44
    v_add_u32 v{VA+1}, 1024, v{VA}
    v_add_u32 v{VA+2}, 2048, v{VA}
    v_add_u32 v{VA+3}, 3072, v{VA}
    v_lshlrev_b32 v4, 5, v2
    v_lshl_add_u32 v4, v3, 4, v4                   ; 32j + 16g
    s_add_u32 s44, s42, {UB + 4112 - 3584}
    s_add_u32 s44, s44, s43
    v_sub_u32 v{VB}, s44, v4
    """)
    for r in range(32):
        a(f"v_mov_b32 v{ACC+r}, 0")
    a("""
    s_waitcnt vmcnt(0) lgkmcnt(0)
    s_barrier
    """)
    def reads(A, B):
        ins = []
        for mu in range(8):
            base = VA + (mu >> 1); o = 128*(mu & 1)
            ins.append(f"ds_read_b128 v[{B+4*mu}:{B+4*mu+3}], v{VB} offset:{512*(7-mu)}")
            ins.append(f"ds_read2_b32 v[{A+4*mu}:{A+4*mu+1}], v{base} offset0:{o} offset1:{o+1}")
            ins.append(f"ds_read2_b32 v[{A+4*mu+2}:{A+4*mu+3}], v{base} offset0:{o+2} offset1:{o+3}")
        return ins
    def advance():
        return [f"v_add_u32 v{r}, 64, v{r}" for r in (VA, VA+1, VA+2, VA+3, VB)]
    def mfmas(A, B):
        ins = []
        for q in range(8):
            for mu in range(q+1):
                n = q - mu
                ins.append(f"v_mfma_f32_16x16x32_bf16 v[{ACC+4*q}:{ACC+4*q+3}], v[{A+4*mu}:{A+4*mu+3}], v[{B+4*n}:{B+4*n+3}], v[{ACC+4*q}:{ACC+4*q+3}]")
        return ins
    def interleave(m, rd):
        k = 0
        for i, x in enumerate(m):
            a(x)
            if k < len(rd):
                a(rd[k]); k += 1
        assert k == len(rd)
    for x in reads(A0, B0): a(x)
    loop, ldone = a.label("cv_loop"), a.label("cv_done")
    a("s_mov_b32 s45, 0")
    a.lines.append(f"{loop}:")
    a("s_waitcnt lgkmcnt(0)")
    interleave(mfmas(A0, B0), advance() + reads(A1, B1))
    a("s_waitcnt lgkmcnt(0)")
    a(f"""
    s_cmp_eq_u32 s45, 1
    s_cbranch_scc1 {ldone}
    s_mov_b32 s45, 1
    """)
    interleave(mfmas(A1, B1), advance() + reads(A0, B0))
    a(f"s_branch {loop}")
    a.lines.append(f"{ldone}:")
    for x in mfmas(A1, B1): a(x)
    a(f"""
    s_lshl_b32 s43, s18, 13
    s_add_u32 s43, s43, {ex_base}
    v_lshlrev_b32 v2, 4, v1
    v_add_u32 v3, s43, v2
    v_and_b32 v4, 15, v1
    v_lshrrev_b32 v5, 4, v1
    v_lshlrev_b32 v6, 5, v4
    v_lshl_add_u32 v6, v5, 3, v6                   ; 32j + 8g = 2*(16j + 4g)
    s_lshl_b32 s44, s18, 10                        ; 2*256*(2w)
    s_sub_u32 s44, {lds_base + UB + 2*2044 - 512}, s44
    v_sub_u32 v7, s44, v6
    ds_read_b64 v[40:41], v7 offset:512
    ds_read_b64 v[42:43], v7
    ds_read_b64 v[44:45], v7 offset:{512+CHSZ}
    ds_read_b64 v[46:47], v7 offset:{CHSZ}
    s_nop 4
    """)
    for q in range(8):
        a(f"ds_write_b128 v3, v[{ACC+4*q}:{ACC+4*q+3}] offset:{1024*q}")
    a(f"""
    s_lshl_b32 s43, s18, 11
    s_add_u32 s43, s43, {ex_base}
    v_add_u32 v3, s43, v2
    s_waitcnt lgkmcnt(0)
    s_barrier
    """)
    Y = 48
    for w in range(4):
        for qq in range(2):
            a(f"ds_read_b128 v[{Y+8*w+4*qq}:{Y+8*w+4*qq+3}], v3 offset:{8192*w+1024*qq}")
    a(f"""
    s_lshl_b32 s46, s41, 16
    s_and_b32 s47, s41, 0xffff0000
    v_lshlrev_b32 v6, 6, v4
    v_lshl_add_u32 v6, v5, 4, v6
    s_lshl_b32 s43, {p}, 13
    s_lshl_b32 s44, s18, 11
    s_add_u32 s43, s43, s44
    s_add_u32 s43, s43, {WS_Y2}
    s_waitcnt lgkmcnt(0)
    """)
    T = 80
    for qq in range(2):
        for ch in range(2):
            y0, y1 = Y + 8*(2*ch) + 4*qq, Y + 8*(2*ch+1) + 4*qq
            u = 40 + 2*qq + 4*ch
            sD = 46 + ch
            r = T + 8*ch
            for k in range(4):
                a(f"v_add_f32 v{r+k}, v{y0+k}, v{y1+k}")
            a(f"v_and_b32 v{r+4}, 0xffff0000, v{u+1}")
            a(f"v_lshlrev_b32 v{r+5}, 16, v{u+1}")
            a(f"v_and_b32 v{r+6}, 0xffff0000, v{u}")
            a(f"v_lshlrev_b32 v{r+7}, 16, v{u}")
            for k in range(4):
                a(f"v_mul_f32 v{r+4+k}, s{sD}, v{r+4+k}")
            a(f"v_cvt_pk_bf16_f32 v{r}, v{r}, v{r+1}")
            a(f"v_cvt_pk_bf16_f32 v{r+2}, v{r+2}, v{r+3}")
            a(f"v_cvt_pk_bf16_f32 v{r+4}, v{r+4}, v{r+5}")
            a(f"v_cvt_pk_bf16_f32 v{r+6}, v{r+6}, v{r+7}")
            a(f"v_and_b32 v{r+1}, 0xffff0000, v{r}")
            a(f"v_lshlrev_b32 v{r}, 16, v{r}")
            a(f"v_and_b32 v{r+3}, 0xffff0000, v{r+2}")
            a(f"v_lshlrev_b32 v{r+2}, 16, v{r+2}")
            a(f"v_and_b32 v{r+5}, 0xffff0000, v{r+4}")
            a(f"v_lshlrev_b32 v{r+4}, 16, v{r+4}")
            a(f"v_and_b32 v{r+7}, 0xffff0000, v{r+6}")
            a(f"v_lshlrev_b32 v{r+6}, 16, v{r+6}")
            for k in range(4):
                a(f"v_add_f32 v{r+k}, v{r+k}, v{r+4+k}")
        o = 96 + 4*qq
        for k in range(4):
            a(f"v_cvt_pk_bf16_f32 v{o+k}, v{T+k}, v{T+8+k}")
        a(f"buffer_store_dwordx4 v[{o}:{o+3}], v6, s[28:31], s43 offen offset:{1024*qq}")

def conv_kernel():
    a = Asm()
    kernel_begin(a, "conv_kernel")
    a("""
    s_cmp_ge_u32 s2, 256
    s_cbranch_scc1 L_conv_end
    s_mov_b32 s3, s2
    """)
    emit_conv(a, "s3")
    a.lines.append("L_conv_end:")
    a("s_endpgm")
    return a.text(), kernel_desc("conv_kernel", 176, 64)
```

```python
from common import *

def emit_wgmap_gemm1(a, wid, mapping):
    if mapping == 0:
        a(f"""
        s_and_b32 s34, {wid}, 7
        s_lshr_b32 s35, {wid}, 3
        s_mul_hi_u32 s32, s35, 0x12492493
        s_mul_i32 s33, s32, 14
        s_sub_u32 s33, s35, s33
        s_lshl_b32 s34, s34, 1
        s_add_u32 s32, s32, s34
        """)
    else:
        a(f"""
        s_and_b32 s34, {wid}, 7
        s_lshr_b32 s35, {wid}, 3
        s_mul_hi_u32 s32, s35, 0x24924925
        s_mul_i32 s33, s32, 7
        s_sub_u32 s33, s35, s33
        s_and_b32 s35, s34, 1
        s_mul_i32 s35, s35, 7
        s_add_u32 s33, s33, s35
        s_lshr_b32 s34, s34, 1
        s_lshl_b32 s34, s34, 2
        s_add_u32 s32, s32, s34
        """)

ACC = 8
FP, FQ = 40, 52
VC, VB = 64, 96
VXA = 128
VWA = 132
VX0, VX1, VW = 134, 135, 136
VST = 138
VK = 140

def dma_stage(a, first):
    a(f"""
    s_mov_b32 m0, s40
    s_add_u32 s43, s40, 1024
    buffer_load_dwordx4 v{VX0}, s[20:23], s41 offen lds
    s_mov_b32 m0, s43
    s_add_u32 s43, s40, 16384
    buffer_load_dwordx4 v{VX1}, s[20:23], s41 offen lds
    s_mov_b32 m0, s43
    s_add_u32 s43, s40, 17408
    buffer_load_dwordx4 v{VW}, s[24:27], s42 offen lds
    s_mov_b32 m0, s43
    s_add_u32 s44, s42, {4*F*2}
    buffer_load_dwordx4 v{VW}, s[24:27], s44 offen lds
    s_add_u32 s41, s41, 128
    s_add_u32 s42, s42, {64*F*2}
    s_add_u32 s40, s40, 32768
    s_and_b32 s40, s40, 0x1ffff
    """)

def read_frags(a, dst, step):
    a(f"ds_read_b128 v[{dst}:{dst+3}], v{VXA+step}")
    for n in range(2):
        for j in range(2):
            r = dst + 4 + 4*n + 2*j
            a(f"ds_read_b64_tr_b16 v[{r}:{r+1}], v{VWA+n} offset:{4096*step + 1024*j}")

def mfma_pair(a, src):
    for n in range(2):
        a(f"v_mfma_f32_32x32x16_bf16 v[{ACC+16*n}:{ACC+16*n+15}], v[{src+4+4*n}:{src+7+4*n}], v[{src}:{src+3}], v[{ACC+16*n}:{ACC+16*n+15}]")

def emit_gemm1(a, wid, mapping=0):
    a(f"""
    s_load_dwordx2 s[4:5], s[0:1], {KA['q']}
    s_load_dwordx2 s[12:13], s[0:1], {KA['w1']}
    s_load_dwordx2 s[16:17], s[0:1], {KA['ws']}
    v_and_b32 v1, 63, v0
    v_lshrrev_b32 v2, 6, v0
    s_nop 0
    v_readfirstlane_b32 s18, v2
    """)
    emit_wgmap_gemm1(a, wid, mapping)
    a("s_waitcnt lgkmcnt(0)")
    srd(a, 20, 4, S*D*2)
    srd(a, 24, 12, D*F*2)
    srd(a, 28, 16, WS_SIZE)
    a(f"""
    s_and_b32 s36, s18, 3                          ; tg
    s_lshr_b32 s37, s18, 2                         ; fh
    v_lshrrev_b32 v2, 3, v1                        ; l>>3
    v_lshrrev_b32 v3, 4, v1                        ; l>>4
    v_and_b32 v4, 7, v1
    s_lshl_b32 s38, s32, 7
    s_lshl_b32 s39, s18, 4
    s_add_u32 s38, s38, s39
    v_add_u32 v5, s38, v2
    v_lshlrev_b32 v5, 10, v5
    v_xor_b32 v6, v4, v3
    v_lshl_add_u32 v{VX0}, v6, 4, v5
    v_xor_b32 v6, 4, v6
    v_lshl_add_u32 v{VX1}, v6, 4, v5
    v_add_u32 v{VX1}, 8192, v{VX1}
    s_lshl_b32 s39, s18, 3
    v_add_u32 v5, s39, v3
    v_mul_u32_u24 v5, {F*2}, v5
    v_and_b32 v6, 15, v1
    v_lshlrev_b32 v7, 2, v3
    v_xor_b32 v6, v6, v7
    v_lshl_add_u32 v5, v6, 4, v5
    s_lshl_b32 s39, s33, 8
    v_add_u32 v{VW}, s39, v5
    s_lshl_b32 s40, s18, 11
    s_mov_b32 s41, 0
    s_mov_b32 s42, 0
    v_and_b32 v5, 31, v1
    s_lshl_b32 s38, s32, 7
    s_lshl_b32 s39, s36, 5
    s_add_u32 s38, s38, s39
    v_add_lshl_u32 v6, v5, s38, 3
    buffer_load_dwordx2 v[{VST}:{VST+1}], v6, s[28:31], 0 offen offset:{WS_STATS}
    v_lshrrev_b32 v6, 5, v1                        ; h
    s_lshl_b32 s38, s33, 7
    s_lshl_b32 s39, s37, 6
    s_add_u32 s38, s38, s39
    v_lshl_add_u32 v7, v6, 2, s38
    v_lshlrev_b32 v7, 2, v7
    s_mov_b32 s46, {WS_CS}
    s_mov_b32 s47, {WS_BL}
    """)
    for g in range(8):
        a(f"buffer_load_dwordx4 v[{VC+4*g}:{VC+4*g+3}], v7, s[28:31], s46 offen offset:{32*g}")
        a(f"buffer_load_dwordx4 v[{VB+4*g}:{VB+4*g+3}], v7, s[28:31], s47 offen offset:{32*g}")
    for st in range(4):
        dma_stage(a, st == 0)
    a(f"""
    v_lshrrev_b32 v2, 1, v5
    v_and_b32 v2, 7, v2
    v_xor_b32 v2, v2, v6                           ; h ^ y
    s_lshl_b32 s38, s36, 12
    v_lshl_add_u32 v3, v5, 7, s38                  ; token*128
    """)
    for s in range(4):
        a(f"v_xor_b32 v4, {2*s}, v2")
        a(f"v_lshl_add_u32 v{VXA+s}, v4, 4, v3")
    a(f"""
    v_bfe_u32 v2, v1, 2, 2                         ; r
    v_bfe_u32 v3, v1, 4, 1                         ; fh16
    v_and_b32 v4, 3, v1                            ; c
    v_lshrrev_b32 v7, 1, v4
    v_lshl_add_u32 v7, v3, 1, v7                   ; 2*fh16 + (c>>1)
    v_and_b32 v4, 1, v4
    v_lshlrev_b32 v4, 3, v4                        ; 8*(c&1)
    v_lshl_add_u32 v3, v6, 3, v2                   ; 8h + r
    v_lshl_add_u32 v4, v3, 8, v4
    v_add_u32 v4, 16384, v4
    s_lshl_b32 s38, s37, 1
    """)
    for n in range(2):
        a(f"s_add_u32 s39, s38, {n}")
        a(f"v_xor_b32 v3, s39, v2")
        a(f"v_lshl_add_u32 v3, v3, 2, v7")
        a(f"v_lshl_add_u32 v{VWA+n}, v3, 4, v4")
    for r in range(32):
        a(f"v_mov_b32 v{ACC+r}, 0")
    a(f"""
    v_mov_b32 v{VK}, 1.0
    v_mov_b32 v{VK+1}, 1.0
    v_mov_b32 v{VK+2}, {hex(LN2)}
    v_mov_b32 v{VK+3}, {hex(LN2)}
    v_mov_b32 v{VK+4}, {hex(NEG2LN2)}
    v_mov_b32 v{VK+5}, {hex(NEG2LN2)}
    s_mov_b32 s45, 0
    s_mov_b32 s48, 0
    s_mov_b32 s50, 32768
    s_waitcnt vmcnt(12)
    s_barrier
    """)
    read_frags(a, FP, 0)
    loop, lv4, lv0, lbar, lnodma, llast, ldone = [a.label(x) for x in ("g1_loop", "g1_v4", "g1_v0", "g1_bar", "g1_nodma", "g1_last", "g1_done")]
    a.lines.append(f"{loop}:")
    read_frags(a, FQ, 1); a("s_waitcnt lgkmcnt(5)"); mfma_pair(a, FP)
    read_frags(a, FP, 2); a("s_waitcnt lgkmcnt(5)"); mfma_pair(a, FQ)
    read_frags(a, FQ, 3); a("s_waitcnt lgkmcnt(5)"); mfma_pair(a, FP)
    a(f"""
    s_cmp_eq_u32 s45, 7
    s_cbranch_scc1 {llast}
    s_cmp_ge_u32 s45, 5
    s_cbranch_scc1 {lv4}
    s_waitcnt vmcnt(8) lgkmcnt(0)
    s_branch {lbar}
    """)
    a.lines.append(f"{lv4}:")
    a(f"""
    s_cmp_eq_u32 s45, 6
    s_cbranch_scc1 {lv0}
    s_waitcnt vmcnt(4) lgkmcnt(0)
    s_branch {lbar}
    """)
    a.lines.append(f"{lv0}:")
    a("s_waitcnt vmcnt(0) lgkmcnt(0)")
    a.lines.append(f"{lbar}:")
    a(f"""
    s_barrier
    s_cmp_ge_u32 s45, 4
    s_cbranch_scc1 {lnodma}
    """)
    dma_stage(a, False)
    a.lines.append(f"{lnodma}:")
    a(f"""
    s_add_u32 s48, s48, 32768
    s_and_b32 s48, s48, 0x1ffff
    s_cmp_eq_u32 s48, 0
    s_cselect_b32 s49, {(-98304) & 0xffffffff}, s50
    s_add_u32 s45, s45, 1
    """)
    for r in list(range(VXA, VXA+4)) + [VWA, VWA+1]:
        a(f"v_add_u32 v{r}, s49, v{r}")
    read_frags(a, FP, 0)
    mfma_pair(a, FQ)
    a(f"s_branch {loop}")
    a.lines.append(f"{llast}:")
    a("s_waitcnt lgkmcnt(0)")
    mfma_pair(a, FQ)
    R = VK + 6
    a(f"""
    v_mul_f32 v{R}, {hex(LOG2E)}, v{VST+1}
    s_lshl_b32 s38, s32, 2
    s_add_u32 s38, s38, s36                        ; tb32
    s_mul_i32 s38, s38, 112
    s_lshl_b32 s39, s33, 3
    s_add_u32 s38, s38, s39
    s_lshl_b32 s39, s37, 2
    s_add_u32 s38, s38, s39
    s_lshl_b32 s38, s38, 10
    s_add_u32 s38, s38, {WS_ACT}
    v_lshlrev_b32 v2, 4, v1
    s_nop 7
    """)
    def pr(r): return f"v[{r}:{r+1}]"
    T = 40
    OUT = 148
    for fr in range(4):
        prs = [(ACC + 8*fr + 2*p, VC + 8*fr + 2*p, VB + 8*fr + 2*p) for p in range(4)]
        Z = [T + 2*p for p in range(4)]
        E = [T + 8 + 2*p for p in range(4)]
        for p, (ac, c, b) in enumerate(prs):
            a(f"v_pk_fma_f32 {pr(Z[p])}, {pr(VST)}, {pr(c)}, {pr(ac)} op_sel_hi:[0,1,1] neg_lo:[1,0,0] neg_hi:[1,0,0]")
        for p, (ac, c, b) in enumerate(prs):
            a(f"v_pk_fma_f32 {pr(Z[p])}, {pr(R)}, {pr(Z[p])}, {pr(b)} op_sel_hi:[0,1,1]")
        for p in range(4):
            a(f"v_exp_f32 v{E[p]}, v{Z[p]}")
            a(f"v_exp_f32 v{E[p]+1}, v{Z[p]+1}")
        for p in range(4):
            a(f"v_pk_add_f32 {pr(E[p])}, {pr(E[p])}, {pr(VK)}")
        for p in range(4):
            a(f"v_pk_fma_f32 {pr(E[p])}, {pr(E[p])}, {pr(E[p])}, {pr(VK)}")
        for p in range(4):
            a(f"v_rcp_f32 v{E[p]}, v{E[p]}")
            a(f"v_rcp_f32 v{E[p]+1}, v{E[p]+1}")
        for p in range(4):
            a(f"v_pk_fma_f32 {pr(E[p])}, {pr(E[p])}, {pr(VK+4)}, {pr(VK+2)}")
        for p in range(4):
            a(f"v_pk_mul_f32 {pr(Z[p])}, {pr(Z[p])}, {pr(E[p])}")
        o = OUT + 4*fr
        for p in range(4):
            a(f"v_cvt_pk_bf16_f32 v{o+p}, v{Z[p]}, v{Z[p]+1}")
        a(f"buffer_store_dwordx4 v[{o}:{o+3}], v2, s[28:31], s38 offen offset:{1024*fr}")

def gemm1_kernel(mapping=0):
    a = Asm()
    kernel_begin(a, "gemm1_kernel")
    a("""
    s_cmp_ge_u32 s2, 224
    s_cbranch_scc1 L_gemm1_end
    s_mov_b32 s3, s2
    """)
    emit_gemm1(a, "s3", mapping)
    a.lines.append("L_gemm1_end:")
    a("s_endpgm")
    return a.text(), kernel_desc("gemm1_kernel", 168, 64)
```

```python
from common import *

ACC = 8
FP, FQ = 24, 32
VX = 40
VY = 48
VST = 56
VA, VW = 58, 59
VSA, VSW = 60, 61
NST = 14

def dma_stage(a):
    a(f"""
    s_add_u32 s45, s40, s43
    s_mov_b32 m0, s45
    s_add_u32 s46, s40, s44
    buffer_load_dwordx4 v{VSA}, s[28:31], s41 offen lds
    buffer_load_dwordx4 v{VSA}, s[28:31], s41 offen offset:1024 lds
    buffer_load_dwordx4 v{VSA}, s[28:31], s41 offen offset:2048 lds
    buffer_load_dwordx4 v{VSA}, s[28:31], s41 offen offset:3072 lds
    s_mov_b32 m0, s46
    s_add_u32 s47, s42, {8192-1024}
    buffer_load_dwordx4 v{VSW}, s[24:27], s42 offen lds
    buffer_load_dwordx4 v{VSW}, s[24:27], s47 offen offset:1024 lds
    s_add_u32 s47, s42, {2*(8192-1024)}
    s_add_u32 s48, s42, {3*(8192-1024)}
    buffer_load_dwordx4 v{VSW}, s[24:27], s47 offen offset:2048 lds
    buffer_load_dwordx4 v{VSW}, s[24:27], s48 offen offset:3072 lds
    s_add_u32 s41, s41, 8192
    s_add_u32 s42, s42, {128*1024}
    s_add_u32 s40, s40, 32768
    s_and_b32 s40, s40, 0x1ffff
    """)

def read_frags(a, dst, step):
    a(f"ds_read_b128 v[{dst}:{dst+3}], v{VA} offset:{1024*step}")
    a(f"ds_read_b64_tr_b16 v[{dst+4}:{dst+5}], v{VW} offset:{2048*step}")
    a(f"ds_read_b64_tr_b16 v[{dst+6}:{dst+7}], v{VW} offset:{2048*step+1024}")

def mfma(a, src):
    a(f"v_mfma_f32_32x32x16_bf16 v[{ACC}:{ACC+15}], v[{src+4}:{src+7}], v[{src}:{src+3}], v[{ACC}:{ACC+15}]")

def emit_gemm2(a, wid):
    a(f"""
    s_load_dwordx2 s[4:5], s[0:1], {KA['q']}
    s_load_dwordx4 s[12:15], s[0:1], {KA['w2']}    ; w2, out
    s_load_dwordx2 s[16:17], s[0:1], {KA['ws']}
    v_and_b32 v1, 63, v0
    v_lshrrev_b32 v2, 6, v0
    s_nop 0
    v_readfirstlane_b32 s18, v2
    s_and_b32 s34, {wid}, 7
    s_lshr_b32 s35, {wid}, 3
    s_lshr_b32 s32, s35, 3
    s_lshl_b32 s34, s34, 2
    s_add_u32 s32, s32, s34
    s_and_b32 s33, s35, 7
    s_waitcnt lgkmcnt(0)
    """)
    srd(a, 20, 4, S*D*2)
    srd(a, 24, 12, F*D*2)
    srd(a, 28, 16, WS_SIZE)
    srd(a, 52, 14, S*D*2)
    a(f"""
    s_and_b32 s36, s18, 1                          ; ti
    s_lshr_b32 s37, s18, 1                         ; di
    v_and_b32 v5, 31, v1                           ; t
    v_lshrrev_b32 v6, 5, v1                        ; h
    s_lshl_b32 s38, s32, 6
    s_lshl_b32 s39, s36, 5
    s_add_u32 s38, s38, s39
    v_add_u32 v2, s38, v5                          ; token
    s_lshl_b32 s38, s33, 6
    s_lshl_b32 s39, s37, 5
    s_add_u32 s38, s38, s39
    v_lshl_add_u32 v3, v6, 4, s38
    v_lshlrev_b32 v4, 10, v2
    v_lshl_add_u32 v62, v3, 1, v4
    buffer_load_dwordx4 v[{VX}:{VX+3}], v62, s[20:23], 0 offen
    buffer_load_dwordx4 v[{VX+4}:{VX+7}], v62, s[20:23], 0 offen offset:16
    v_lshlrev_b32 v4, 3, v2
    buffer_load_dwordx2 v[{VST}:{VST+1}], v4, s[28:31], 0 offen offset:{WS_STATS}
    v_lshlrev_b32 v4, 12, v3                       ; (d/2)*8192
    v_lshl_add_u32 v4, v2, 2, v4
    s_mov_b32 s38, {WS_Y2}
    """)
    for k in range(8):
        a(f"buffer_load_dword v{VY+k}, v4, s[28:31], s38 offen")
        if k < 7: a("s_add_u32 s38, s38, 8192")
    a(f"""
    v_lshlrev_b32 v{VSA}, 4, v1
    s_lshl_b32 s38, s32, 1
    s_lshr_b32 s39, s18, 1
    s_add_u32 s38, s38, s39
    s_mul_i32 s38, s38, 112
    s_and_b32 s39, s18, 1
    s_lshl_b32 s39, s39, 2
    s_add_u32 s38, s38, s39
    s_lshl_b32 s41, s38, 10
    s_add_u32 s41, s41, {WS_ACT}
    s_lshl_b32 s43, s18, 12
    s_lshl_b32 s44, s18, 12
    s_add_u32 s44, s44, 16384
    v_lshrrev_b32 v2, 3, v1
    v_lshlrev_b32 v2, 10, v2
    v_bfe_u32 v3, v1, 4, 1
    v_lshlrev_b32 v3, 2, v3
    v_and_b32 v4, 7, v1
    v_xor_b32 v3, v3, v4
    v_lshl_add_u32 v{VSW}, v3, 4, v2
    s_lshl_b32 s42, s18, 15
    s_lshl_b32 s39, s33, 7
    s_add_u32 s42, s42, s39
    s_mov_b32 s40, 0
    """)
    for st in range(4):
        dma_stage(a)
    a(f"""
    s_lshl_b32 s38, s36, 13
    v_lshl_add_u32 v{VA}, v1, 4, s38
    v_bfe_u32 v2, v1, 2, 2                         ; r
    v_bfe_u32 v3, v1, 4, 1                         ; dh16
    v_and_b32 v4, 1, v1                            ; cc&1
    v_lshl_add_u32 v3, v4, 1, v3
    v_lshrrev_b32 v4, 1, v2                        ; r>>1
    v_xor_b32 v4, s37, v4                          ; di ^ (r>>1)
    v_lshl_add_u32 v3, v4, 2, v3
    v_bfe_u32 v4, v1, 1, 1                         ; cc>>1
    v_lshlrev_b32 v4, 3, v4
    v_lshl_add_u32 v3, v3, 4, v4
    v_lshl_add_u32 v2, v6, 2, v2                   ; 4h + r
    v_lshl_add_u32 v3, v2, 7, v3
    v_add_u32 v{VW}, 16384, v3
    """)
    for r in range(16):
        a(f"v_mov_b32 v{ACC+r}, 0")
    a("""
    s_mov_b32 s49, 0                               ; stage
    s_mov_b32 s50, 0
    s_mov_b32 s51, 32768
    s_waitcnt vmcnt(24)
    s_barrier
    """)
    read_frags(a, FP, 0)
    loop, lv8, lv0, lbar, lnodma, llast = [a.label(x) for x in ("g2_loop", "g2_v8", "g2_v0", "g2_bar", "g2_nodma", "g2_last")]
    a.lines.append(f"{loop}:")
    cur, nxt = FP, FQ
    for s in range(7):
        read_frags(a, nxt, s+1); a("s_waitcnt lgkmcnt(3)"); mfma(a, cur)
        cur, nxt = nxt, cur
    a(f"""
    s_cmp_eq_u32 s49, {NST-1}
    s_cbranch_scc1 {llast}
    s_cmp_ge_u32 s49, {NST-3}
    s_cbranch_scc1 {lv8}
    s_waitcnt vmcnt(16) lgkmcnt(0)
    s_branch {lbar}
    """)
    a.lines.append(f"{lv8}:")
    a(f"""
    s_cmp_eq_u32 s49, {NST-2}
    s_cbranch_scc1 {lv0}
    s_waitcnt vmcnt(8) lgkmcnt(0)
    s_branch {lbar}
    """)
    a.lines.append(f"{lv0}:")
    a("s_waitcnt vmcnt(0) lgkmcnt(0)")
    a.lines.append(f"{lbar}:")
    a(f"""
    s_barrier
    s_cmp_ge_u32 s49, {NST-4}
    s_cbranch_scc1 {lnodma}
    """)
    dma_stage(a)
    a.lines.append(f"{lnodma}:")
    a(f"""
    s_add_u32 s50, s50, 32768
    s_and_b32 s50, s50, 0x1ffff
    s_cmp_eq_u32 s50, 0
    s_cselect_b32 s39, {(-98304) & 0xffffffff}, s51
    s_add_u32 s49, s49, 1
    v_add_u32 v{VA}, s39, v{VA}
    v_add_u32 v{VW}, s39, v{VW}
    """)
    read_frags(a, nxt, 0)
    mfma(a, cur)
    a(f"s_branch {loop}")
    a.lines.append(f"{llast}:")
    a("s_waitcnt lgkmcnt(0)")
    mfma(a, cur)
    def pr(r): return f"v[{r}:{r+1}]"
    K1, KL = 64, 66
    a(f"""
    v_mov_b32 v{K1}, 1.0
    v_mov_b32 v{K1+1}, 1.0
    v_mov_b32 v{KL}, {hex(LOG2E | 0x80000000)}
    v_mov_b32 v{KL+1}, {hex(LOG2E | 0x80000000)}
    """)
    def rnd(r):
        a(f"v_cvt_pk_bf16_f32 v{r}, v{r}, v{r+1}")
        a(f"v_and_b32 v{r+1}, 0xffff0000, v{r}")
        a(f"v_lshlrev_b32 v{r}, 16, v{r}")
    XF, SF = 68, 84
    T = 100
    for k in range(8):
        a(f"v_lshlrev_b32 v{XF+2*k}, 16, v{VX+k}")
        a(f"v_and_b32 v{XF+2*k+1}, 0xffff0000, v{VX+k}")
    for k in range(8):
        a(f"v_pk_add_f32 {pr(SF+2*k)}, {pr(XF+2*k)}, {pr(VST)} op_sel_hi:[1,0] neg_lo:[0,1] neg_hi:[0,1]")
    for k in range(8): rnd(SF+2*k)
    for k in range(8):
        a(f"v_pk_mul_f32 {pr(SF+2*k)}, {pr(SF+2*k)}, {pr(VST)} op_sel:[0,1] op_sel_hi:[1,1]")
    for k in range(8): rnd(SF+2*k)
    for k in range(8):
        a(f"v_lshlrev_b32 v{T}, 16, v{VY+k}")
        a(f"v_and_b32 v{T+1}, 0xffff0000, v{VY+k}")
        a(f"v_pk_mul_f32 {pr(SF+2*k)}, {pr(SF+2*k)}, {pr(T)}")
    for k in range(8): rnd(SF+2*k)
    for k in range(8): rnd(ACC+2*k)
    E = 24
    for k in range(8):
        a(f"v_pk_mul_f32 {pr(E+2*k)}, {pr(ACC+2*k)}, {pr(KL)}")
    for k in range(16):
        a(f"v_exp_f32 v{E+k}, v{E+k}")
    for k in range(8):
        a(f"v_pk_add_f32 {pr(E+2*k)}, {pr(E+2*k)}, {pr(K1)}")
    for k in range(16):
        a(f"v_rcp_f32 v{E+k}, v{E+k}")
    for k in range(8):
        a(f"v_pk_mul_f32 {pr(E+2*k)}, {pr(E+2*k)}, {pr(ACC+2*k)}")
    for k in range(8): rnd(E+2*k)
    for k in range(8):
        a(f"v_pk_mul_f32 {pr(E+2*k)}, {pr(E+2*k)}, {pr(SF+2*k)}")
    for k in range(8): rnd(E+2*k)
    for k in range(8):
        a(f"v_pk_add_f32 {pr(E+2*k)}, {pr(E+2*k)}, {pr(XF+2*k)}")
    for k in range(8):
        a(f"v_cvt_pk_bf16_f32 v{VX+k}, v{E+2*k}, v{E+2*k+1}")
    a(f"buffer_store_dwordx4 v[{VX}:{VX+3}], v62, s[52:55], 0 offen")
    a(f"buffer_store_dwordx4 v[{VX+4}:{VX+7}], v62, s[52:55], 0 offen offset:16")

def gemm2_kernel():
    a = Asm()
    kernel_begin(a, "gemm2_kernel")
    a("""
    s_cmp_ge_u32 s2, 256
    s_cbranch_scc1 L_gemm2_end
    s_mov_b32 s3, s2
    """)
    emit_gemm2(a, "s3")
    a.lines.append("L_gemm2_end:")
    a("s_endpgm")
    return a.text(), kernel_desc("gemm2_kernel", 104, 64)
```

```python
from common import *

def emit_prep(a, j="s3"):
    CRED = 65536
    a(f"""
    s_load_dwordx4 s[4:7], s[0:1], {KA['q']}       ; q, k
    s_load_dwordx4 s[8:11], s[0:1], {KA['v']}      ; v, shift
    s_load_dwordx4 s[12:15], s[0:1], {KA['w1']}    ; w1, b1
    s_load_dwordx2 s[16:17], s[0:1], {KA['ws']}
    v_and_b32 v1, 63, v0
    v_lshrrev_b32 v2, 6, v0
    s_nop 0
    v_readfirstlane_b32 s18, v2
    s_waitcnt lgkmcnt(0)
    """)
    srd(a, 20, 4, S*D*2)
    srd(a, 24, 6, S*D*2)
    srd(a, 28, 8, S*D*2)
    srd(a, 32, 10, D*4*2)
    srd(a, 36, 12, D*F*2)
    srd(a, 40, 14, F*2)
    srd(a, 44, 16, WS_SIZE)
    vX, vW, vK, vV, vS = 8, 40, 72, 116, 148
    a(f"""
    s_cmp_lt_u32 {j}, 28
    s_cselect_b32 s38, s38, 0
    s_lshl_b32 s19, {j}, 6                         ; t0
    s_lshl_b32 s48, s18, 3
    s_add_u32 s48, s48, s19
    v_lshrrev_b32 v3, 3, v1                        ; l>>3
    v_and_b32 v4, 7, v1                            ; l&7
    v_lshlrev_b32 v5, 4, v4                        ; (l&7)*16
    v_add_u32 v6, s48, v3
    v_lshl_add_u32 v6, v6, 10, v5
    """)
    for it in range(8):
        a(f"buffer_load_dwordx4 v[{vX+4*it}:{vX+4*it+3}], v6, s[20:23], 0 offen offset:{it*128}")
    a(f"""
    s_lshl_b32 s49, s18, 6
    v_add_u32 v7, s49, v3
    v_mul_u32_u24 v7, {F*2}, v7
    s_lshl_b32 s49, {j}, 7
    v_add3_u32 v7, v7, v5, s49
    s_mov_b32 s50, 0
    """)
    for it in range(8):
        a(f"buffer_load_dwordx4 v[{vW+4*it}:{vW+4*it+3}], v7, s[36:39], s50 offen")
        if it < 7:
            a(f"s_add_u32 s50, s50, {8*F*2}")
    a(f"v_lshlrev_b32 v2, 6, v1")
    for i in range(4):
        a(f"buffer_load_dwordx4 v[{vS+4*i}:{vS+4*i+3}], v2, s[32:35], 0 offen offset:{16*i}")
    a(f"""
    s_lshl_b32 s49, s48, 10
    v_lshl_add_u32 v2, v1, 4, s49                  ; tw*1024 + l*16
    v_subrev_u32 v3, 3072, v2
    s_movk_i32 s50, 0x1000
    """)
    for i in range(3):
        a(f"buffer_load_dwordx4 v[{vK+4*i}:{vK+4*i+3}], v3, s[24:27], 0 offen offset:{1024*i}")
    for i in range(8):
        so = "0" if i < 4 else "s50"
        a(f"buffer_load_dwordx4 v[{vK+12+4*i}:{vK+12+4*i+3}], v2, s[24:27], {so} offen offset:{1024*(i%4)}")
    for i in range(8):
        so = "0" if i < 4 else "s50"
        a(f"buffer_load_dwordx4 v[{vV+4*i}:{vV+4*i+3}], v2, s[28:31], {so} offen offset:{1024*(i%4)}")
    U = 170
    a("s_waitcnt vmcnt(31)")
    for i in range(32):
        a(f"v_lshlrev_b32 v{U+2*i}, 16, v{vX+i}")
        a(f"v_and_b32 v{U+2*i+1}, 0xffff0000, v{vX+i}")
    A0, A1 = 164, 166
    a(f"v_pk_add_f32 v[{A0}:{A0+1}], v[{U}:{U+1}], v[{U+2}:{U+3}]")
    a(f"v_pk_add_f32 v[{A1}:{A1+1}], v[{U+4}:{U+5}], v[{U+6}:{U+7}]")
    for i in range(4, 32, 2):
        a(f"v_pk_add_f32 v[{A0}:{A0+1}], v[{A0}:{A0+1}], v[{U+2*i}:{U+2*i+1}]")
        a(f"v_pk_add_f32 v[{A1}:{A1+1}], v[{A1}:{A1+1}], v[{U+2*i+2}:{U+2*i+3}]")
    a(f"v_pk_add_f32 v[{A0}:{A0+1}], v[{A0}:{A0+1}], v[{A1}:{A1+1}]")
    a(f"v_add_f32 v{A0}, v{A0}, v{A0+1}")
    def red8(r):
        for mod in ("quad_perm:[1,0,3,2]", "quad_perm:[2,3,0,1]", "row_half_mirror"):
            a("s_nop 1")
            a(f"v_add_f32_dpp v{r}, v{r}, v{r} {mod} row_mask:0xf bank_mask:0xf")
    red8(A0)
    MEAN = 168
    a(f"v_mul_f32 v{MEAN}, 0x3b000000, v{A0}")
    for i in range(32):
        a(f"v_pk_add_f32 v[{U+2*i}:{U+2*i+1}], v[{U+2*i}:{U+2*i+1}], v[{MEAN}:{MEAN+1}] op_sel_hi:[1,0] neg_lo:[0,1] neg_hi:[0,1]")
    a(f"v_pk_mul_f32 v[{A0}:{A0+1}], v[{U}:{U+1}], v[{U}:{U+1}]")
    a(f"v_pk_mul_f32 v[{A1}:{A1+1}], v[{U+2}:{U+3}], v[{U+2}:{U+3}]")
    for i in range(2, 32, 2):
        a(f"v_pk_fma_f32 v[{A0}:{A0+1}], v[{U+2*i}:{U+2*i+1}], v[{U+2*i}:{U+2*i+1}], v[{A0}:{A0+1}]")
        a(f"v_pk_fma_f32 v[{A1}:{A1+1}], v[{U+2*i+2}:{U+2*i+3}], v[{U+2*i+2}:{U+2*i+3}], v[{A1}:{A1+1}]")
    a(f"v_pk_add_f32 v[{A0}:{A0+1}], v[{A0}:{A0+1}], v[{A1}:{A1+1}]")
    a(f"v_add_f32 v{A0}, v{A0}, v{A0+1}")
    red8(A0)
    a(f"v_mul_f32 v{A0}, 0x3b000000, v{A0}")
    bf16_round(a, A0, A0)
    a(f"v_add_f32 v{A0}, 0x3727c5ac, v{A0}")
    bf16_round(a, A0, A0)
    a(f"v_sqrt_f32 v{A0}, v{A0}")
    a("s_nop 0")
    bf16_round(a, A0, A0)
    a(f"v_rcp_f32 v{A0+1}, v{A0}")
    bf16_round(a, A0, MEAN)
    a(f"""
    v_lshrrev_b32 v3, 3, v1
    v_add_u32 v3, s48, v3
    v_lshlrev_b32 v3, 3, v3
    v_cmp_eq_u32 vcc, 0, v4
    s_and_saveexec_b64 s[52:53], vcc
    buffer_store_dwordx2 v[{A0}:{A0+1}], v3, s[44:47], 0 offen offset:{WS_STATS}
    s_mov_b64 exec, s[52:53]
    """)
    C = 170
    a("s_waitcnt vmcnt(24)")
    for it in range(8):
        for c in range(4):
            src = vW + 4*it + c
            dst = C + 2*c if it == 0 else 178 + 2*(c % 2)
            a(f"v_lshlrev_b32 v{dst}, 16, v{src}")
            a(f"v_and_b32 v{dst+1}, 0xffff0000, v{src}")
            if it > 0:
                a(f"v_pk_add_f32 v[{C+2*c}:{C+2*c+1}], v[{C+2*c}:{C+2*c+1}], v[{dst}:{dst+1}]")
    a("s_nop 1")
    for c in range(8):
        a(f"v_add_f32_dpp v{C+c}, v{C+c}, v{C+c} row_ror:8 row_mask:0xf bank_mask:0xf")
    for op in ("v_permlane16_swap_b32", "v_permlane32_swap_b32"):
        for c in range(8):
            a(f"v_mov_b32 v{180+c}, v{C+c}")
        a("s_nop 1")
        for c in range(8):
            a(f"{op} v{C+c}, v{180+c}")
        for c in range(8):
            a(f"v_add_f32 v{C+c}, v{C+c}, v{180+c}")
    a(f"""
    s_lshl_b32 s49, s18, 8
    s_add_u32 s49, s49, {CRED}
    v_lshlrev_b32 v3, 5, v4
    v_add_u32 v3, s49, v3
    v_cmp_gt_u32 vcc, 8, v1
    s_and_saveexec_b64 s[52:53], vcc
    ds_write_b128 v3, v[{C}:{C+3}]
    ds_write_b128 v3, v[{C+4}:{C+7}] offset:16
    s_mov_b64 exec, s[52:53]
    """)
    a("s_waitcnt vmcnt(0)")
    a(f"""
    s_sub_u32 s49, 7, s18
    v_xor_b32 v3, s49, v4
    v_lshlrev_b32 v3, 4, v3
    v_lshl_add_u32 v3, v1, 10, v3
    """)
    KK, VV, SS, KV, OUT = 8, 30, 46, 54, 170
    for dw in range(4):
        for i in range(11):
            a(f"v_lshlrev_b32 v{KK+2*i}, 16, v{vK+4*i+dw}")
            a(f"v_and_b32 v{KK+2*i+1}, 0xffff0000, v{vK+4*i+dw}")
        for i in range(8):
            a(f"v_lshlrev_b32 v{VV+2*i}, 16, v{vV+4*i+dw}")
            a(f"v_and_b32 v{VV+2*i+1}, 0xffff0000, v{vV+4*i+dw}")
        c0, c1 = vS + 4*dw, vS + 4*dw + 2
        a(f"v_lshlrev_b32 v{SS+0}, 16, v{c0}")
        a(f"v_lshlrev_b32 v{SS+1}, 16, v{c1}")
        a(f"v_and_b32 v{SS+2}, 0xffff0000, v{c0}")
        a(f"v_and_b32 v{SS+3}, 0xffff0000, v{c1}")
        a(f"v_lshlrev_b32 v{SS+4}, 16, v{c0+1}")
        a(f"v_lshlrev_b32 v{SS+5}, 16, v{c1+1}")
        a(f"v_and_b32 v{SS+6}, 0xffff0000, v{c0+1}")
        a(f"v_and_b32 v{SS+7}, 0xffff0000, v{c1+1}")
        def pr(r): return f"v[{r}:{r+1}]"
        for tt in range(8):
            a(f"v_pk_mul_f32 {pr(KV+2*tt)}, {pr(KK+2*tt)}, {pr(SS+6)}")
        for tt in range(8):
            a(f"v_pk_fma_f32 {pr(KV+2*tt)}, {pr(KK+2*(tt+1))}, {pr(SS+4)}, {pr(KV+2*tt)}")
        for tt in range(8):
            a(f"v_pk_fma_f32 {pr(KV+2*tt)}, {pr(KK+2*(tt+2))}, {pr(SS+2)}, {pr(KV+2*tt)}")
        for tt in range(8):
            a(f"v_pk_fma_f32 {pr(KV+2*tt)}, {pr(KK+2*(tt+3))}, {pr(SS+0)}, {pr(KV+2*tt)}")
        for tt in range(8):
            a(f"v_pk_mul_f32 {pr(KV+2*tt)}, {pr(KV+2*tt)}, {pr(VV+2*tt)}")
        for ch in range(2):
            o = OUT + 4*ch + 8*(dw % 2)
            for q in range(4):
                a(f"v_cvt_pk_bf16_f32 v{o+q}, v{KV+2*(7-2*q)+ch}, v{KV+2*(6-2*q)+ch}")
            a(f"ds_write_b128 v3, v[{o}:{o+3}] offset:{(2*dw+ch)*128}")
    a("s_waitcnt lgkmcnt(0)")
    a("s_barrier")
    lskip = a.label("prep_nocs")
    a(f"""
    s_cmp_lg_u32 s18, 0
    s_cbranch_scc1 {lskip}
    s_cmp_ge_u32 {j}, 28
    s_cbranch_scc1 {lskip}
    v_lshlrev_b32 v2, 2, v1
    v_add_u32 v2, {CRED}, v2
    s_lshl_b32 s49, {j}, 6
    v_add_lshl_u32 v5, v1, s49, 1
    buffer_load_ushort v16, v5, s[40:43], 0 offen
    """)
    for w in range(8):
        a(f"ds_read_b32 v{8+w}, v2 offset:{256*w}")
    a("s_waitcnt lgkmcnt(0)")
    a("""
    v_add_f32 v8, v8, v9
    v_add_f32 v10, v10, v11
    v_add_f32 v12, v12, v13
    v_add_f32 v14, v14, v15
    v_add_f32 v8, v8, v10
    v_add_f32 v12, v12, v14
    v_add_f32 v8, v8, v12
    v_lshlrev_b32 v5, 1, v5
    """)
    a(f"""
    s_mov_b32 s50, {WS_CS}
    buffer_store_dword v8, v5, s[44:47], s50 offen
    s_waitcnt vmcnt(1)
    v_lshlrev_b32 v16, 16, v16
    v_mul_f32 v16, {hex(LOG2E)}, v16
    s_mov_b32 s50, {WS_BL}
    buffer_store_dword v16, v5, s[44:47], s50 offen
    """)
    a.lines.append(f"{lskip}:")
    a(f"""
    v_lshrrev_b32 v3, 3, v1
    s_lshl_b32 s49, s18, 6
    v_add_u32 v3, s49, v3
    v_lshlrev_b32 v2, 7, v3
    v_lshlrev_b32 v3, 12, v3
    s_sub_u32 s49, 1984, s19
    s_lshl_b32 s49, s49, 1
    s_add_u32 s49, s49, {WS_KVT}
    v_lshl_add_u32 v3, v4, 4, v3
    """)
    for it in range(8):
        a(f"v_xor_b32 v5, {it}, v4")
        a(f"v_lshl_add_u32 v5, v5, 4, v2")
        a(f"ds_read_b128 v[{8+4*it}:{11+4*it}], v5 offset:{it*1024}")
    for it in range(8):
        a(f"s_waitcnt lgkmcnt({7-it})")
        a(f"buffer_store_dwordx4 v[{8+4*it}:{11+4*it}], v3, s[44:47], s49 offen")
        if it < 7:
            a(f"s_add_u32 s49, s49, {8*4096}")

def prep_kernel():
    a = Asm()
    kernel_begin(a, "prep_kernel")
    a("""
    s_cmp_ge_u32 s2, 32
    s_cbranch_scc1 L_prep_end
    s_mov_b32 s3, s2
    """)
    emit_prep(a, "s3")
    a.lines.append("L_prep_end:")
    a("s_endpgm")
    return a.text(), kernel_desc("prep_kernel", 240, 64)
```

```python
import sys
from common import *
import prep, gemm1, conv, gemm2
HDR = open("recurrent_scan__ssm_conv_h3__dense_activation_mish__prompt.s.ref").read().split("; Override launch geometry")[0]
def build_v1(mapping=0):
    ks = [("prep_kernel", prep.prep_kernel(), (32, 512, 67584)),
          ("gemm1_kernel", gemm1.gemm1_kernel(mapping), (224, 512, 131072)),
          ("conv_kernel", conv.conv_kernel(), (256, 256, 2*conv.CHSZ + 32768)),
          ("gemm2_kernel", gemm2.gemm2_kernel(), (256, 256, 131072))]
    s = HDR
    for n, _, (g, b, l) in ks:
        s += f"; @launch kernel={n} grid=({g},1,1) block=({b},1,1) lds={l}\n"
    s += '.amdgcn_target "amdgcn-amd-amdhsa--gfx950"\n.text\n'
    for n, (t, d), _ in ks: s += t
    s += '.section .rodata,"a"\n'
    for n, (t, d), _ in ks: s += d
    return s
if __name__ == "__main__":
    out = sys.argv[1]
    import common
    common.INSTR = len(sys.argv) > 2 and sys.argv[2] in ("instr", "dbg")
    common.DBGMODE = len(sys.argv) > 2 and sys.argv[2] == "dbg"
    open(out, "w").write(build_v1())
```

```python
class Asm:
    def __init__(self):
        self.lines = []
        self.nlabel = 0
    def __call__(self, s):
        for l in s.strip("\n").split("\n"):
            self.lines.append("    " + l.strip() if not l.strip().endswith(":") else l.strip())
    def label(self, base):
        self.nlabel += 1
        return f"L_{base}_{self.nlabel}"
    def text(self):
        return "\n".join(self.lines) + "\n"

KA = dict(q=0, k=8, v=16, shift=24, ssmk=32, ssmD=40, bx=48, w1=56, b1=64, w2=72, out=80, dbg=88, ws=96)

S, D, F = 2048, 512, 1792
WS_STATS = 0x0
WS_CS    = 0x8000
WS_BL    = 0xA000
WS_KVT   = 0x100000
WS_ACT   = 0x400000
WS_Y2    = 0xC00000
WS_SIZE  = 0x10000000

LOG2E = 0x3FB8AA3B
LN2   = 0x3F317218
NEG2LN2 = 0xBFB17218

def srd(a, dst, base, nbytes):
    a(f"s_mov_b32 s{dst}, s{base}")
    a(f"s_mov_b32 s{dst+1}, s{base+1}")
    a(f"s_mov_b32 s{dst+2}, {nbytes}")
    a(f"s_mov_b32 s{dst+3}, 0x00020000")

def srd_off(a, dst, base, off, nbytes):
    a(f"s_add_u32 s{dst}, s{base}, {off}")
    a(f"s_addc_u32 s{dst+1}, s{base+1}, 0")
    a(f"s_mov_b32 s{dst+2}, {nbytes}")
    a(f"s_mov_b32 s{dst+3}, 0x00020000")

def kernel_begin(a, name):
    a.lines.append(f".globl {name}")
    a.lines.append(".p2align 8")
    a.lines.append(f".type {name},@function")
    a.lines.append(f"{name}:")

def kernel_desc(name, vgpr, sgpr, accum=None):
    if accum is None:
        accum = (vgpr + 3) // 4 * 4
    return f""".p2align 6
.amdhsa_kernel {name}
  .amdhsa_next_free_vgpr {vgpr}
  .amdhsa_next_free_sgpr {sgpr}
  .amdhsa_accum_offset {accum}
  .amdhsa_group_segment_fixed_size 0
  .amdhsa_kernarg_size 104
  .amdhsa_user_sgpr_count 2
  .amdhsa_user_sgpr_kernarg_segment_ptr 1
  .amdhsa_system_sgpr_workgroup_id_x 1
  .amdhsa_float_denorm_mode_32 3
.end_amdhsa_kernel
"""

def bf16_round(a, dst, src, tmp=None):
    a(f"v_cvt_pk_bf16_f32 v{dst}, v{src}, v{src}")
    a(f"v_and_b32 v{dst}, 0xffff0000, v{dst}")


WS_TIM = 0xF000000
INSTR = False
def stamp_begin(a):
    if not INSTR: return
    a("s_memrealtime s[64:65]")
    a("s_memtime s[66:67]")
def stamp(a, i):
    if not INSTR: return
    a(f"s_memtime s[{68+2*i}:{69+2*i}]")
def stamp_end(a, kidx, wg="s2"):
    if not INSTR: return
    a(f"""
    s_waitcnt vmcnt(0) lgkmcnt(0)
    s_memrealtime s[88:89]
    s_memtime s[90:91]
    s_load_dwordx2 s[92:93], s[0:1], {KA['ws']}
    s_waitcnt lgkmcnt(0)
    s_mov_b32 s94, {WS_SIZE}
    s_mov_b32 s95, 0x00020000
    v_mov_b32 v2, s64
    v_mov_b32 v3, s88
    s_sub_u32 s90, s90, s66
    v_mov_b32 v4, s90
    v_mov_b32 v5, 0
    """)
    for i in range(10):
        a(f"s_sub_u32 s{68+2*i}, s{68+2*i}, s66")
        a(f"v_mov_b32 v{6+i}, s{68+2*i}")
    a(f"""
    s_lshl_b32 s96, {wg}, 6
    s_add_u32 s96, s96, {WS_TIM + kidx*0x8000}
    v_mov_b32 v16, s96
    v_cmp_eq_u32 vcc, 0, v0
    s_and_saveexec_b64 s[98:99], vcc
    s_cbranch_execz L_tim_skip_{kidx}
    buffer_store_dwordx4 v[2:5], v16, s[92:95], 0 offen
    buffer_store_dwordx4 v[6:9], v16, s[92:95], 0 offen offset:16
    buffer_store_dwordx4 v[10:13], v16, s[92:95], 0 offen offset:32
    buffer_store_dwordx2 v[14:15], v16, s[92:95], 0 offen offset:48
    s_waitcnt vmcnt(0)
    """)
    a.lines.append(f"L_tim_skip_{kidx}:")
def nsgpr(n):
    return 102 if INSTR else n

def stamp_end_dbg(a, kidx, wg_sel=0):
    if not INSTR: return
    a(f"""
    s_waitcnt vmcnt(0) lgkmcnt(0)
    s_memrealtime s[88:89]
    s_memtime s[90:91]
    s_load_dwordx2 s[92:93], s[0:1], {KA['dbg']}
    s_waitcnt lgkmcnt(0)
    s_cmp_lg_u32 s2, {wg_sel}
    s_cbranch_scc1 L_timd_skip_{kidx}
    s_mov_b32 s94, 256
    s_mov_b32 s95, 0x00020000
    v_mov_b32 v2, s64
    v_mov_b32 v3, s88
    s_sub_u32 s90, s90, s66
    v_mov_b32 v4, s90
    v_mov_b32 v5, {kidx+1}
    """)
    for i in range(10):
        a(f"s_sub_u32 s{68+2*i}, s{68+2*i}, s66")
        a(f"v_mov_b32 v{6+i}, s{68+2*i}")
    a(f"""
    v_mov_b32 v16, 0
    v_cmp_eq_u32 vcc, 0, v0
    s_and_saveexec_b64 s[98:99], vcc
    s_cbranch_execz L_timd_skip_{kidx}
    buffer_store_dwordx4 v[2:5], v16, s[92:95], 0 offen
    buffer_store_dwordx4 v[6:9], v16, s[92:95], 0 offen offset:16
    buffer_store_dwordx4 v[10:13], v16, s[92:95], 0 offen offset:32
    buffer_store_dwordx2 v[14:15], v16, s[92:95], 0 offen offset:48
    s_waitcnt vmcnt(0)
    """)
    a.lines.append(f"L_timd_skip_{kidx}:")
DBGMODE = False
_stamp_end_ws = stamp_end
def stamp_end(a, kidx, wg="s2"):
    if DBGMODE: stamp_end_dbg(a, kidx)
    else: _stamp_end_ws(a, kidx, wg)
```

```python
from common import *
import common

OB, UB, CHSZ = 4160, 8320, 12928

def emit_conv(a, p, lds_base=0, ex_base=2*CHSZ):
    ACC = 8
    A0, B0, A1, B1 = 40, 72, 104, 136
    VA = 168
    VB = 172
    a(f"""
    s_load_dwordx4 s[4:7], s[0:1], {KA['ssmk']}
    s_load_dwordx2 s[16:17], s[0:1], {KA['ws']}
    v_and_b32 v1, 63, v0
    v_lshrrev_b32 v2, 6, v0
    s_nop 0
    v_readfirstlane_b32 s18, v2
    s_waitcnt lgkmcnt(0)
    """)
    srd(a, 20, 4, D*S*2)
    srd(a, 28, 16, WS_SIZE)
    a(f"""
    s_lshr_b32 s36, s18, 1                         ; ch
    s_and_b32 s37, s18, 1                          ; half
    s_lshl_b32 s38, {p}, 1
    s_add_u32 s38, s38, s36                        ; channel d
    s_lshl_b32 s39, s38, 12                        ; d*4096
    s_add_u32 s8, s4, s39
    s_addc_u32 s9, s5, 0
    s_load_dword s40, s[8:9], 0                    ; (K[0], K[1])
    s_lshl_b32 s41, {p}, 2
    s_add_u32 s8, s6, s41
    s_addc_u32 s9, s7, 0
    s_load_dword s41, s[8:9], 0                    ; (D[d0], D[d0+1])
    s_mul_i32 s42, s36, {CHSZ}
    s_add_u32 s42, s42, {lds_base}
    v_lshlrev_b32 v2, 4, v1
    s_lshl_b32 s43, s37, 1
    s_add_u32 s43, s43, s39
    v_add_u32 v3, s43, v2
    s_mul_i32 s44, s37, {OB}
    s_add_u32 s44, s44, s42
    s_add_u32 s44, s44, 32
    s_mov_b32 s45, 0
    """)
    for i in range(4):
        a(f"s_mov_b32 m0, s44")
        a(f"s_add_u32 s44, s44, 1024")
        a(f"buffer_load_dwordx4 v3, s[20:23], s45 offen lds")
        if i < 3: a(f"s_add_u32 s45, s45, 1024")
    a(f"""
    s_lshl_b32 s45, s37, 11
    s_add_u32 s44, s42, {UB}
    s_add_u32 s44, s44, s45
    s_add_u32 s45, s45, s39
    s_add_u32 s45, s45, {WS_KVT}
    """)
    for i in range(2):
        a(f"s_mov_b32 m0, s44")
        a(f"s_add_u32 s44, s44, 1024")
        a(f"buffer_load_dwordx4 v2, s[28:31], s45 offen lds")
        if i < 1: a(f"s_add_u32 s45, s45, 1024")
    lodd, lpad = a.label("cv_odd"), a.label("cv_pad")
    a(f"""
    v_mov_b32 v4, 0
    v_mov_b32 v5, 0
    v_mov_b32 v6, 0
    v_mov_b32 v7, 0
    s_cmp_eq_u32 s37, 1
    s_cbranch_scc1 {lodd}
    v_add_u32 v3, s42, v2
    s_mov_b64 exec, 3
    ds_write_b128 v3, v[4:7]
    s_mov_b64 exec, 0x3fffffff
    ds_write_b128 v3, v[4:7] offset:{UB+4096}
    s_mov_b64 exec, -1
    s_branch {lpad}
    """)
    a.lines.append(f"{lodd}:")
    a(f"""
    s_waitcnt lgkmcnt(0)
    s_lshl_b32 s40, s40, 16
    v_add_u32 v3, s42, v2
    v_cmp_eq_u32 vcc, 1, v1
    v_mov_b32 v7, s40
    s_nop 0
    v_cndmask_b32 v7, 0, v7, vcc
    s_mov_b64 exec, 3
    ds_write_b128 v3, v[4:7] offset:{OB}
    s_mov_b64 exec, -1
    """)
    a.lines.append(f"{lpad}:")
    a(f"""
    v_and_b32 v2, 15, v1                           ; i / j
    v_lshrrev_b32 v3, 4, v1                        ; g
    v_lshlrev_b32 v4, 3, v3
    v_sub_u32 v4, v2, v4                           ; i - 8g
    v_add_u32 v4, 9, v4
    v_lshlrev_b32 v4, 1, v4                        ; 2*(9 + i - 8g)
    v_and_b32 v5, 1, v2
    v_cmp_eq_u32 vcc, 0, v5
    v_mov_b32 v6, {OB-2}
    s_lshl_b32 s43, s37, 8                         ; 64 * (4*half)
    v_cndmask_b32 v6, 0, v6, vcc
    s_add_u32 s44, s42, 32
    s_add_u32 s44, s44, s43
    v_add3_u32 v{VA}, v4, v6, s44
    v_add_u32 v{VA+1}, 1024, v{VA}
    v_add_u32 v{VA+2}, 2048, v{VA}
    v_add_u32 v{VA+3}, 3072, v{VA}
    v_lshlrev_b32 v4, 5, v2
    v_lshl_add_u32 v4, v3, 4, v4                   ; 32j + 16g
    s_add_u32 s44, s42, {UB + 4112 - 3584}
    s_add_u32 s44, s44, s43
    v_sub_u32 v{VB}, s44, v4
    """)
    for r in range(32):
        a(f"v_mov_b32 v{ACC+r}, 0")
    stamp(a, 0)
    a("""
    s_waitcnt vmcnt(0) lgkmcnt(0)
    s_barrier
    """)
    stamp(a, 1)
    def reads(A, B):
        ins = []
        for mu in range(8):
            base = VA + (mu >> 1); o = 128*(mu & 1)
            ins.append(f"ds_read_b128 v[{B+4*mu}:{B+4*mu+3}], v{VB} offset:{512*(7-mu)}")
            ins.append(f"ds_read2_b32 v[{A+4*mu}:{A+4*mu+1}], v{base} offset0:{o} offset1:{o+1}")
            ins.append(f"ds_read2_b32 v[{A+4*mu+2}:{A+4*mu+3}], v{base} offset0:{o+2} offset1:{o+3}")
        return ins
    def advance():
        return [f"v_add_u32 v{r}, 64, v{r}" for r in (VA, VA+1, VA+2, VA+3, VB)]
    def mfmas(A, B):
        ins = []
        for q in range(8):
            for mu in range(q+1):
                n = q - mu
                ins.append(f"v_mfma_f32_16x16x32_bf16 v[{ACC+4*q}:{ACC+4*q+3}], v[{A+4*mu}:{A+4*mu+3}], v[{B+4*n}:{B+4*n+3}], v[{ACC+4*q}:{ACC+4*q+3}]")
        return ins
    def interleave(m, rd):
        k = 0
        for i, x in enumerate(m):
            a(x)
            if k < len(rd):
                a(rd[k]); k += 1
        assert k == len(rd)
    for x in reads(A0, B0): a(x)
    loop, ldone = a.label("cv_loop"), a.label("cv_done")
    a("s_mov_b32 s45, 0")
    a.lines.append(f"{loop}:")
    a("s_waitcnt lgkmcnt(0)")
    interleave(mfmas(A0, B0), advance() + reads(A1, B1))
    a("s_waitcnt lgkmcnt(0)")
    a(f"""
    s_cmp_eq_u32 s45, 1
    s_cbranch_scc1 {ldone}
    s_mov_b32 s45, 1
    """)
    interleave(mfmas(A1, B1), advance() + reads(A0, B0))
    a(f"s_branch {loop}")
    a.lines.append(f"{ldone}:")
    for x in mfmas(A1, B1): a(x)
    stamp(a, 2)
    a(f"""
    s_lshl_b32 s43, s18, 13
    s_add_u32 s43, s43, {ex_base}
    v_lshlrev_b32 v2, 4, v1
    v_add_u32 v3, s43, v2
    v_and_b32 v4, 15, v1
    v_lshrrev_b32 v5, 4, v1
    v_lshlrev_b32 v6, 5, v4
    v_lshl_add_u32 v6, v5, 3, v6                   ; 32j + 8g = 2*(16j + 4g)
    s_lshl_b32 s44, s18, 10                        ; 2*256*(2w)
    s_sub_u32 s44, {lds_base + UB + 2*2044 - 512}, s44
    v_sub_u32 v7, s44, v6
    ds_read_b64 v[40:41], v7 offset:512
    ds_read_b64 v[42:43], v7
    ds_read_b64 v[44:45], v7 offset:{512+CHSZ}
    ds_read_b64 v[46:47], v7 offset:{CHSZ}
    s_nop 4
    """)
    for q in range(8):
        a(f"ds_write_b128 v3, v[{ACC+4*q}:{ACC+4*q+3}] offset:{1024*q}")
    a(f"""
    s_lshl_b32 s43, s18, 11
    s_add_u32 s43, s43, {ex_base}
    v_add_u32 v3, s43, v2
    s_waitcnt lgkmcnt(0)
    s_barrier
    """)
    stamp(a, 3)
    Y = 48
    for w in range(4):
        for qq in range(2):
            a(f"ds_read_b128 v[{Y+8*w+4*qq}:{Y+8*w+4*qq+3}], v3 offset:{8192*w+1024*qq}")
    a(f"""
    s_lshl_b32 s46, s41, 16
    s_and_b32 s47, s41, 0xffff0000
    v_lshlrev_b32 v6, 6, v4
    v_lshl_add_u32 v6, v5, 4, v6
    s_lshl_b32 s43, {p}, 13
    s_lshl_b32 s44, s18, 11
    s_add_u32 s43, s43, s44
    s_add_u32 s43, s43, {WS_Y2}
    s_waitcnt lgkmcnt(0)
    """)
    T = 80
    for qq in range(2):
        for ch in range(2):
            y0, y1 = Y + 8*(2*ch) + 4*qq, Y + 8*(2*ch+1) + 4*qq
            u = 40 + 2*qq + 4*ch
            sD = 46 + ch
            r = T + 8*ch
            for k in range(4):
                a(f"v_add_f32 v{r+k}, v{y0+k}, v{y1+k}")
            a(f"v_and_b32 v{r+4}, 0xffff0000, v{u+1}")
            a(f"v_lshlrev_b32 v{r+5}, 16, v{u+1}")
            a(f"v_and_b32 v{r+6}, 0xffff0000, v{u}")
            a(f"v_lshlrev_b32 v{r+7}, 16, v{u}")
            for k in range(4):
                a(f"v_mul_f32 v{r+4+k}, s{sD}, v{r+4+k}")
            a(f"v_cvt_pk_bf16_f32 v{r}, v{r}, v{r+1}")
            a(f"v_cvt_pk_bf16_f32 v{r+2}, v{r+2}, v{r+3}")
            a(f"v_cvt_pk_bf16_f32 v{r+4}, v{r+4}, v{r+5}")
            a(f"v_cvt_pk_bf16_f32 v{r+6}, v{r+6}, v{r+7}")
            a(f"v_and_b32 v{r+1}, 0xffff0000, v{r}")
            a(f"v_lshlrev_b32 v{r}, 16, v{r}")
            a(f"v_and_b32 v{r+3}, 0xffff0000, v{r+2}")
            a(f"v_lshlrev_b32 v{r+2}, 16, v{r+2}")
            a(f"v_and_b32 v{r+5}, 0xffff0000, v{r+4}")
            a(f"v_lshlrev_b32 v{r+4}, 16, v{r+4}")
            a(f"v_and_b32 v{r+7}, 0xffff0000, v{r+6}")
            a(f"v_lshlrev_b32 v{r+6}, 16, v{r+6}")
            for k in range(4):
                a(f"v_add_f32 v{r+k}, v{r+k}, v{r+4+k}")
        o = 96 + 4*qq
        for k in range(4):
            a(f"v_cvt_pk_bf16_f32 v{o+k}, v{T+k}, v{T+8+k}")
        a(f"buffer_store_dwordx4 v[{o}:{o+3}], v6, s[28:31], s43 offen offset:{1024*qq}")

def conv_kernel():
    a = Asm()
    kernel_begin(a, "conv_kernel")
    a("""
    s_cmp_ge_u32 s2, 256
    s_cbranch_scc1 L_conv_end
    s_mov_b32 s3, s2
    """)
    stamp_begin(a)
    emit_conv(a, "s3")
    stamp_end(a, 2)
    a.lines.append("L_conv_end:")
    a("s_endpgm")
    return a.text(), kernel_desc("conv_kernel", 176, nsgpr(64))
```

```python
from common import *
import common

def emit_wgmap_gemm1(a, wid, mapping):
    if mapping == 0:
        a(f"""
        s_and_b32 s34, {wid}, 7
        s_lshr_b32 s35, {wid}, 3
        s_mul_hi_u32 s32, s35, 0x12492493
        s_mul_i32 s33, s32, 14
        s_sub_u32 s33, s35, s33
        s_lshl_b32 s34, s34, 1
        s_add_u32 s32, s32, s34
        """)
    else:
        a(f"""
        s_and_b32 s34, {wid}, 7
        s_lshr_b32 s35, {wid}, 3
        s_mul_hi_u32 s32, s35, 0x24924925
        s_mul_i32 s33, s32, 7
        s_sub_u32 s33, s35, s33
        s_and_b32 s35, s34, 1
        s_mul_i32 s35, s35, 7
        s_add_u32 s33, s33, s35
        s_lshr_b32 s34, s34, 1
        s_lshl_b32 s34, s34, 2
        s_add_u32 s32, s32, s34
        """)

ACC = 8
FP, FQ = 40, 52
VC, VB = 64, 96
VXA = 128
VWA = 132
VX0, VX1, VW = 134, 135, 136
VST = 138
VK = 140

def dma_stage(a, first):
    a(f"""
    s_mov_b32 m0, s40
    s_add_u32 s43, s40, 1024
    buffer_load_dwordx4 v{VX0}, s[20:23], s41 offen lds
    s_mov_b32 m0, s43
    s_add_u32 s43, s40, 16384
    buffer_load_dwordx4 v{VX1}, s[20:23], s41 offen lds
    s_mov_b32 m0, s43
    s_add_u32 s43, s40, 17408
    buffer_load_dwordx4 v{VW}, s[24:27], s42 offen lds
    s_mov_b32 m0, s43
    s_add_u32 s44, s42, {4*F*2}
    buffer_load_dwordx4 v{VW}, s[24:27], s44 offen lds
    s_add_u32 s41, s41, 128
    s_add_u32 s42, s42, {64*F*2}
    s_add_u32 s40, s40, 32768
    s_and_b32 s40, s40, 0x1ffff
    """)

def read_frags(a, dst, step):
    a(f"ds_read_b128 v[{dst}:{dst+3}], v{VXA+step}")
    for n in range(2):
        for j in range(2):
            r = dst + 4 + 4*n + 2*j
            a(f"ds_read_b64_tr_b16 v[{r}:{r+1}], v{VWA+n} offset:{4096*step + 1024*j}")

def mfma_pair(a, src):
    for n in range(2):
        a(f"v_mfma_f32_32x32x16_bf16 v[{ACC+16*n}:{ACC+16*n+15}], v[{src+4+4*n}:{src+7+4*n}], v[{src}:{src+3}], v[{ACC+16*n}:{ACC+16*n+15}]")

def emit_gemm1(a, wid, mapping=0):
    a(f"""
    s_load_dwordx2 s[4:5], s[0:1], {KA['q']}
    s_load_dwordx2 s[12:13], s[0:1], {KA['w1']}
    s_load_dwordx2 s[16:17], s[0:1], {KA['ws']}
    v_and_b32 v1, 63, v0
    v_lshrrev_b32 v2, 6, v0
    s_nop 0
    v_readfirstlane_b32 s18, v2
    """)
    emit_wgmap_gemm1(a, wid, mapping)
    a("s_waitcnt lgkmcnt(0)")
    srd(a, 20, 4, S*D*2)
    srd(a, 24, 12, D*F*2)
    srd(a, 28, 16, WS_SIZE)
    a(f"""
    s_and_b32 s36, s18, 3                          ; tg
    s_lshr_b32 s37, s18, 2                         ; fh
    v_lshrrev_b32 v2, 3, v1                        ; l>>3
    v_lshrrev_b32 v3, 4, v1                        ; l>>4
    v_and_b32 v4, 7, v1
    s_lshl_b32 s38, s32, 7
    s_lshl_b32 s39, s18, 4
    s_add_u32 s38, s38, s39
    v_add_u32 v5, s38, v2
    v_lshlrev_b32 v5, 10, v5
    v_xor_b32 v6, v4, v3
    v_lshl_add_u32 v{VX0}, v6, 4, v5
    v_xor_b32 v6, 4, v6
    v_lshl_add_u32 v{VX1}, v6, 4, v5
    v_add_u32 v{VX1}, 8192, v{VX1}
    s_lshl_b32 s39, s18, 3
    v_add_u32 v5, s39, v3
    v_mul_u32_u24 v5, {F*2}, v5
    v_and_b32 v6, 15, v1
    v_lshlrev_b32 v7, 2, v3
    v_xor_b32 v6, v6, v7
    v_lshl_add_u32 v5, v6, 4, v5
    s_lshl_b32 s39, s33, 8
    v_add_u32 v{VW}, s39, v5
    s_lshl_b32 s40, s18, 11
    s_mov_b32 s41, 0
    s_mov_b32 s42, 0
    v_and_b32 v5, 31, v1
    s_lshl_b32 s38, s32, 7
    s_lshl_b32 s39, s36, 5
    s_add_u32 s38, s38, s39
    v_add_lshl_u32 v6, v5, s38, 3
    buffer_load_dwordx2 v[{VST}:{VST+1}], v6, s[28:31], 0 offen offset:{WS_STATS}
    v_lshrrev_b32 v6, 5, v1                        ; h
    s_lshl_b32 s38, s33, 7
    s_lshl_b32 s39, s37, 6
    s_add_u32 s38, s38, s39
    v_lshl_add_u32 v7, v6, 2, s38
    v_lshlrev_b32 v7, 2, v7
    s_mov_b32 s46, {WS_CS}
    s_mov_b32 s47, {WS_BL}
    """)
    for g in range(8):
        a(f"buffer_load_dwordx4 v[{VC+4*g}:{VC+4*g+3}], v7, s[28:31], s46 offen offset:{32*g}")
        a(f"buffer_load_dwordx4 v[{VB+4*g}:{VB+4*g+3}], v7, s[28:31], s47 offen offset:{32*g}")
    for st in range(4):
        dma_stage(a, st == 0)
    a(f"""
    v_lshrrev_b32 v2, 1, v5
    v_and_b32 v2, 7, v2
    v_xor_b32 v2, v2, v6                           ; h ^ y
    s_lshl_b32 s38, s36, 12
    v_lshl_add_u32 v3, v5, 7, s38                  ; token*128
    """)
    for s in range(4):
        a(f"v_xor_b32 v4, {2*s}, v2")
        a(f"v_lshl_add_u32 v{VXA+s}, v4, 4, v3")
    a(f"""
    v_bfe_u32 v2, v1, 2, 2                         ; r
    v_bfe_u32 v3, v1, 4, 1                         ; fh16
    v_and_b32 v4, 3, v1                            ; c
    v_lshrrev_b32 v7, 1, v4
    v_lshl_add_u32 v7, v3, 1, v7                   ; 2*fh16 + (c>>1)
    v_and_b32 v4, 1, v4
    v_lshlrev_b32 v4, 3, v4                        ; 8*(c&1)
    v_lshl_add_u32 v3, v6, 3, v2                   ; 8h + r
    v_lshl_add_u32 v4, v3, 8, v4
    v_add_u32 v4, 16384, v4
    s_lshl_b32 s38, s37, 1
    """)
    for n in range(2):
        a(f"s_add_u32 s39, s38, {n}")
        a(f"v_xor_b32 v3, s39, v2")
        a(f"v_lshl_add_u32 v3, v3, 2, v7")
        a(f"v_lshl_add_u32 v{VWA+n}, v3, 4, v4")
    for r in range(32):
        a(f"v_mov_b32 v{ACC+r}, 0")
    a(f"""
    v_mov_b32 v{VK}, 1.0
    v_mov_b32 v{VK+1}, 1.0
    v_mov_b32 v{VK+2}, {hex(LN2)}
    v_mov_b32 v{VK+3}, {hex(LN2)}
    v_mov_b32 v{VK+4}, {hex(NEG2LN2)}
    v_mov_b32 v{VK+5}, {hex(NEG2LN2)}
    s_mov_b32 s45, 0
    s_mov_b32 s48, 0
    s_mov_b32 s50, 32768
    """)
    stamp(a, 0)
    a("""
    s_waitcnt vmcnt(12)
    s_barrier
    """)
    stamp(a, 1)
    read_frags(a, FP, 0)
    loop, lv4, lv0, lbar, lnodma, llast, ldone = [a.label(x) for x in ("g1_loop", "g1_v4", "g1_v0", "g1_bar", "g1_nodma", "g1_last", "g1_done")]
    a.lines.append(f"{loop}:")
    read_frags(a, FQ, 1); a("s_waitcnt lgkmcnt(5)"); mfma_pair(a, FP)
    read_frags(a, FP, 2); a("s_waitcnt lgkmcnt(5)"); mfma_pair(a, FQ)
    read_frags(a, FQ, 3); a("s_waitcnt lgkmcnt(5)"); mfma_pair(a, FP)
    a(f"""
    s_cmp_eq_u32 s45, 7
    s_cbranch_scc1 {llast}
    s_cmp_ge_u32 s45, 5
    s_cbranch_scc1 {lv4}
    s_waitcnt vmcnt(8) lgkmcnt(0)
    s_branch {lbar}
    """)
    a.lines.append(f"{lv4}:")
    a(f"""
    s_cmp_eq_u32 s45, 6
    s_cbranch_scc1 {lv0}
    s_waitcnt vmcnt(4) lgkmcnt(0)
    s_branch {lbar}
    """)
    a.lines.append(f"{lv0}:")
    a("s_waitcnt vmcnt(0) lgkmcnt(0)")
    a.lines.append(f"{lbar}:")
    a(f"""
    s_barrier
    s_cmp_ge_u32 s45, 4
    s_cbranch_scc1 {lnodma}
    """)
    dma_stage(a, False)
    a.lines.append(f"{lnodma}:")
    a(f"""
    s_add_u32 s48, s48, 32768
    s_and_b32 s48, s48, 0x1ffff
    s_cmp_eq_u32 s48, 0
    s_cselect_b32 s49, {(-98304) & 0xffffffff}, s50
    s_add_u32 s45, s45, 1
    """)
    for r in list(range(VXA, VXA+4)) + [VWA, VWA+1]:
        a(f"v_add_u32 v{r}, s49, v{r}")
    read_frags(a, FP, 0)
    mfma_pair(a, FQ)
    a(f"s_branch {loop}")
    a.lines.append(f"{llast}:")
    a("s_waitcnt lgkmcnt(0)")
    mfma_pair(a, FQ)
    stamp(a, 2)
    R = VK + 6
    a(f"""
    v_mul_f32 v{R}, {hex(LOG2E)}, v{VST+1}
    s_lshl_b32 s38, s32, 2
    s_add_u32 s38, s38, s36                        ; tb32
    s_mul_i32 s38, s38, 112
    s_lshl_b32 s39, s33, 3
    s_add_u32 s38, s38, s39
    s_lshl_b32 s39, s37, 2
    s_add_u32 s38, s38, s39
    s_lshl_b32 s38, s38, 10
    s_add_u32 s38, s38, {WS_ACT}
    v_lshlrev_b32 v2, 4, v1
    s_nop 7
    """)
    def pr(r): return f"v[{r}:{r+1}]"
    T = 40
    OUT = 148
    for fr in range(4):
        prs = [(ACC + 8*fr + 2*p, VC + 8*fr + 2*p, VB + 8*fr + 2*p) for p in range(4)]
        Z = [T + 2*p for p in range(4)]
        E = [T + 8 + 2*p for p in range(4)]
        for p, (ac, c, b) in enumerate(prs):
            a(f"v_pk_fma_f32 {pr(Z[p])}, {pr(VST)}, {pr(c)}, {pr(ac)} op_sel_hi:[0,1,1] neg_lo:[1,0,0] neg_hi:[1,0,0]")
        for p, (ac, c, b) in enumerate(prs):
            a(f"v_pk_fma_f32 {pr(Z[p])}, {pr(R)}, {pr(Z[p])}, {pr(b)} op_sel_hi:[0,1,1]")
        for p in range(4):
            a(f"v_exp_f32 v{E[p]}, v{Z[p]}")
            a(f"v_exp_f32 v{E[p]+1}, v{Z[p]+1}")
        for p in range(4):
            a(f"v_pk_add_f32 {pr(E[p])}, {pr(E[p])}, {pr(VK)}")
        for p in range(4):
            a(f"v_pk_fma_f32 {pr(E[p])}, {pr(E[p])}, {pr(E[p])}, {pr(VK)}")
        for p in range(4):
            a(f"v_rcp_f32 v{E[p]}, v{E[p]}")
            a(f"v_rcp_f32 v{E[p]+1}, v{E[p]+1}")
        for p in range(4):
            a(f"v_pk_fma_f32 {pr(E[p])}, {pr(E[p])}, {pr(VK+4)}, {pr(VK+2)}")
        for p in range(4):
            a(f"v_pk_mul_f32 {pr(Z[p])}, {pr(Z[p])}, {pr(E[p])}")
        o = OUT + 4*fr
        for p in range(4):
            a(f"v_cvt_pk_bf16_f32 v{o+p}, v{Z[p]}, v{Z[p]+1}")
        a(f"buffer_store_dwordx4 v[{o}:{o+3}], v2, s[28:31], s38 offen offset:{1024*fr}")

def gemm1_kernel(mapping=0):
    a = Asm()
    kernel_begin(a, "gemm1_kernel")
    a("""
    s_cmp_ge_u32 s2, 224
    s_cbranch_scc1 L_gemm1_end
    s_mov_b32 s3, s2
    """)
    stamp_begin(a)
    emit_gemm1(a, "s3", mapping)
    stamp_end(a, 1)
    a.lines.append("L_gemm1_end:")
    a("s_endpgm")
    return a.text(), kernel_desc("gemm1_kernel", 168, nsgpr(64))
```

```python
from common import *
import common

ACC = 8
FP, FQ = 24, 32
VX = 40
VY = 48
VST = 56
VA, VW = 58, 59
VSA, VSW = 60, 61
NST = 14

def dma_stage(a):
    a(f"""
    s_add_u32 s45, s40, s43
    s_mov_b32 m0, s45
    s_add_u32 s46, s40, s44
    buffer_load_dwordx4 v{VSA}, s[28:31], s41 offen lds
    buffer_load_dwordx4 v{VSA}, s[28:31], s41 offen offset:1024 lds
    buffer_load_dwordx4 v{VSA}, s[28:31], s41 offen offset:2048 lds
    buffer_load_dwordx4 v{VSA}, s[28:31], s41 offen offset:3072 lds
    s_mov_b32 m0, s46
    s_add_u32 s47, s42, {8192-1024}
    buffer_load_dwordx4 v{VSW}, s[24:27], s42 offen lds
    buffer_load_dwordx4 v{VSW}, s[24:27], s47 offen offset:1024 lds
    s_add_u32 s47, s42, {2*(8192-1024)}
    s_add_u32 s48, s42, {3*(8192-1024)}
    buffer_load_dwordx4 v{VSW}, s[24:27], s47 offen offset:2048 lds
    buffer_load_dwordx4 v{VSW}, s[24:27], s48 offen offset:3072 lds
    s_add_u32 s41, s41, 8192
    s_add_u32 s42, s42, {128*1024}
    s_add_u32 s40, s40, 32768
    s_and_b32 s40, s40, 0x1ffff
    """)

def read_frags(a, dst, step):
    a(f"ds_read_b128 v[{dst}:{dst+3}], v{VA} offset:{1024*step}")
    a(f"ds_read_b64_tr_b16 v[{dst+4}:{dst+5}], v{VW} offset:{2048*step}")
    a(f"ds_read_b64_tr_b16 v[{dst+6}:{dst+7}], v{VW} offset:{2048*step+1024}")

def mfma(a, src):
    a(f"v_mfma_f32_32x32x16_bf16 v[{ACC}:{ACC+15}], v[{src+4}:{src+7}], v[{src}:{src+3}], v[{ACC}:{ACC+15}]")

def emit_gemm2(a, wid):
    a(f"""
    s_load_dwordx2 s[4:5], s[0:1], {KA['q']}
    s_load_dwordx4 s[12:15], s[0:1], {KA['w2']}    ; w2, out
    s_load_dwordx2 s[16:17], s[0:1], {KA['ws']}
    v_and_b32 v1, 63, v0
    v_lshrrev_b32 v2, 6, v0
    s_nop 0
    v_readfirstlane_b32 s18, v2
    s_and_b32 s34, {wid}, 7
    s_lshr_b32 s35, {wid}, 3
    s_lshr_b32 s32, s35, 3
    s_lshl_b32 s34, s34, 2
    s_add_u32 s32, s32, s34
    s_and_b32 s33, s35, 7
    s_waitcnt lgkmcnt(0)
    """)
    srd(a, 20, 4, S*D*2)
    srd(a, 24, 12, F*D*2)
    srd(a, 28, 16, WS_SIZE)
    srd(a, 52, 14, S*D*2)
    a(f"""
    s_and_b32 s36, s18, 1                          ; ti
    s_lshr_b32 s37, s18, 1                         ; di
    v_and_b32 v5, 31, v1                           ; t
    v_lshrrev_b32 v6, 5, v1                        ; h
    s_lshl_b32 s38, s32, 6
    s_lshl_b32 s39, s36, 5
    s_add_u32 s38, s38, s39
    v_add_u32 v2, s38, v5                          ; token
    s_lshl_b32 s38, s33, 6
    s_lshl_b32 s39, s37, 5
    s_add_u32 s38, s38, s39
    v_lshl_add_u32 v3, v6, 4, s38
    v_lshlrev_b32 v4, 10, v2
    v_lshl_add_u32 v62, v3, 1, v4
    buffer_load_dwordx4 v[{VX}:{VX+3}], v62, s[20:23], 0 offen
    buffer_load_dwordx4 v[{VX+4}:{VX+7}], v62, s[20:23], 0 offen offset:16
    v_lshlrev_b32 v4, 3, v2
    buffer_load_dwordx2 v[{VST}:{VST+1}], v4, s[28:31], 0 offen offset:{WS_STATS}
    v_lshlrev_b32 v4, 12, v3                       ; (d/2)*8192
    v_lshl_add_u32 v4, v2, 2, v4
    s_mov_b32 s38, {WS_Y2}
    """)
    for k in range(8):
        a(f"buffer_load_dword v{VY+k}, v4, s[28:31], s38 offen")
        if k < 7: a("s_add_u32 s38, s38, 8192")
    a(f"""
    v_lshlrev_b32 v{VSA}, 4, v1
    s_lshl_b32 s38, s32, 1
    s_lshr_b32 s39, s18, 1
    s_add_u32 s38, s38, s39
    s_mul_i32 s38, s38, 112
    s_and_b32 s39, s18, 1
    s_lshl_b32 s39, s39, 2
    s_add_u32 s38, s38, s39
    s_lshl_b32 s41, s38, 10
    s_add_u32 s41, s41, {WS_ACT}
    s_lshl_b32 s43, s18, 12
    s_lshl_b32 s44, s18, 12
    s_add_u32 s44, s44, 16384
    v_lshrrev_b32 v2, 3, v1
    v_lshlrev_b32 v2, 10, v2
    v_bfe_u32 v3, v1, 4, 1
    v_lshlrev_b32 v3, 2, v3
    v_and_b32 v4, 7, v1
    v_xor_b32 v3, v3, v4
    v_lshl_add_u32 v{VSW}, v3, 4, v2
    s_lshl_b32 s42, s18, 15
    s_lshl_b32 s39, s33, 7
    s_add_u32 s42, s42, s39
    s_mov_b32 s40, 0
    """)
    for st in range(4):
        dma_stage(a)
    a(f"""
    s_lshl_b32 s38, s36, 13
    v_lshl_add_u32 v{VA}, v1, 4, s38
    v_bfe_u32 v2, v1, 2, 2                         ; r
    v_bfe_u32 v3, v1, 4, 1                         ; dh16
    v_and_b32 v4, 1, v1                            ; cc&1
    v_lshl_add_u32 v3, v4, 1, v3
    v_lshrrev_b32 v4, 1, v2                        ; r>>1
    v_xor_b32 v4, s37, v4                          ; di ^ (r>>1)
    v_lshl_add_u32 v3, v4, 2, v3
    v_bfe_u32 v4, v1, 1, 1                         ; cc>>1
    v_lshlrev_b32 v4, 3, v4
    v_lshl_add_u32 v3, v3, 4, v4
    v_lshl_add_u32 v2, v6, 2, v2                   ; 4h + r
    v_lshl_add_u32 v3, v2, 7, v3
    v_add_u32 v{VW}, 16384, v3
    """)
    for r in range(16):
        a(f"v_mov_b32 v{ACC+r}, 0")
    a("""
    s_mov_b32 s49, 0                               ; stage
    s_mov_b32 s50, 0
    s_mov_b32 s51, 32768
    """)
    stamp(a, 0)
    a("""
    s_waitcnt vmcnt(24)
    s_barrier
    """)
    stamp(a, 1)
    read_frags(a, FP, 0)
    loop, lv8, lv0, lbar, lnodma, llast = [a.label(x) for x in ("g2_loop", "g2_v8", "g2_v0", "g2_bar", "g2_nodma", "g2_last")]
    a.lines.append(f"{loop}:")
    cur, nxt = FP, FQ
    for s in range(7):
        read_frags(a, nxt, s+1); a("s_waitcnt lgkmcnt(3)"); mfma(a, cur)
        cur, nxt = nxt, cur
    a(f"""
    s_cmp_eq_u32 s49, {NST-1}
    s_cbranch_scc1 {llast}
    s_cmp_ge_u32 s49, {NST-3}
    s_cbranch_scc1 {lv8}
    s_waitcnt vmcnt(16) lgkmcnt(0)
    s_branch {lbar}
    """)
    a.lines.append(f"{lv8}:")
    a(f"""
    s_cmp_eq_u32 s49, {NST-2}
    s_cbranch_scc1 {lv0}
    s_waitcnt vmcnt(8) lgkmcnt(0)
    s_branch {lbar}
    """)
    a.lines.append(f"{lv0}:")
    a("s_waitcnt vmcnt(0) lgkmcnt(0)")
    a.lines.append(f"{lbar}:")
    a(f"""
    s_barrier
    s_cmp_ge_u32 s49, {NST-4}
    s_cbranch_scc1 {lnodma}
    """)
    dma_stage(a)
    a.lines.append(f"{lnodma}:")
    a(f"""
    s_add_u32 s50, s50, 32768
    s_and_b32 s50, s50, 0x1ffff
    s_cmp_eq_u32 s50, 0
    s_cselect_b32 s39, {(-98304) & 0xffffffff}, s51
    s_add_u32 s49, s49, 1
    v_add_u32 v{VA}, s39, v{VA}
    v_add_u32 v{VW}, s39, v{VW}
    """)
    read_frags(a, nxt, 0)
    mfma(a, cur)
    a(f"s_branch {loop}")
    a.lines.append(f"{llast}:")
    a("s_waitcnt lgkmcnt(0)")
    mfma(a, cur)
    stamp(a, 2)
    def pr(r): return f"v[{r}:{r+1}]"
    K1, KL = 64, 66
    a(f"""
    v_mov_b32 v{K1}, 1.0
    v_mov_b32 v{K1+1}, 1.0
    v_mov_b32 v{KL}, {hex(LOG2E | 0x80000000)}
    v_mov_b32 v{KL+1}, {hex(LOG2E | 0x80000000)}
    """)
    def rnd(r):
        a(f"v_cvt_pk_bf16_f32 v{r}, v{r}, v{r+1}")
        a(f"v_and_b32 v{r+1}, 0xffff0000, v{r}")
        a(f"v_lshlrev_b32 v{r}, 16, v{r}")
    XF, SF = 68, 84
    T = 100
    for k in range(8):
        a(f"v_lshlrev_b32 v{XF+2*k}, 16, v{VX+k}")
        a(f"v_and_b32 v{XF+2*k+1}, 0xffff0000, v{VX+k}")
    for k in range(8):
        a(f"v_pk_add_f32 {pr(SF+2*k)}, {pr(XF+2*k)}, {pr(VST)} op_sel_hi:[1,0] neg_lo:[0,1] neg_hi:[0,1]")
    for k in range(8): rnd(SF+2*k)
    for k in range(8):
        a(f"v_pk_mul_f32 {pr(SF+2*k)}, {pr(SF+2*k)}, {pr(VST)} op_sel:[0,1] op_sel_hi:[1,1]")
    for k in range(8): rnd(SF+2*k)
    for k in range(8):
        a(f"v_lshlrev_b32 v{T}, 16, v{VY+k}")
        a(f"v_and_b32 v{T+1}, 0xffff0000, v{VY+k}")
        a(f"v_pk_mul_f32 {pr(SF+2*k)}, {pr(SF+2*k)}, {pr(T)}")
    for k in range(8): rnd(SF+2*k)
    for k in range(8): rnd(ACC+2*k)
    E = 24
    for k in range(8):
        a(f"v_pk_mul_f32 {pr(E+2*k)}, {pr(ACC+2*k)}, {pr(KL)}")
    for k in range(16):
        a(f"v_exp_f32 v{E+k}, v{E+k}")
    for k in range(8):
        a(f"v_pk_add_f32 {pr(E+2*k)}, {pr(E+2*k)}, {pr(K1)}")
    for k in range(16):
        a(f"v_rcp_f32 v{E+k}, v{E+k}")
    for k in range(8):
        a(f"v_pk_mul_f32 {pr(E+2*k)}, {pr(E+2*k)}, {pr(ACC+2*k)}")
    for k in range(8): rnd(E+2*k)
    for k in range(8):
        a(f"v_pk_mul_f32 {pr(E+2*k)}, {pr(E+2*k)}, {pr(SF+2*k)}")
    for k in range(8): rnd(E+2*k)
    for k in range(8):
        a(f"v_pk_add_f32 {pr(E+2*k)}, {pr(E+2*k)}, {pr(XF+2*k)}")
    for k in range(8):
        a(f"v_cvt_pk_bf16_f32 v{VX+k}, v{E+2*k}, v{E+2*k+1}")
    a(f"buffer_store_dwordx4 v[{VX}:{VX+3}], v62, s[52:55], 0 offen")
    a(f"buffer_store_dwordx4 v[{VX+4}:{VX+7}], v62, s[52:55], 0 offen offset:16")

def gemm2_kernel():
    a = Asm()
    kernel_begin(a, "gemm2_kernel")
    a("""
    s_cmp_ge_u32 s2, 256
    s_cbranch_scc1 L_gemm2_end
    s_mov_b32 s3, s2
    """)
    stamp_begin(a)
    emit_gemm2(a, "s3")
    stamp_end(a, 3)
    a.lines.append("L_gemm2_end:")
    a("s_endpgm")
    return a.text(), kernel_desc("gemm2_kernel", 104, nsgpr(64))
```

```python
from common import *
import common

def emit_prep(a, j="s3"):
    CRED = 65536
    a(f"""
    s_load_dwordx4 s[4:7], s[0:1], {KA['q']}       ; q, k
    s_load_dwordx4 s[8:11], s[0:1], {KA['v']}      ; v, shift
    s_load_dwordx4 s[12:15], s[0:1], {KA['w1']}    ; w1, b1
    s_load_dwordx2 s[16:17], s[0:1], {KA['ws']}
    v_and_b32 v1, 63, v0
    v_lshrrev_b32 v2, 6, v0
    s_nop 0
    v_readfirstlane_b32 s18, v2
    s_waitcnt lgkmcnt(0)
    """)
    srd(a, 20, 4, S*D*2)
    srd(a, 24, 6, S*D*2)
    srd(a, 28, 8, S*D*2)
    srd(a, 32, 10, D*4*2)
    srd(a, 36, 12, D*F*2)
    srd(a, 40, 14, F*2)
    srd(a, 44, 16, WS_SIZE)
    vX, vW, vK, vV, vS = 8, 40, 72, 116, 148
    a(f"""
    s_cmp_lt_u32 {j}, 28
    s_cselect_b32 s38, s38, 0
    s_lshl_b32 s19, {j}, 6                         ; t0
    s_lshl_b32 s48, s18, 3
    s_add_u32 s48, s48, s19
    v_lshrrev_b32 v3, 3, v1                        ; l>>3
    v_and_b32 v4, 7, v1                            ; l&7
    v_lshlrev_b32 v5, 4, v4                        ; (l&7)*16
    v_add_u32 v6, s48, v3
    v_lshl_add_u32 v6, v6, 10, v5
    """)
    for it in range(8):
        a(f"buffer_load_dwordx4 v[{vX+4*it}:{vX+4*it+3}], v6, s[20:23], 0 offen offset:{it*128}")
    a(f"""
    s_lshl_b32 s49, s18, 6
    v_add_u32 v7, s49, v3
    v_mul_u32_u24 v7, {F*2}, v7
    s_lshl_b32 s49, {j}, 7
    v_add3_u32 v7, v7, v5, s49
    s_mov_b32 s50, 0
    """)
    for it in range(8):
        a(f"buffer_load_dwordx4 v[{vW+4*it}:{vW+4*it+3}], v7, s[36:39], s50 offen")
        if it < 7:
            a(f"s_add_u32 s50, s50, {8*F*2}")
    a(f"v_lshlrev_b32 v2, 6, v1")
    for i in range(4):
        a(f"buffer_load_dwordx4 v[{vS+4*i}:{vS+4*i+3}], v2, s[32:35], 0 offen offset:{16*i}")
    a(f"""
    s_lshl_b32 s49, s48, 10
    v_lshl_add_u32 v2, v1, 4, s49                  ; tw*1024 + l*16
    v_subrev_u32 v3, 3072, v2
    s_movk_i32 s50, 0x1000
    """)
    for i in range(3):
        a(f"buffer_load_dwordx4 v[{vK+4*i}:{vK+4*i+3}], v3, s[24:27], 0 offen offset:{1024*i}")
    for i in range(8):
        so = "0" if i < 4 else "s50"
        a(f"buffer_load_dwordx4 v[{vK+12+4*i}:{vK+12+4*i+3}], v2, s[24:27], {so} offen offset:{1024*(i%4)}")
    for i in range(8):
        so = "0" if i < 4 else "s50"
        a(f"buffer_load_dwordx4 v[{vV+4*i}:{vV+4*i+3}], v2, s[28:31], {so} offen offset:{1024*(i%4)}")
    U = 170
    stamp(a, 0)
    a("s_waitcnt vmcnt(31)")
    stamp(a, 1)
    for i in range(32):
        a(f"v_lshlrev_b32 v{U+2*i}, 16, v{vX+i}")
        a(f"v_and_b32 v{U+2*i+1}, 0xffff0000, v{vX+i}")
    A0, A1 = 164, 166
    a(f"v_pk_add_f32 v[{A0}:{A0+1}], v[{U}:{U+1}], v[{U+2}:{U+3}]")
    a(f"v_pk_add_f32 v[{A1}:{A1+1}], v[{U+4}:{U+5}], v[{U+6}:{U+7}]")
    for i in range(4, 32, 2):
        a(f"v_pk_add_f32 v[{A0}:{A0+1}], v[{A0}:{A0+1}], v[{U+2*i}:{U+2*i+1}]")
        a(f"v_pk_add_f32 v[{A1}:{A1+1}], v[{A1}:{A1+1}], v[{U+2*i+2}:{U+2*i+3}]")
    a(f"v_pk_add_f32 v[{A0}:{A0+1}], v[{A0}:{A0+1}], v[{A1}:{A1+1}]")
    a(f"v_add_f32 v{A0}, v{A0}, v{A0+1}")
    def red8(r):
        for mod in ("quad_perm:[1,0,3,2]", "quad_perm:[2,3,0,1]", "row_half_mirror"):
            a("s_nop 1")
            a(f"v_add_f32_dpp v{r}, v{r}, v{r} {mod} row_mask:0xf bank_mask:0xf")
    red8(A0)
    MEAN = 168
    a(f"v_mul_f32 v{MEAN}, 0x3b000000, v{A0}")
    for i in range(32):
        a(f"v_pk_add_f32 v[{U+2*i}:{U+2*i+1}], v[{U+2*i}:{U+2*i+1}], v[{MEAN}:{MEAN+1}] op_sel_hi:[1,0] neg_lo:[0,1] neg_hi:[0,1]")
    a(f"v_pk_mul_f32 v[{A0}:{A0+1}], v[{U}:{U+1}], v[{U}:{U+1}]")
    a(f"v_pk_mul_f32 v[{A1}:{A1+1}], v[{U+2}:{U+3}], v[{U+2}:{U+3}]")
    for i in range(2, 32, 2):
        a(f"v_pk_fma_f32 v[{A0}:{A0+1}], v[{U+2*i}:{U+2*i+1}], v[{U+2*i}:{U+2*i+1}], v[{A0}:{A0+1}]")
        a(f"v_pk_fma_f32 v[{A1}:{A1+1}], v[{U+2*i+2}:{U+2*i+3}], v[{U+2*i+2}:{U+2*i+3}], v[{A1}:{A1+1}]")
    a(f"v_pk_add_f32 v[{A0}:{A0+1}], v[{A0}:{A0+1}], v[{A1}:{A1+1}]")
    a(f"v_add_f32 v{A0}, v{A0}, v{A0+1}")
    red8(A0)
    a(f"v_mul_f32 v{A0}, 0x3b000000, v{A0}")
    bf16_round(a, A0, A0)
    a(f"v_add_f32 v{A0}, 0x3727c5ac, v{A0}")
    bf16_round(a, A0, A0)
    a(f"v_sqrt_f32 v{A0}, v{A0}")
    a("s_nop 0")
    bf16_round(a, A0, A0)
    a(f"v_rcp_f32 v{A0+1}, v{A0}")
    bf16_round(a, A0, MEAN)
    a(f"""
    v_lshrrev_b32 v3, 3, v1
    v_add_u32 v3, s48, v3
    v_lshlrev_b32 v3, 3, v3
    v_cmp_eq_u32 vcc, 0, v4
    s_and_saveexec_b64 s[52:53], vcc
    buffer_store_dwordx2 v[{A0}:{A0+1}], v3, s[44:47], 0 offen offset:{WS_STATS}
    s_mov_b64 exec, s[52:53]
    """)
    C = 170
    stamp(a, 2)
    a("s_waitcnt vmcnt(24)")
    for it in range(8):
        for c in range(4):
            src = vW + 4*it + c
            dst = C + 2*c if it == 0 else 178 + 2*(c % 2)
            a(f"v_lshlrev_b32 v{dst}, 16, v{src}")
            a(f"v_and_b32 v{dst+1}, 0xffff0000, v{src}")
            if it > 0:
                a(f"v_pk_add_f32 v[{C+2*c}:{C+2*c+1}], v[{C+2*c}:{C+2*c+1}], v[{dst}:{dst+1}]")
    a("s_nop 1")
    for c in range(8):
        a(f"v_add_f32_dpp v{C+c}, v{C+c}, v{C+c} row_ror:8 row_mask:0xf bank_mask:0xf")
    for op in ("v_permlane16_swap_b32", "v_permlane32_swap_b32"):
        for c in range(8):
            a(f"v_mov_b32 v{180+c}, v{C+c}")
        a("s_nop 1")
        for c in range(8):
            a(f"{op} v{C+c}, v{180+c}")
        for c in range(8):
            a(f"v_add_f32 v{C+c}, v{C+c}, v{180+c}")
    a(f"""
    s_lshl_b32 s49, s18, 8
    s_add_u32 s49, s49, {CRED}
    v_lshlrev_b32 v3, 5, v4
    v_add_u32 v3, s49, v3
    v_cmp_gt_u32 vcc, 8, v1
    s_and_saveexec_b64 s[52:53], vcc
    ds_write_b128 v3, v[{C}:{C+3}]
    ds_write_b128 v3, v[{C+4}:{C+7}] offset:16
    s_mov_b64 exec, s[52:53]
    """)
    stamp(a, 3)
    a("s_waitcnt vmcnt(0)")
    stamp(a, 4)
    a(f"""
    s_sub_u32 s49, 7, s18
    v_xor_b32 v3, s49, v4
    v_lshlrev_b32 v3, 4, v3
    v_lshl_add_u32 v3, v1, 10, v3
    """)
    KK, VV, SS, KV, OUT = 8, 30, 46, 54, 170
    for dw in range(4):
        for i in range(11):
            a(f"v_lshlrev_b32 v{KK+2*i}, 16, v{vK+4*i+dw}")
            a(f"v_and_b32 v{KK+2*i+1}, 0xffff0000, v{vK+4*i+dw}")
        for i in range(8):
            a(f"v_lshlrev_b32 v{VV+2*i}, 16, v{vV+4*i+dw}")
            a(f"v_and_b32 v{VV+2*i+1}, 0xffff0000, v{vV+4*i+dw}")
        c0, c1 = vS + 4*dw, vS + 4*dw + 2
        a(f"v_lshlrev_b32 v{SS+0}, 16, v{c0}")
        a(f"v_lshlrev_b32 v{SS+1}, 16, v{c1}")
        a(f"v_and_b32 v{SS+2}, 0xffff0000, v{c0}")
        a(f"v_and_b32 v{SS+3}, 0xffff0000, v{c1}")
        a(f"v_lshlrev_b32 v{SS+4}, 16, v{c0+1}")
        a(f"v_lshlrev_b32 v{SS+5}, 16, v{c1+1}")
        a(f"v_and_b32 v{SS+6}, 0xffff0000, v{c0+1}")
        a(f"v_and_b32 v{SS+7}, 0xffff0000, v{c1+1}")
        def pr(r): return f"v[{r}:{r+1}]"
        for tt in range(8):
            a(f"v_pk_mul_f32 {pr(KV+2*tt)}, {pr(KK+2*tt)}, {pr(SS+6)}")
        for tt in range(8):
            a(f"v_pk_fma_f32 {pr(KV+2*tt)}, {pr(KK+2*(tt+1))}, {pr(SS+4)}, {pr(KV+2*tt)}")
        for tt in range(8):
            a(f"v_pk_fma_f32 {pr(KV+2*tt)}, {pr(KK+2*(tt+2))}, {pr(SS+2)}, {pr(KV+2*tt)}")
        for tt in range(8):
            a(f"v_pk_fma_f32 {pr(KV+2*tt)}, {pr(KK+2*(tt+3))}, {pr(SS+0)}, {pr(KV+2*tt)}")
        for tt in range(8):
            a(f"v_pk_mul_f32 {pr(KV+2*tt)}, {pr(KV+2*tt)}, {pr(VV+2*tt)}")
        for ch in range(2):
            o = OUT + 4*ch + 8*(dw % 2)
            for q in range(4):
                a(f"v_cvt_pk_bf16_f32 v{o+q}, v{KV+2*(7-2*q)+ch}, v{KV+2*(6-2*q)+ch}")
            a(f"ds_write_b128 v3, v[{o}:{o+3}] offset:{(2*dw+ch)*128}")
    stamp(a, 5)
    a("s_waitcnt lgkmcnt(0)")
    a("s_barrier")
    stamp(a, 6)
    lskip = a.label("prep_nocs")
    a(f"""
    s_cmp_lg_u32 s18, 0
    s_cbranch_scc1 {lskip}
    s_cmp_ge_u32 {j}, 28
    s_cbranch_scc1 {lskip}
    v_lshlrev_b32 v2, 2, v1
    v_add_u32 v2, {CRED}, v2
    s_lshl_b32 s49, {j}, 6
    v_add_lshl_u32 v5, v1, s49, 1
    buffer_load_ushort v16, v5, s[40:43], 0 offen
    """)
    for w in range(8):
        a(f"ds_read_b32 v{8+w}, v2 offset:{256*w}")
    a("s_waitcnt lgkmcnt(0)")
    a("""
    v_add_f32 v8, v8, v9
    v_add_f32 v10, v10, v11
    v_add_f32 v12, v12, v13
    v_add_f32 v14, v14, v15
    v_add_f32 v8, v8, v10
    v_add_f32 v12, v12, v14
    v_add_f32 v8, v8, v12
    v_lshlrev_b32 v5, 1, v5
    """)
    a(f"""
    s_mov_b32 s50, {WS_CS}
    buffer_store_dword v8, v5, s[44:47], s50 offen
    s_waitcnt vmcnt(1)
    v_lshlrev_b32 v16, 16, v16
    v_mul_f32 v16, {hex(LOG2E)}, v16
    s_mov_b32 s50, {WS_BL}
    buffer_store_dword v16, v5, s[44:47], s50 offen
    """)
    a.lines.append(f"{lskip}:")
    a(f"""
    v_lshrrev_b32 v3, 3, v1
    s_lshl_b32 s49, s18, 6
    v_add_u32 v3, s49, v3
    v_lshlrev_b32 v2, 7, v3
    v_lshlrev_b32 v3, 12, v3
    s_sub_u32 s49, 1984, s19
    s_lshl_b32 s49, s49, 1
    s_add_u32 s49, s49, {WS_KVT}
    v_lshl_add_u32 v3, v4, 4, v3
    """)
    for it in range(8):
        a(f"v_xor_b32 v5, {it}, v4")
        a(f"v_lshl_add_u32 v5, v5, 4, v2")
        a(f"ds_read_b128 v[{8+4*it}:{11+4*it}], v5 offset:{it*1024}")
    for it in range(8):
        a(f"s_waitcnt lgkmcnt({7-it})")
        a(f"buffer_store_dwordx4 v[{8+4*it}:{11+4*it}], v3, s[44:47], s49 offen")
        if it < 7:
            a(f"s_add_u32 s49, s49, {8*4096}")

def prep_kernel():
    a = Asm()
    kernel_begin(a, "prep_kernel")
    a("""
    s_cmp_ge_u32 s2, 32
    s_cbranch_scc1 L_prep_end
    s_mov_b32 s3, s2
    """)
    stamp_begin(a)
    emit_prep(a, "s3")
    stamp_end(a, 0)
    a.lines.append("L_prep_end:")
    a("s_endpgm")
    return a.text(), kernel_desc("prep_kernel", 240, nsgpr(64))
```

```python
from common import *
import common
from conv import OB, UB, CHSZ

CV_BASE = 131072
EX_BASE = 98304
NST = 14
TOUCH2 = True
def y2cnt_off(db): return (db >> 1) * 64 + (db & 1) * 32

S_WAVE, S_TB, S_DB, S_P = 18, 32, 33, 34
SRD_X, SRD_W2, SRD_WS, SRD_K, SRD_OUT, SRD_DBG = 20, 24, 28, 36, 40, 44

def emit_back_setup(a, wid):
    a(f"""
    s_load_dwordx2 s[4:5], s[0:1], {KA['q']}
    s_load_dwordx4 s[8:11], s[0:1], {KA['ssmk']}
    s_load_dwordx4 s[12:15], s[0:1], {KA['w2']}    ; w2, out
    s_load_dwordx4 s[48:51], s[0:1], {KA['dbg']}
    v_and_b32 v1, 63, v0
    v_lshrrev_b32 v2, 6, v0
    s_nop 0
    v_readfirstlane_b32 s{S_WAVE}, v2
    s_mov_b32 s{S_P}, {wid}
    s_and_b32 s52, {wid}, 7
    s_lshr_b32 s53, {wid}, 3
    s_lshr_b32 s{S_TB}, s53, 3
    s_lshl_b32 s52, s52, 2
    s_add_u32 s{S_TB}, s{S_TB}, s52
    s_and_b32 s{S_DB}, s53, 7
    s_waitcnt lgkmcnt(0)
    """)
    srd(a, SRD_X, 4, S*D*2)
    srd(a, SRD_W2, 12, F*D*2)
    srd(a, SRD_WS, 50, WS_SIZE)
    srd(a, SRD_K, 8, D*S*2)
    srd(a, SRD_OUT, 14, S*D*2)
    srd(a, SRD_DBG, 48, 256)

VSA, VSW = 60, 61
def loader_stage(a):
    a(f"""
    s_add_u32 m0, s54, s57
    s_add_u32 s59, s56, {8192-1024}
    buffer_load_dwordx4 v{VSA}, s[{SRD_WS}:{SRD_WS+3}], s55 offen lds
    buffer_load_dwordx4 v{VSA}, s[{SRD_WS}:{SRD_WS+3}], s55 offen offset:1024 lds
    buffer_load_dwordx4 v{VSA}, s[{SRD_WS}:{SRD_WS+3}], s55 offen offset:2048 lds
    buffer_load_dwordx4 v{VSA}, s[{SRD_WS}:{SRD_WS+3}], s55 offen offset:3072 lds
    s_add_u32 m0, s54, s58
    s_add_u32 s60, s56, {2*(8192-1024)}
    buffer_load_dwordx4 v{VSW}, s[{SRD_W2}:{SRD_W2+3}], s56 offen lds
    buffer_load_dwordx4 v{VSW}, s[{SRD_W2}:{SRD_W2+3}], s59 offen offset:1024 lds
    s_add_u32 s59, s56, {3*(8192-1024)}
    buffer_load_dwordx4 v{VSW}, s[{SRD_W2}:{SRD_W2+3}], s60 offen offset:2048 lds
    buffer_load_dwordx4 v{VSW}, s[{SRD_W2}:{SRD_W2+3}], s59 offen offset:3072 lds
    s_add_u32 s55, s55, 8192
    s_add_u32 s56, s56, {128*1024}
    s_add_u32 s54, s54, 32768
    s_and_b32 s54, s54, 0x1ffff
    """)

def emit_loader(a):
    lw = "s52"
    a(f"""
    s_sub_u32 {lw}, s{S_WAVE}, 4
    s_lshr_b32 s53, {lw}, 1
    s_and_b32 s54, {lw}, 1
    s_lshl_b32 s55, s{S_P}, 1
    s_add_u32 s55, s55, s53                        ; channel d
    s_lshl_b32 s55, s55, 12                        ; d*4096
    s_mul_i32 s56, s53, {CHSZ}
    s_add_u32 s56, s56, {CV_BASE}
    v_lshlrev_b32 v2, 4, v1
    s_lshl_b32 s57, s54, 1
    s_add_u32 s57, s57, s55
    v_add_u32 v3, s57, v2
    s_mul_i32 s58, s54, {OB}
    s_add_u32 s58, s58, s56
    s_add_u32 m0, s58, 32
    s_lshl_b32 s59, s54, 11
    buffer_load_dwordx4 v3, s[{SRD_K}:{SRD_K+3}], 0 offen lds
    buffer_load_dwordx4 v3, s[{SRD_K}:{SRD_K+3}], 0 offen offset:1024 lds
    buffer_load_dwordx4 v3, s[{SRD_K}:{SRD_K+3}], 0 offen offset:2048 lds
    buffer_load_dwordx4 v3, s[{SRD_K}:{SRD_K+3}], 0 offen offset:3072 lds
    s_add_u32 s58, s56, {UB}
    s_add_u32 m0, s58, s59
    s_add_u32 s59, s59, s55
    s_add_u32 s59, s59, {WS_KVT}
    buffer_load_dwordx4 v2, s[{SRD_WS}:{SRD_WS+3}], s59 offen lds
    buffer_load_dwordx4 v2, s[{SRD_WS}:{SRD_WS+3}], s59 offen offset:1024 lds
    v_lshlrev_b32 v{VSA}, 4, v1
    s_lshl_b32 s53, s{S_TB}, 1
    s_lshr_b32 s54, {lw}, 1
    s_add_u32 s53, s53, s54
    s_mul_i32 s53, s53, 112
    s_and_b32 s54, {lw}, 1
    s_lshl_b32 s54, s54, 2
    s_add_u32 s53, s53, s54
    s_lshl_b32 s55, s53, 10
    s_add_u32 s55, s55, {WS_ACT}
    s_lshl_b32 s57, {lw}, 12
    s_add_u32 s58, s57, 16384
    v_lshrrev_b32 v2, 3, v1
    v_lshlrev_b32 v2, 10, v2
    v_bfe_u32 v3, v1, 4, 1
    v_lshlrev_b32 v3, 2, v3
    v_and_b32 v4, 7, v1
    v_xor_b32 v3, v3, v4
    v_lshl_add_u32 v{VSW}, v3, 4, v2
    s_lshl_b32 s56, {lw}, 15
    s_lshl_b32 s53, s{S_DB}, 7
    s_add_u32 s56, s56, s53
    s_mov_b32 s54, 0
    """)
    a("""
    s_waitcnt vmcnt(0)
    s_barrier
    """)
    loader_stage(a); loader_stage(a); loader_stage(a)
    if TOUCH2:
        a(f"""
        s_lshr_b32 s59, s{S_P}, 3
        s_lshl_b32 s59, s59, 12
        v_and_b32 v2, 31, v1
        v_lshlrev_b32 v2, 7, v2
        v_lshrrev_b32 v3, 5, v1
        s_lshl_b32 s60, {lw}, 1
        v_add_u32 v3, s60, v3
        v_add_u32 v3, 3, v3
        v_lshlrev_b32 v3, 17, v3
        v_add3_u32 v2, v2, v3, s59
        buffer_load_dword v8, v2, s[{SRD_W2}:{SRD_W2+3}], 0 offen
        s_mov_b32 s60, {8 << 17}
        s_cmp_ge_u32 {lw}, 2
        s_cselect_b32 s60, 0x7fffffff, s60
        v_add_u32 v2, s60, v2
        buffer_load_dword v9, v2, s[{SRD_W2}:{SRD_W2+3}], 0 offen
        """)
    a("s_barrier")
    loop, lv8, lv0, lbar, lnodma, lnosig, lend = [a.label(x) for x in ("ld_loop", "ld_v8", "ld_v0", "ld_bar", "ld_nodma", "ld_nosig", "ld_end")]
    a("s_mov_b32 s61, 0")
    a.lines.append(f"{loop}:")
    a(f"""
    s_cmp_ge_u32 s61, {NST-2}
    s_cbranch_scc1 {lv8}
    s_waitcnt vmcnt(16)
    s_branch {lbar}
    """)
    a.lines.append(f"{lv8}:")
    a(f"""
    s_cmp_eq_u32 s61, {NST-1}
    s_cbranch_scc1 {lv0}
    s_waitcnt vmcnt(8)
    s_branch {lbar}
    """)
    a.lines.append(f"{lv0}:")
    a("s_waitcnt vmcnt(0)")
    a.lines.append(f"{lbar}:")
    a(f"""
    s_barrier
    s_cmp_ge_u32 s61, {NST-3}
    s_cbranch_scc1 {lnodma}
    """)
    loader_stage(a)
    a.lines.append(f"{lnodma}:")
    a(f"""
    s_cmp_lg_u32 s61, 2
    s_cbranch_scc1 {lnosig}
    s_cmp_lg_u32 s{S_WAVE}, 4
    s_cbranch_scc1 {lnosig}
    s_lshr_b32 s53, s{S_P}, 5
    s_lshr_b32 s59, s53, 1
    s_lshl_b32 s59, s59, 6
    s_and_b32 s53, s53, 1
    s_lshl_b32 s53, s53, 5
    s_add_u32 s53, s53, s59
    v_mov_b32 v2, s53
    v_mov_b32 v3, 1
    s_mov_b64 exec, 1
    buffer_atomic_add v3, v2, s[{SRD_DBG}:{SRD_DBG+3}], 0 offen sc1
    s_mov_b64 exec, -1
    """)
    a.lines.append(f"{lnosig}:")
    a(f"""
    s_add_u32 s61, s61, 1
    s_cmp_lt_u32 s61, {NST}
    s_cbranch_scc1 {loop}
    """)

def emit_conv_compute(a):
    ACC = 8
    A0, B0, A1, B1 = 40, 72, 104, 136
    VA, VB = 168, 172
    p = f"s{S_P}"
    lodd, lpad = a.label("cv_odd"), a.label("cv_pad")
    a(f"""
    s_lshr_b32 s52, s{S_WAVE}, 1                   ; ch
    s_and_b32 s53, s{S_WAVE}, 1                    ; half
    s_lshl_b32 s54, {p}, 1
    s_add_u32 s54, s54, s52
    s_lshl_b32 s55, s54, 12
    s_add_u32 s56, s8, s55
    s_addc_u32 s57, s9, 0
    s_load_dword s58, s[56:57], 0                  ; (K[0], K[1])
    s_lshl_b32 s55, {p}, 2
    s_add_u32 s56, s10, s55
    s_addc_u32 s57, s11, 0
    s_load_dword s59, s[56:57], 0                  ; (D[d0], D[d0+1])
    s_mul_i32 s60, s52, {CHSZ}
    s_add_u32 s60, s60, {CV_BASE}
    v_lshlrev_b32 v2, 4, v1
    v_mov_b32 v4, 0
    v_mov_b32 v5, 0
    v_mov_b32 v6, 0
    v_mov_b32 v7, 0
    v_add_u32 v3, s60, v2
    s_cmp_eq_u32 s53, 1
    s_cbranch_scc1 {lodd}
    s_mov_b64 exec, 3
    ds_write_b128 v3, v[4:7]
    s_mov_b64 exec, 0x3fffffff
    ds_write_b128 v3, v[4:7] offset:{UB+4096}
    s_mov_b64 exec, -1
    s_branch {lpad}
    """)
    a.lines.append(f"{lodd}:")
    a(f"""
    s_waitcnt lgkmcnt(0)
    s_lshl_b32 s58, s58, 16
    v_cmp_eq_u32 vcc, 1, v1
    v_mov_b32 v7, s58
    s_nop 0
    v_cndmask_b32 v7, 0, v7, vcc
    s_mov_b64 exec, 3
    ds_write_b128 v3, v[4:7] offset:{OB}
    s_mov_b64 exec, -1
    """)
    a.lines.append(f"{lpad}:")
    a(f"""
    v_and_b32 v2, 15, v1                           ; i / j
    v_lshrrev_b32 v3, 4, v1                        ; g
    v_lshlrev_b32 v4, 3, v3
    v_sub_u32 v4, v2, v4
    v_add_u32 v4, 9, v4
    v_lshlrev_b32 v4, 1, v4                        ; 2*(9 + i - 8g)
    v_and_b32 v5, 1, v2
    v_cmp_eq_u32 vcc, 0, v5
    v_mov_b32 v6, {OB-2}
    s_lshl_b32 s61, s53, 8
    v_cndmask_b32 v6, 0, v6, vcc
    s_add_u32 s62, s60, 32
    s_add_u32 s62, s62, s61
    v_add3_u32 v{VA}, v4, v6, s62
    v_add_u32 v{VA+1}, 1024, v{VA}
    v_add_u32 v{VA+2}, 2048, v{VA}
    v_add_u32 v{VA+3}, 3072, v{VA}
    v_lshlrev_b32 v4, 5, v2
    v_lshl_add_u32 v4, v3, 4, v4
    s_add_u32 s62, s60, {UB + 4112 - 3584}
    s_add_u32 s62, s62, s61
    v_sub_u32 v{VB}, s62, v4
    """)
    for r in range(32):
        a(f"v_mov_b32 v{ACC+r}, 0")
    stamp(a, 0)
    a("""
    s_waitcnt lgkmcnt(0)
    s_barrier                                      ; B0
    """)
    stamp(a, 1)
    def reads(A, B):
        ins = []
        for mu in range(8):
            base = VA + (mu >> 1); o = 128*(mu & 1)
            ins.append(f"ds_read_b128 v[{B+4*mu}:{B+4*mu+3}], v{VB} offset:{512*(7-mu)}")
            ins.append(f"ds_read2_b32 v[{A+4*mu}:{A+4*mu+1}], v{base} offset0:{o} offset1:{o+1}")
            ins.append(f"ds_read2_b32 v[{A+4*mu+2}:{A+4*mu+3}], v{base} offset0:{o+2} offset1:{o+3}")
        return ins
    def advance():
        return [f"v_add_u32 v{r}, 64, v{r}" for r in (VA, VA+1, VA+2, VA+3, VB)]
    def mfmas(A, B):
        ins = []
        for q in range(8):
            for mu in range(q+1):
                n = q - mu
                ins.append(f"v_mfma_f32_16x16x32_bf16 v[{ACC+4*q}:{ACC+4*q+3}], v[{A+4*mu}:{A+4*mu+3}], v[{B+4*n}:{B+4*n+3}], v[{ACC+4*q}:{ACC+4*q+3}]")
        return ins
    def interleave(m, rd):
        k = 0
        for x in m:
            a(x)
            if k < len(rd):
                a(rd[k]); k += 1
        assert k == len(rd)
    for x in reads(A0, B0): a(x)
    loop, ldone = a.label("cv_loop"), a.label("cv_done")
    a("s_mov_b32 s61, 0")
    a.lines.append(f"{loop}:")
    a("s_waitcnt lgkmcnt(0)")
    interleave(mfmas(A0, B0), advance() + reads(A1, B1))
    a("s_waitcnt lgkmcnt(0)")
    a(f"""
    s_cmp_eq_u32 s61, 1
    s_cbranch_scc1 {ldone}
    s_mov_b32 s61, 1
    """)
    interleave(mfmas(A1, B1), advance() + reads(A0, B0))
    a(f"s_branch {loop}")
    a.lines.append(f"{ldone}:")
    for x in mfmas(A1, B1): a(x)
    stamp(a, 2)
    a(f"""
    s_lshl_b32 s61, s{S_WAVE}, 13
    s_add_u32 s61, s61, {EX_BASE}
    v_lshlrev_b32 v2, 4, v1
    v_add_u32 v3, s61, v2
    v_and_b32 v4, 15, v1
    v_lshrrev_b32 v5, 4, v1
    v_lshlrev_b32 v6, 5, v4
    v_lshl_add_u32 v6, v5, 3, v6
    s_lshl_b32 s62, s{S_WAVE}, 10
    s_sub_u32 s62, {CV_BASE + UB + 2*2044 - 512}, s62
    v_sub_u32 v7, s62, v6
    ds_read_b64 v[40:41], v7 offset:512
    ds_read_b64 v[42:43], v7
    ds_read_b64 v[44:45], v7 offset:{512+CHSZ}
    ds_read_b64 v[46:47], v7 offset:{CHSZ}
    s_nop 4
    """)
    for q in range(8):
        a(f"ds_write_b128 v3, v[{ACC+4*q}:{ACC+4*q+3}] offset:{1024*q}")
    a(f"""
    s_lshl_b32 s61, s{S_WAVE}, 11
    s_add_u32 s61, s61, {EX_BASE}
    v_add_u32 v3, s61, v2
    s_waitcnt lgkmcnt(0)
    s_barrier                                      ; B1
    """)
    Y = 48
    for w in range(4):
        for qq in range(2):
            a(f"ds_read_b128 v[{Y+8*w+4*qq}:{Y+8*w+4*qq+3}], v3 offset:{8192*w+1024*qq}")
    a(f"""
    s_lshl_b32 s62, s59, 16
    s_and_b32 s63, s59, 0xffff0000
    v_lshlrev_b32 v6, 6, v4
    v_lshl_add_u32 v6, v5, 4, v6
    s_lshl_b32 s61, {p}, 13
    s_lshl_b32 s53, s{S_WAVE}, 11
    s_add_u32 s61, s61, s53
    s_add_u32 s61, s61, {WS_Y2}
    s_waitcnt lgkmcnt(0)
    """)
    T = 80
    for qq in range(2):
        for ch in range(2):
            y0, y1 = Y + 8*(2*ch) + 4*qq, Y + 8*(2*ch+1) + 4*qq
            u = 40 + 2*qq + 4*ch
            sD = 62 + ch
            r = T + 8*ch
            for k in range(4):
                a(f"v_add_f32 v{r+k}, v{y0+k}, v{y1+k}")
            a(f"v_and_b32 v{r+4}, 0xffff0000, v{u+1}")
            a(f"v_lshlrev_b32 v{r+5}, 16, v{u+1}")
            a(f"v_and_b32 v{r+6}, 0xffff0000, v{u}")
            a(f"v_lshlrev_b32 v{r+7}, 16, v{u}")
            for k in range(4):
                a(f"v_fmac_f32 v{r+k}, s{sD}, v{r+4+k}")
        o = 96 + 4*qq
        for k in range(4):
            a(f"v_cvt_pk_bf16_f32 v{o+k}, v{T+k}, v{T+8+k}")
        a(f"buffer_store_dwordx4 v[{o}:{o+3}], v6, s[{SRD_WS}:{SRD_WS+3}], s61 offen offset:{1024*qq} sc1")
    stamp(a, 3)

G_ACC = 8
FP, FQ = 24, 32
VX, VY, VST = 104, 112, 120
VA2, VW2, VOFF, VYO = 122, 123, 124, 125

def g2_read(a, dst, step):
    a(f"ds_read_b128 v[{dst}:{dst+3}], v{VA2} offset:{1024*step}")
    a(f"ds_read_b64_tr_b16 v[{dst+4}:{dst+5}], v{VW2} offset:{2048*step}")
    a(f"ds_read_b64_tr_b16 v[{dst+6}:{dst+7}], v{VW2} offset:{2048*step+1024}")
def g2_mfma(a, src):
    a(f"v_mfma_f32_32x32x16_bf16 v[{G_ACC}:{G_ACC+15}], v[{src+4}:{src+7}], v[{src}:{src+3}], v[{G_ACC}:{G_ACC+15}]")

def emit_gemm2_compute(a):
    w = f"s{S_WAVE}"
    a(f"""
    s_and_b32 s52, {w}, 1                          ; ti
    s_lshr_b32 s53, {w}, 1                         ; di
    v_and_b32 v5, 31, v1                           ; t
    v_lshrrev_b32 v6, 5, v1                        ; h
    s_lshl_b32 s54, s{S_TB}, 6
    s_lshl_b32 s55, s52, 5
    s_add_u32 s54, s54, s55
    v_add_u32 v2, s54, v5                          ; token
    s_lshl_b32 s54, s{S_DB}, 6
    s_lshl_b32 s55, s53, 5
    s_add_u32 s54, s54, s55
    v_lshl_add_u32 v3, v6, 4, s54
    v_lshlrev_b32 v4, 10, v2
    v_lshl_add_u32 v{VOFF}, v3, 1, v4
    buffer_load_dwordx4 v[{VX}:{VX+3}], v{VOFF}, s[{SRD_X}:{SRD_X+3}], 0 offen
    buffer_load_dwordx4 v[{VX+4}:{VX+7}], v{VOFF}, s[{SRD_X}:{SRD_X+3}], 0 offen offset:16
    v_lshlrev_b32 v4, 3, v2
    buffer_load_dwordx2 v[{VST}:{VST+1}], v4, s[{SRD_WS}:{SRD_WS+3}], 0 offen offset:{WS_STATS}
    v_lshlrev_b32 v4, 12, v3
    v_lshl_add_u32 v{VYO}, v2, 2, v4
    s_lshl_b32 s54, s52, 13
    v_lshl_add_u32 v{VA2}, v1, 4, s54
    v_bfe_u32 v2, v1, 2, 2                         ; r
    v_bfe_u32 v3, v1, 4, 1                         ; dh16
    v_and_b32 v4, 1, v1
    v_lshl_add_u32 v3, v4, 1, v3
    v_lshrrev_b32 v4, 1, v2
    v_xor_b32 v4, s53, v4
    v_lshl_add_u32 v3, v4, 2, v3
    v_bfe_u32 v4, v1, 1, 1
    v_lshlrev_b32 v4, 3, v4
    v_lshl_add_u32 v3, v3, 4, v4
    v_lshl_add_u32 v2, v6, 2, v2
    v_lshl_add_u32 v3, v2, 7, v3
    v_add_u32 v{VW2}, 16384, v3
    """)
    for r in range(16):
        a(f"v_mov_b32 v{G_ACC+r}, 0")
    a(f"""
    s_mov_b32 s54, 0                               ; stage
    s_mov_b32 s55, 0
    s_mov_b32 s56, 32768
    s_mov_b32 s57, 0
    s_lshr_b32 s58, s{S_DB}, 1
    s_lshl_b32 s58, s58, 6
    s_and_b32 s59, s{S_DB}, 1
    s_lshl_b32 s59, s59, 5
    s_add_u32 s58, s58, s59
    v_mov_b32 v126, s58
    s_barrier                                      ; S_0
    """)
    stamp(a, 4)
    g2_read(a, FP, 0)
    loop, llast, lnodrain, lnopoll, lnochk = [a.label(x) for x in ("g2_loop", "g2_last", "g2_nodrain", "g2_nopoll", "g2_nochk")]
    def y2_loads():
        a(f"s_mov_b32 s59, {WS_Y2}")
        for k in range(8):
            a(f"buffer_load_dword v{VY+k}, v{VYO}, s[{SRD_WS}:{SRD_WS+3}], s59 offen sc1")
            if k < 7: a("s_add_u32 s59, s59, 8192")
    a.lines.append(f"{loop}:")
    cur, nxt = FP, FQ
    for s in range(7):
        g2_read(a, nxt, s+1); a("s_waitcnt lgkmcnt(3)"); g2_mfma(a, cur)
        cur, nxt = nxt, cur
    a(f"""
    s_cmp_eq_u32 s54, {NST-1}
    s_cbranch_scc1 {llast}
    s_cmp_lg_u32 s54, 1
    s_cbranch_scc1 {lnodrain}
    s_waitcnt vmcnt(0)
    """)
    a.lines.append(f"{lnodrain}:")
    a(f"""
    s_cmp_lg_u32 s54, 9
    s_cbranch_scc1 {lnopoll}
    buffer_load_dword v127, v126, s[{SRD_DBG}:{SRD_DBG+3}], 0 offen sc1
    """)
    a.lines.append(f"{lnopoll}:")
    a(f"""
    s_cmp_lg_u32 s54, 11
    s_cbranch_scc1 {lnochk}
    s_waitcnt vmcnt(0)
    v_readfirstlane_b32 s59, v127
    s_cmp_lt_u32 s59, 32
    s_cbranch_scc1 {lnochk}
    s_mov_b32 s57, 1
    """)
    y2_loads()
    a.lines.append(f"{lnochk}:")
    a(f"""
    s_waitcnt lgkmcnt(0)
    s_barrier                                      ; S_(s+1)
    s_add_u32 s55, s55, 32768
    s_and_b32 s55, s55, 0x1ffff
    s_cmp_eq_u32 s55, 0
    s_cselect_b32 s59, {(-98304) & 0xffffffff}, s56
    s_add_u32 s54, s54, 1
    v_add_u32 v{VA2}, s59, v{VA2}
    v_add_u32 v{VW2}, s59, v{VW2}
    """)
    g2_read(a, nxt, 0)
    g2_mfma(a, cur)
    a(f"s_branch {loop}")
    a.lines.append(f"{llast}:")
    a("s_waitcnt lgkmcnt(0)")
    g2_mfma(a, cur)
    stamp(a, 5)
    lgot, lspin, lgiveup = a.label("g2_got"), a.label("g2_spin"), a.label("g2_giveup")
    a(f"""
    s_cmp_eq_u32 s57, 1
    s_cbranch_scc1 {lgot}
    s_mov_b32 s60, 0
    """)
    a.lines.append(f"{lspin}:")
    a(f"""
    buffer_load_dword v127, v126, s[{SRD_DBG}:{SRD_DBG+3}], 0 offen sc1
    s_waitcnt vmcnt(0)
    v_readfirstlane_b32 s59, v127
    s_cmp_ge_u32 s59, 32
    s_cbranch_scc1 {lgiveup}
    s_sleep 4
    s_add_u32 s60, s60, 1
    s_cmp_lt_u32 s60, 0x40000
    s_cbranch_scc1 {lspin}
    """)
    a.lines.append(f"{lgiveup}:")
    y2_loads()
    a.lines.append(f"{lgot}:")
    def pr(r): return f"v[{r}:{r+1}]"
    K1, KL = 40, 42
    XF, SF, E, T = 44, 60, 24, 76
    a(f"""
    v_mov_b32 v{K1}, 1.0
    v_mov_b32 v{K1+1}, 1.0
    v_mov_b32 v{KL}, {hex(LOG2E | 0x80000000)}
    v_mov_b32 v{KL+1}, {hex(LOG2E | 0x80000000)}
    """)
    for k in range(8):
        a(f"v_pk_mul_f32 {pr(E+2*k)}, {pr(G_ACC+2*k)}, {pr(KL)}")
    for k in range(16):
        a(f"v_exp_f32 v{E+k}, v{E+k}")
    for k in range(8):
        a(f"v_pk_add_f32 {pr(E+2*k)}, {pr(E+2*k)}, {pr(K1)}")
    for k in range(16):
        a(f"v_rcp_f32 v{E+k}, v{E+k}")
    for k in range(8):
        a(f"v_pk_mul_f32 {pr(E+2*k)}, {pr(E+2*k)}, {pr(G_ACC+2*k)}")
    a("s_waitcnt vmcnt(0)")
    for k in range(8):
        a(f"v_lshlrev_b32 v{XF+2*k}, 16, v{VX+k}")
        a(f"v_and_b32 v{XF+2*k+1}, 0xffff0000, v{VX+k}")
    for k in range(8):
        a(f"v_pk_add_f32 {pr(SF+2*k)}, {pr(XF+2*k)}, {pr(VST)} op_sel_hi:[1,0] neg_lo:[0,1] neg_hi:[0,1]")
    for k in range(8):
        a(f"v_pk_mul_f32 {pr(SF+2*k)}, {pr(SF+2*k)}, {pr(VST)} op_sel:[0,1] op_sel_hi:[1,1]")
    for k in range(8):
        a(f"v_lshlrev_b32 v{T+2*k}, 16, v{VY+k}")
        a(f"v_and_b32 v{T+2*k+1}, 0xffff0000, v{VY+k}")
    for k in range(8):
        a(f"v_pk_mul_f32 {pr(SF+2*k)}, {pr(SF+2*k)}, {pr(T+2*k)}")
    for k in range(8):
        a(f"v_pk_fma_f32 {pr(E+2*k)}, {pr(E+2*k)}, {pr(SF+2*k)}, {pr(XF+2*k)}")
    for k in range(8):
        a(f"v_cvt_pk_bf16_f32 v{VX+k}, v{E+2*k}, v{E+2*k+1}")
    a(f"buffer_store_dwordx4 v[{VX}:{VX+3}], v{VOFF}, s[{SRD_OUT}:{SRD_OUT+3}], 0 offen")
    a(f"buffer_store_dwordx4 v[{VX+4}:{VX+7}], v{VOFF}, s[{SRD_OUT}:{SRD_OUT+3}], 0 offen offset:16")

def emit_back(a, wid):
    emit_back_setup(a, wid)
    lload, lend = a.label("bk_loader"), a.label("bk_end")
    a(f"""
    s_cmp_ge_u32 s{S_WAVE}, 4
    s_cbranch_scc1 {lload}
    """)
    emit_conv_compute(a)
    emit_gemm2_compute(a)
    a(f"s_branch {lend}")
    a.lines.append(f"{lload}:")
    emit_loader(a)
    a.lines.append(f"{lend}:")

def back_kernel():
    a = Asm()
    kernel_begin(a, "back_kernel")
    a("""
    s_cmp_ge_u32 s2, 256
    s_cbranch_scc1 L_back_end
    s_mov_b32 s3, s2
    """)
    stamp_begin(a)
    emit_back(a, "s3")
    stamp_end(a, 2)
    a.lines.append("L_back_end:")
    a("s_endpgm")
    return a.text(), kernel_desc("back_kernel", 176, nsgpr(64))
```

```python
class Asm:
    def __init__(self):
        self.lines = []
        self.nlabel = 0
    def __call__(self, s):
        for l in s.strip("\n").split("\n"):
            self.lines.append("    " + l.strip() if not l.strip().endswith(":") else l.strip())
    def label(self, base):
        self.nlabel += 1
        return f"L_{base}_{self.nlabel}"
    def text(self):
        return "\n".join(self.lines) + "\n"

KA = dict(q=0, k=8, v=16, shift=24, ssmk=32, ssmD=40, bx=48, w1=56, b1=64, w2=72, out=80, dbg=88, ws=96)

S, D, F = 2048, 512, 1792
WS_STATS = 0x0
WS_CS    = 0x8000
WS_BL    = 0xA000
WS_KVT   = 0x100000
WS_ACT   = 0x400000
WS_Y2    = 0xC00000
WS_STF   = 0x20000
WS_CSF   = 0x21000
WS_KVF   = 0x22000
WS_ACTF  = 0x23000
WS_Y2F   = 0x24000
WS_SIZE  = 0x10000000

LOG2E = 0x3FB8AA3B
LN2   = 0x3F317218
NEG2LN2 = 0xBFB17218

def srd(a, dst, base, nbytes):
    a(f"s_mov_b32 s{dst}, s{base}")
    a(f"s_mov_b32 s{dst+1}, s{base+1}")
    a(f"s_mov_b32 s{dst+2}, {nbytes}")
    a(f"s_mov_b32 s{dst+3}, 0x00020000")

def srd_off(a, dst, base, off, nbytes):
    a(f"s_add_u32 s{dst}, s{base}, {off}")
    a(f"s_addc_u32 s{dst+1}, s{base+1}, 0")
    a(f"s_mov_b32 s{dst+2}, {nbytes}")
    a(f"s_mov_b32 s{dst+3}, 0x00020000")

def kernel_begin(a, name):
    a.lines.append(f".globl {name}")
    a.lines.append(".p2align 8")
    a.lines.append(f".type {name},@function")
    a.lines.append(f"{name}:")

def kernel_desc(name, vgpr, sgpr, accum=None):
    if accum is None:
        accum = (vgpr + 3) // 4 * 4
    return f""".p2align 6
.amdhsa_kernel {name}
  .amdhsa_next_free_vgpr {vgpr}
  .amdhsa_next_free_sgpr {sgpr}
  .amdhsa_accum_offset {accum}
  .amdhsa_group_segment_fixed_size 0
  .amdhsa_kernarg_size 104
  .amdhsa_user_sgpr_count 2
  .amdhsa_user_sgpr_kernarg_segment_ptr 1
  .amdhsa_system_sgpr_workgroup_id_x 1
  .amdhsa_float_denorm_mode_32 3
.end_amdhsa_kernel
"""

def bf16_round(a, dst, src, tmp=None):
    a(f"v_cvt_pk_bf16_f32 v{dst}, v{src}, v{src}")
    a(f"v_and_b32 v{dst}, 0xffff0000, v{dst}")


WS_TIM = 0xF000000
INSTR = False
def stamp_begin(a):
    if not INSTR: return
    a("s_memrealtime s[64:65]")
    a("s_memtime s[66:67]")
def stamp(a, i):
    if not INSTR: return
    a(f"s_memtime s[{68+2*i}:{69+2*i}]")
def stamp_end(a, kidx, wg="s2"):
    if not INSTR: return
    a(f"""
    s_waitcnt vmcnt(0) lgkmcnt(0)
    s_memrealtime s[88:89]
    s_memtime s[90:91]
    s_load_dwordx2 s[92:93], s[0:1], {KA['ws']}
    s_waitcnt lgkmcnt(0)
    s_mov_b32 s94, {WS_SIZE}
    s_mov_b32 s95, 0x00020000
    v_mov_b32 v2, s64
    v_mov_b32 v3, s88
    s_sub_u32 s90, s90, s66
    v_mov_b32 v4, s90
    v_mov_b32 v5, 0
    """)
    for i in range(10):
        a(f"s_sub_u32 s{68+2*i}, s{68+2*i}, s66")
        a(f"v_mov_b32 v{6+i}, s{68+2*i}")
    a(f"""
    s_lshl_b32 s96, {wg}, 6
    s_add_u32 s96, s96, {WS_TIM + kidx*0x8000}
    v_mov_b32 v16, s96
    v_cmp_eq_u32 vcc, 0, v0
    s_and_saveexec_b64 s[98:99], vcc
    s_cbranch_execz L_tim_skip_{kidx}
    buffer_store_dwordx4 v[2:5], v16, s[92:95], 0 offen
    buffer_store_dwordx4 v[6:9], v16, s[92:95], 0 offen offset:16
    buffer_store_dwordx4 v[10:13], v16, s[92:95], 0 offen offset:32
    buffer_store_dwordx2 v[14:15], v16, s[92:95], 0 offen offset:48
    s_waitcnt vmcnt(0)
    """)
    a.lines.append(f"L_tim_skip_{kidx}:")
def nsgpr(n):
    return 102 if INSTR else n

def stamp_end_dbg(a, kidx, wg_sel=0):
    if not INSTR: return
    a(f"""
    s_waitcnt vmcnt(0) lgkmcnt(0)
    s_memrealtime s[88:89]
    s_memtime s[90:91]
    s_load_dwordx2 s[92:93], s[0:1], {KA['dbg']}
    s_waitcnt lgkmcnt(0)
    s_cmp_lg_u32 s2, {wg_sel}
    s_cbranch_scc1 L_timd_skip_{kidx}
    s_mov_b32 s94, 256
    s_mov_b32 s95, 0x00020000
    v_mov_b32 v2, s64
    v_mov_b32 v3, s88
    s_sub_u32 s90, s90, s66
    v_mov_b32 v4, s90
    v_mov_b32 v5, {kidx+1}
    """)
    for i in range(10):
        a(f"s_sub_u32 s{68+2*i}, s{68+2*i}, s66")
        a(f"v_mov_b32 v{6+i}, s{68+2*i}")
    a(f"""
    v_mov_b32 v16, 0
    v_cmp_eq_u32 vcc, 0, v0
    s_and_saveexec_b64 s[98:99], vcc
    s_cbranch_execz L_timd_skip_{kidx}
    buffer_store_dwordx4 v[2:5], v16, s[92:95], 0 offen
    buffer_store_dwordx4 v[6:9], v16, s[92:95], 0 offen offset:16
    buffer_store_dwordx4 v[10:13], v16, s[92:95], 0 offen offset:32
    buffer_store_dwordx2 v[14:15], v16, s[92:95], 0 offen offset:48
    s_waitcnt vmcnt(0)
    """)
    a.lines.append(f"L_timd_skip_{kidx}:")
DBGMODE = False
_stamp_end_ws = stamp_end
def stamp_end(a, kidx, wg="s2"):
    if DBGMODE: stamp_end_dbg(a, kidx)
    else: _stamp_end_ws(a, kidx, wg)
```

```python
from common import *
import common
from gemm1 import emit_wgmap_gemm1

def emit_prep2(a, j):
    W1L, SHL, CRED, KVL = 0, 65536, 69632, 0
    a(f"""
    s_load_dwordx4 s[4:7], s[0:1], {KA['q']}       ; q, k
    s_load_dwordx4 s[8:11], s[0:1], {KA['v']}      ; v, shift
    s_load_dwordx4 s[12:15], s[0:1], {KA['w1']}    ; w1, b1
    s_load_dwordx4 s[48:51], s[0:1], {KA['dbg']}
    v_and_b32 v1, 63, v0
    v_lshrrev_b32 v2, 6, v0
    s_nop 0
    v_readfirstlane_b32 s18, v2
    s_lshl_b32 s19, {j}, 6                         ; t0
    s_lshl_b32 s52, s18, 3
    s_add_u32 s52, s52, s19
    v_lshrrev_b32 v3, 3, v1                        ; l>>3
    v_and_b32 v4, 7, v1                            ; l&7
    v_lshlrev_b32 v5, 4, v4
    v_add_u32 v6, s52, v3
    v_lshl_add_u32 v6, v6, 10, v5                  ; x offset
    s_waitcnt lgkmcnt(0)
    """)
    srd(a, 20, 4, S*D*2)
    vX, vK, vV, vS = 8, 72, 116, 148
    for it in range(8):
        a(f"buffer_load_dwordx4 v[{vX+4*it}:{vX+4*it+3}], v6, s[20:23], 0 offen offset:{it*128}")
    srd(a, 36, 12, D*F*2)
    a(f"""
    s_cmp_lt_u32 {j}, 28
    s_cselect_b32 s38, s38, 0
    s_lshl_b32 s53, s18, 6
    v_add_u32 v7, s53, v3
    v_mul_u32_u24 v7, {F*2}, v7
    v_bfe_u32 v2, v1, 4, 1
    v_lshlrev_b32 v2, 2, v2
    v_xor_b32 v2, v2, v4
    v_lshl_add_u32 v7, v2, 4, v7
    s_lshl_b32 s53, {j}, 7
    s_lshl_b32 s54, s18, 13
    s_add_u32 s54, s54, {W1L}
    """)
    for it in range(8):
        a(f"s_add_u32 m0, s54, {1024*it}")
        a(f"s_add_u32 s55, s53, {8*F*2*it}")
        a(f"buffer_load_dwordx4 v7, s[36:39], s55 offen lds")
    srd(a, 24, 6, S*D*2)
    srd(a, 28, 8, S*D*2)
    srd(a, 32, 10, D*4*2)
    srd(a, 40, 14, F*2)
    srd(a, 44, 50, WS_SIZE)
    srd(a, 56, 48, 256)
    lnosh = a.label("pp_nosh")
    a(f"""
    s_cmp_ge_u32 s18, 4
    s_cbranch_scc1 {lnosh}
    s_lshl_b32 s53, s18, 10
    s_add_u32 m0, s53, {SHL}
    v_lshlrev_b32 v2, 4, v1
    buffer_load_dwordx4 v2, s[32:35], s53 offen lds
    """)
    a.lines.append(f"{lnosh}:")
    stamp(a, 0)
    lw4, lwd = a.label("pp_w4"), a.label("pp_wd")
    a(f"""
    s_cmp_ge_u32 s18, 4
    s_cbranch_scc1 {lw4}
    s_waitcnt vmcnt(9)
    s_branch {lwd}
    """)
    a.lines.append(f"{lw4}:")
    a("s_waitcnt vmcnt(8)")
    a.lines.append(f"{lwd}:")
    stamp(a, 1)
    A = 164
    a(f"v_mov_b32 v60, 0x3f803f80")
    for q in range(4):
        a(f"v_dot2_f32_bf16 v{A+q}, v{vX+q}, v60, 0")
        a(f"v_dot2_f32_bf16 v{A+4+q}, v{vX+q}, v{vX+q}, 0")
    for i in range(4, 32):
        a(f"v_dot2_f32_bf16 v{A+i%4}, v{vX+i}, v60, v{A+i%4}")
        a(f"v_dot2_f32_bf16 v{A+4+i%4}, v{vX+i}, v{vX+i}, v{A+4+i%4}")
    a("s_nop 2")
    a(f"""
    v_add_f32 v{A}, v{A}, v{A+1}
    v_add_f32 v{A+2}, v{A+2}, v{A+3}
    v_add_f32 v{A+4}, v{A+4}, v{A+5}
    v_add_f32 v{A+6}, v{A+6}, v{A+7}
    v_add_f32 v{A}, v{A}, v{A+2}
    v_add_f32 v{A+4}, v{A+4}, v{A+6}
    """)
    for mod in ("quad_perm:[1,0,3,2]", "quad_perm:[2,3,0,1]", "row_half_mirror"):
        a("s_nop 1")
        a(f"v_add_f32_dpp v{A}, v{A}, v{A} {mod} row_mask:0xf bank_mask:0xf")
        a(f"v_add_f32_dpp v{A+4}, v{A+4}, v{A+4} {mod} row_mask:0xf bank_mask:0xf")
    a(f"""
    v_mul_f32 v{A+1}, 0x3b000000, v{A}             ; mean
    v_mul_f32 v{A+4}, 0x3b000000, v{A+4}           ; E[x^2]
    v_fma_f32 v{A+4}, -v{A+1}, v{A+1}, v{A+4}      ; var
    v_max_f32 v{A+4}, 0, v{A+4}
    """)
    bf16_round(a, A+4, A+4)
    a(f"v_add_f32 v{A+4}, 0x3727c5ac, v{A+4}")
    bf16_round(a, A+4, A+4)
    a(f"v_sqrt_f32 v{A+4}, v{A+4}")
    a("s_nop 0")
    bf16_round(a, A+4, A+4)
    a(f"v_rcp_f32 v{A+3}, v{A+4}")
    bf16_round(a, A+2, A+1)
    a(f"""
    v_add_u32 v3, s52, v3
    v_lshlrev_b32 v3, 3, v3
    v_cmp_eq_u32 vcc, 0, v4
    s_and_saveexec_b64 s[60:61], vcc
    buffer_store_dwordx2 v[{A+2}:{A+3}], v3, s[44:47], 0 offen offset:{WS_STATS} sc1
    s_mov_b64 exec, s[60:61]
    """)
    a(f"""
    s_lshl_b32 s53, s52, 10
    v_lshl_add_u32 v2, v1, 4, s53
    v_subrev_u32 v3, 3072, v2
    s_movk_i32 s54, 0x1000
    """)
    for i in range(3):
        a(f"buffer_load_dwordx4 v[{vK+4*i}:{vK+4*i+3}], v3, s[24:27], 0 offen offset:{1024*i}")
    for i in range(8):
        so = "0" if i < 4 else "s54"
        a(f"buffer_load_dwordx4 v[{vK+12+4*i}:{vK+12+4*i+3}], v2, s[24:27], {so} offen offset:{1024*(i%4)}")
    for i in range(8):
        so = "0" if i < 4 else "s54"
        a(f"buffer_load_dwordx4 v[{vV+4*i}:{vV+4*i+3}], v2, s[28:31], {so} offen offset:{1024*(i%4)}")
    stamp(a, 2)
    a(f"""
    v_bfe_u32 v2, v1, 2, 2                         ; r
    v_bfe_u32 v3, v1, 4, 1                         ; dh16
    v_lshrrev_b32 v5, 5, v1                        ; h
    v_bfe_u32 v6, v1, 1, 1                         ; cc>>1
    v_lshl_add_u32 v6, v3, 1, v6
    v_lshrrev_b32 v7, 1, v2                        ; r>>1
    v_lshl_add_u32 v2, v5, 2, v2                   ; 4h + r
    v_lshlrev_b32 v2, 7, v2
    v_and_b32 v3, 1, v1
    v_lshl_add_u32 v2, v3, 3, v2                   ; + 8*(cc&1)
    s_lshl_b32 s53, s18, 13
    s_add_u32 s53, s53, {W1L}
    v_add_u32 v2, s53, v2
    v_lshl_add_u32 v3, v7, 2, v6
    v_lshl_add_u32 v8, v3, 4, v2
    v_xor_b32 v3, 4, v3
    v_lshl_add_u32 v9, v3, 4, v2
    v_mov_b32 v61, v60
    v_mov_b32 v62, v60
    v_mov_b32 v63, v60
    s_waitcnt vmcnt(20)
    """)
    FR = 10
    for s in range(4):
        for di in range(2):
            r = FR + 8*s + 4*di
            a(f"ds_read_b64_tr_b16 v[{r}:{r+1}], v{8+di} offset:{2048*s}")
            a(f"ds_read_b64_tr_b16 v[{r+2}:{r+3}], v{8+di} offset:{2048*s+1024}")
        if s == 1: a("s_waitcnt lgkmcnt(4)")
    C0 = 164
    a("s_waitcnt lgkmcnt(0)")
    for s in range(4):
        for di in range(2):
            r = FR + 8*s + 4*di
            src = "0" if s == 0 else f"v[{C0+16*di}:{C0+16*di+15}]"
            a(f"v_mfma_f32_32x32x16_bf16 v[{C0+16*di}:{C0+16*di+15}], v[{r}:{r+3}], v[60:63], {src}")
    a(f"""
    s_lshl_b32 s53, s18, 8
    s_add_u32 s53, s53, {CRED}
    v_lshl_add_u32 v3, v5, 4, s53
    s_mov_b32 s60, 1
    s_mov_b32 s61, 1
    s_nop 7
    s_nop 3
    s_mov_b64 exec, s[60:61]
    """)
    for di in range(2):
        for a4 in range(4):
            r = C0 + 16*di + 4*a4
            a(f"ds_write_b128 v3, v[{r}:{r+3}] offset:{128*di + 32*a4}")
    a(f"""
    s_mov_b64 exec, -1
    s_waitcnt vmcnt(19) lgkmcnt(0)
    s_barrier
    """)
    stamp(a, 3)
    lskip = a.label("pp_nocs")
    a(f"""
    s_cmp_lg_u32 s18, 0
    s_cbranch_scc1 {lskip}
    v_lshlrev_b32 v2, 2, v1
    v_add_u32 v2, {CRED}, v2
    s_lshl_b32 s53, {j}, 6
    v_add_lshl_u32 v5, v1, s53, 1
    buffer_load_ushort v16, v5, s[40:43], 0 offen
    """)
    for w in range(8):
        a(f"ds_read_b32 v{8+w}, v2 offset:{256*w}")
    a(f"""
    s_waitcnt lgkmcnt(0)
    v_add_f32 v8, v8, v9
    v_add_f32 v10, v10, v11
    v_add_f32 v12, v12, v13
    v_add_f32 v14, v14, v15
    v_add_f32 v8, v8, v10
    v_add_f32 v12, v12, v14
    v_add_f32 v8, v8, v12
    v_lshlrev_b32 v5, 1, v5
    s_cmp_lt_u32 {j}, 28
    s_cselect_b32 s46, s46, 0
    s_mov_b32 s53, {WS_CS}
    buffer_store_dword v8, v5, s[44:47], s53 offen sc1
    s_waitcnt vmcnt(1)
    v_lshlrev_b32 v16, 16, v16
    v_mul_f32 v16, {hex(LOG2E)}, v16
    s_mov_b32 s53, {WS_BL}
    buffer_store_dword v16, v5, s[44:47], s53 offen sc1
    s_mov_b32 s46, {WS_SIZE}
    s_lshl_b32 s53, {j}, 2
    v_mov_b32 v2, s53
    v_mov_b32 v3, 1
    s_waitcnt vmcnt(0)
    s_mov_b64 exec, 1
    buffer_store_dword v3, v2, s[56:59], 0 offen sc1
    s_mov_b64 exec, -1
    """)
    a.lines.append(f"{lskip}:")
    a(f"""
    v_lshlrev_b32 v2, 6, v1
    v_add_u32 v2, {SHL}, v2
    """)
    for i in range(4):
        a(f"ds_read_b128 v[{vS+4*i}:{vS+4*i+3}], v2 offset:{16*i}")
    a(f"""
    s_sub_u32 s53, 7, s18
    v_xor_b32 v3, s53, v4
    v_lshlrev_b32 v3, 4, v3
    v_lshl_add_u32 v3, v1, 10, v3
    s_waitcnt vmcnt(0) lgkmcnt(0)
    """)
    stamp(a, 4)
    KK, VV, SS, KV, OUT = 8, 30, 46, 54, 170
    def pr(r): return f"v[{r}:{r+1}]"
    for dw in range(4):
        for i in range(11):
            a(f"v_lshlrev_b32 v{KK+2*i}, 16, v{vK+4*i+dw}")
            a(f"v_and_b32 v{KK+2*i+1}, 0xffff0000, v{vK+4*i+dw}")
        c0, c1 = vS + 4*dw, vS + 4*dw + 2
        a(f"v_lshlrev_b32 v{SS+0}, 16, v{c0}")
        a(f"v_lshlrev_b32 v{SS+1}, 16, v{c1}")
        a(f"v_and_b32 v{SS+2}, 0xffff0000, v{c0}")
        a(f"v_and_b32 v{SS+3}, 0xffff0000, v{c1}")
        a(f"v_lshlrev_b32 v{SS+4}, 16, v{c0+1}")
        a(f"v_lshlrev_b32 v{SS+5}, 16, v{c1+1}")
        a(f"v_and_b32 v{SS+6}, 0xffff0000, v{c0+1}")
        a(f"v_and_b32 v{SS+7}, 0xffff0000, v{c1+1}")
        for tt in range(8):
            a(f"v_pk_mul_f32 {pr(KV+2*tt)}, {pr(KK+2*tt)}, {pr(SS+6)}")
        for i in range(8):
            a(f"v_lshlrev_b32 v{VV+2*i}, 16, v{vV+4*i+dw}")
            a(f"v_and_b32 v{VV+2*i+1}, 0xffff0000, v{vV+4*i+dw}")
        for tt in range(8):
            a(f"v_pk_fma_f32 {pr(KV+2*tt)}, {pr(KK+2*(tt+1))}, {pr(SS+4)}, {pr(KV+2*tt)}")
        for tt in range(8):
            a(f"v_pk_fma_f32 {pr(KV+2*tt)}, {pr(KK+2*(tt+2))}, {pr(SS+2)}, {pr(KV+2*tt)}")
        for tt in range(8):
            a(f"v_pk_fma_f32 {pr(KV+2*tt)}, {pr(KK+2*(tt+3))}, {pr(SS+0)}, {pr(KV+2*tt)}")
        for tt in range(8):
            a(f"v_pk_mul_f32 {pr(KV+2*tt)}, {pr(KV+2*tt)}, {pr(VV+2*tt)}")
        for ch in range(2):
            o = OUT + 4*ch + 8*(dw % 2)
            for q in range(4):
                a(f"v_cvt_pk_bf16_f32 v{o+q}, v{KV+2*(7-2*q)+ch}, v{KV+2*(6-2*q)+ch}")
            a(f"ds_write_b128 v3, v[{o}:{o+3}] offset:{KVL + (2*dw+ch)*128}")
    stamp(a, 5)
    a("s_waitcnt lgkmcnt(0)")
    a("s_barrier")
    stamp(a, 6)
    a(f"""
    v_lshrrev_b32 v3, 3, v1
    s_lshl_b32 s53, s18, 6
    v_add_u32 v3, s53, v3
    v_lshlrev_b32 v2, 7, v3
    v_lshlrev_b32 v3, 12, v3
    s_sub_u32 s53, 1984, s19
    s_lshl_b32 s53, s53, 1
    s_add_u32 s53, s53, {WS_KVT}
    v_lshl_add_u32 v3, v4, 4, v3
    """)
    for it in range(8):
        a(f"v_xor_b32 v5, {it}, v4")
        a(f"v_lshl_add_u32 v5, v5, 4, v2")
        a(f"ds_read_b128 v[{8+4*it}:{11+4*it}], v5 offset:{KVL + it*1024}")
    for it in range(8):
        a(f"s_waitcnt lgkmcnt({7-it})")
        a(f"buffer_store_dwordx4 v[{8+4*it}:{11+4*it}], v3, s[44:47], s53 offen")
        if it < 7:
            a(f"s_add_u32 s53, s53, {8*4096}")

ACC = 8
FP, FQ = 40, 52
VC, VB = 64, 96
VXA, VWA = 128, 132
VX0, VX1, VW = 134, 135, 136
VST = 138
VK = 140
VSO, VCO, VFL = 148, 149, 150
STG = 131072

def g1_piece(a, k):
    if k == 0:
        a(f"s_mov_b32 m0, s40")
        a(f"s_add_u32 s44, s42, {4*F*2}")
        a(f"buffer_load_dwordx4 v{VX0}, s[20:23], s41 offen lds")
    elif k == 1:
        a(f"s_add_u32 m0, s40, 1024")
        a(f"s_nop 0")
        a(f"buffer_load_dwordx4 v{VX1}, s[20:23], s41 offen lds")
    elif k == 2:
        a(f"s_add_u32 m0, s40, 16384")
        a(f"s_add_u32 s41, s41, 128")
        a(f"buffer_load_dwordx4 v{VW}, s[24:27], s42 offen lds")
    else:
        a(f"s_add_u32 m0, s40, 17408")
        a(f"s_add_u32 s42, s42, {64*F*2}")
        a(f"buffer_load_dwordx4 v{VW}, s[24:27], s44 offen lds")
        a(f"s_add_u32 s40, s40, 32768")
        a(f"s_and_b32 s40, s40, 0x1ffff")

def g1_read(a, dst, step):
    a(f"ds_read_b128 v[{dst}:{dst+3}], v{VXA+step}")
    for n in range(2):
        for j in range(2):
            r = dst + 4 + 4*n + 2*j
            a(f"ds_read_b64_tr_b16 v[{r}:{r+1}], v{VWA+n} offset:{4096*step + 1024*j}")

def g1_mfma(a, src, n):
    a(f"v_mfma_f32_32x32x16_bf16 v[{ACC+16*n}:{ACC+16*n+15}], v[{src+4+4*n}:{src+7+4*n}], v[{src}:{src+3}], v[{ACC+16*n}:{ACC+16*n+15}]")

def g1_operand_loads(a):
    a(f"buffer_load_dwordx2 v[{VST}:{VST+1}], v{VSO}, s[28:31], 0 offen offset:{WS_STATS} sc1")
    a(f"s_mov_b32 exec_hi, 0")
    a(f"buffer_load_dwordx4 v[{VC}:{VC+3}], v{VCO}, s[28:31], 0 offen sc1")
    a(f"s_mov_b64 exec, -1")

def g1_flags_ready(a, out_sreg_cmp_label_notready):
    a(f"""
    v_cmp_ne_u32 vcc, 0, v{VFL}
    s_nop 1
    s_and_b32 s52, vcc_lo, s51
    s_cmp_eq_u32 s52, s51
    s_cbranch_scc0 {out_sreg_cmp_label_notready}
    """)

def emit_gemm1_v2(a, wid, mapping=0):
    a(f"""
    s_load_dwordx2 s[4:5], s[0:1], {KA['q']}
    s_load_dwordx2 s[12:13], s[0:1], {KA['w1']}
    s_load_dwordx4 s[48:51], s[0:1], {KA['dbg']}
    v_and_b32 v1, 63, v0
    v_lshrrev_b32 v2, 6, v0
    s_nop 0
    v_readfirstlane_b32 s18, v2
    """)
    emit_wgmap_gemm1(a, wid, mapping)
    a(f"""
    v_lshrrev_b32 v2, 3, v1
    v_lshrrev_b32 v3, 4, v1
    v_and_b32 v4, 7, v1
    s_lshl_b32 s38, s32, 7
    s_lshl_b32 s39, s18, 4
    s_add_u32 s38, s38, s39
    v_add_u32 v5, s38, v2
    v_lshlrev_b32 v5, 10, v5
    v_xor_b32 v6, v4, v3
    v_lshl_add_u32 v{VX0}, v6, 4, v5
    v_xor_b32 v6, 4, v6
    v_lshl_add_u32 v{VX1}, v6, 4, v5
    v_add_u32 v{VX1}, 8192, v{VX1}
    s_lshl_b32 s39, s18, 3
    v_add_u32 v5, s39, v3
    v_mul_u32_u24 v5, {F*2}, v5
    v_and_b32 v6, 15, v1
    v_lshlrev_b32 v7, 2, v3
    v_xor_b32 v6, v6, v7
    v_lshl_add_u32 v5, v6, 4, v5
    s_lshl_b32 s39, s33, 8
    v_add_u32 v{VW}, s39, v5
    s_lshl_b32 s40, s18, 11
    s_mov_b32 s41, 0
    s_mov_b32 s42, 0
    s_waitcnt lgkmcnt(0)
    """)
    srd(a, 20, 4, S*D*2)
    srd(a, 24, 12, D*F*2)
    for st in range(3):
        for k in range(4): g1_piece(a, k)
    srd(a, 28, 50, WS_SIZE)
    srd(a, 44 + 12, 48, 256)
    a(f"""
    s_and_b32 s36, s18, 3                          ; tg
    s_lshr_b32 s37, s18, 2                         ; fh
    v_and_b32 v5, 31, v1
    v_lshrrev_b32 v6, 5, v1                        ; h
    s_lshl_b32 s38, s32, 7
    s_lshl_b32 s39, s36, 5
    s_add_u32 s38, s38, s39
    v_add_lshl_u32 v{VSO}, v5, s38, 3
    s_lshl_b32 s38, s33, 7
    s_lshl_b32 s39, s37, 6
    s_add_u32 s38, s38, s39
    s_lshl_b32 s38, s38, 2
    v_and_b32 v2, 15, v1
    v_lshl_add_u32 v2, v2, 4, s38
    v_bfe_u32 v3, v1, 4, 1
    v_mul_u32_u24 v3, {WS_BL - WS_CS}, v3
    v_add3_u32 v{VCO}, v2, v3, 0
    v_add_u32 v{VCO}, {WS_CS}, v{VCO}
    s_lshl_b32 s38, s32, 1
    s_lshl_b32 s51, 3, s38
    s_lshl_b32 s38, s33, 1
    s_lshl_b32 s39, 3, s38
    s_or_b32 s51, s51, s39
    v_lshrrev_b32 v2, 1, v5
    v_and_b32 v2, 7, v2
    v_xor_b32 v2, v2, v6
    s_lshl_b32 s38, s36, 12
    v_lshl_add_u32 v3, v5, 7, s38
    """)
    for s in range(4):
        a(f"v_xor_b32 v4, {2*s}, v2")
        a(f"v_lshl_add_u32 v{VXA+s}, v4, 4, v3")
    a(f"""
    v_bfe_u32 v2, v1, 2, 2
    v_bfe_u32 v3, v1, 4, 1
    v_and_b32 v4, 3, v1
    v_lshrrev_b32 v7, 1, v4
    v_lshl_add_u32 v7, v3, 1, v7
    v_and_b32 v4, 1, v4
    v_lshlrev_b32 v4, 3, v4
    v_lshl_add_u32 v3, v6, 3, v2
    v_lshl_add_u32 v4, v3, 8, v4
    v_add_u32 v4, 16384, v4
    s_lshl_b32 s38, s37, 1
    """)
    for n in range(2):
        a(f"s_add_u32 s39, s38, {n}")
        a(f"v_xor_b32 v3, s39, v2")
        a(f"v_lshl_add_u32 v3, v3, 2, v7")
        a(f"v_lshl_add_u32 v{VWA+n}, v3, 4, v4")
    for r in range(32):
        a(f"v_mov_b32 v{ACC+r}, 0")
    a(f"""
    v_and_b32 v2, 31, v1
    v_lshlrev_b32 v151, 2, v2
    s_mov_b32 s45, 0                               ; stage
    s_mov_b32 s46, 0
    s_mov_b32 s47, 32768
    s_mov_b32 s53, 0
    """)
    stamp(a, 0)
    a("""
    s_waitcnt vmcnt(8)
    s_barrier
    """)
    stamp(a, 1)
    g1_read(a, FP, 0)
    L = {x: a.label("g1_" + x) for x in ("loop", "tail", "t5", "t6", "t7", "bar", "notrdy", "last", "end6")}
    def step(cur, nxt, s, dma):
        g1_read(a, nxt, s+1)
        a("s_waitcnt lgkmcnt(5)")
        g1_mfma(a, cur, 0)
        if dma: g1_piece(a, s)
        g1_mfma(a, cur, 1)
    def stage_end(vm, dma3):
        a(f"s_waitcnt vmcnt({vm}) lgkmcnt(0)")
        a(f"""
        s_barrier
        s_add_u32 s46, s46, 32768
        s_and_b32 s46, s46, 0x1ffff
        s_cmp_eq_u32 s46, 0
        s_cselect_b32 s52, {(-98304) & 0xffffffff}, s47
        s_add_u32 s45, s45, 1
        """)
        for r in list(range(VXA, VXA+4)) + [VWA, VWA+1]:
            a(f"v_add_u32 v{r}, s52, v{r}")
        g1_read(a, FP, 0)
        g1_mfma(a, FQ, 0)
        g1_mfma(a, FQ, 1)
    a.lines.append(f"{L['loop']}:")
    step(FP, FQ, 0, True); step(FQ, FP, 1, True); step(FP, FQ, 2, True)
    g1_piece(a, 3)
    stage_end(8, False)
    a(f"""
    s_cmp_lt_u32 s45, 5
    s_cbranch_scc1 {L['loop']}
    """)
    a(f"buffer_load_dword v{VFL}, v151, s[56:59], 0 offen sc1")
    step(FP, FQ, 0, False); step(FQ, FP, 1, False); step(FP, FQ, 2, False)
    stage_end(5, False)
    step(FP, FQ, 0, False); step(FQ, FP, 1, False); step(FP, FQ, 2, False)
    stage_end(1, False)
    a("s_waitcnt vmcnt(0)")
    g1_flags_ready(a, L['notrdy'])
    a("s_mov_b32 s53, 1")
    g1_operand_loads(a)
    a.lines.append(f"{L['notrdy']}:")
    step(FP, FQ, 0, False); step(FQ, FP, 1, False); step(FP, FQ, 2, False)
    a("s_waitcnt lgkmcnt(0)")
    g1_mfma(a, FQ, 0); g1_mfma(a, FQ, 1)
    stamp(a, 2)
    lgot, lspin, lspun = a.label("g1_got"), a.label("g1_spin"), a.label("g1_spun")
    a(f"""
    s_cmp_eq_u32 s53, 1
    s_cbranch_scc1 {lgot}
    s_mov_b32 s54, 0
    """)
    a.lines.append(f"{lspin}:")
    a(f"""
    buffer_load_dword v{VFL}, v151, s[56:59], 0 offen sc1
    s_add_u32 s54, s54, 1
    s_cmp_ge_u32 s54, 0x40000
    s_cbranch_scc1 {lspun}
    s_waitcnt vmcnt(0)
    v_cmp_ne_u32 vcc, 0, v{VFL}
    s_nop 1
    s_and_b32 s52, vcc_lo, s51
    s_cmp_eq_u32 s52, s51
    s_cbranch_scc0 {lspin}
    """)
    a.lines.append(f"{lspun}:")
    g1_operand_loads(a)
    a.lines.append(f"{lgot}:")
    R = VK + 6
    a(f"""
    v_mov_b32 v{VK}, 1.0
    v_mov_b32 v{VK+1}, 1.0
    v_mov_b32 v{VK+2}, {hex(LN2)}
    v_mov_b32 v{VK+3}, {hex(LN2)}
    v_mov_b32 v{VK+4}, {hex(NEG2LN2)}
    v_mov_b32 v{VK+5}, {hex(NEG2LN2)}
    s_lshl_b32 s38, s32, 2
    s_add_u32 s38, s38, s36                        ; tb32
    s_mul_i32 s38, s38, 112
    s_lshl_b32 s39, s33, 3
    s_add_u32 s38, s38, s39
    s_lshl_b32 s39, s37, 2
    s_add_u32 s38, s38, s39
    s_lshl_b32 s38, s38, 10
    s_add_u32 s38, s38, {WS_ACT}
    s_lshl_b32 s39, s18, 9
    s_add_u32 s39, s39, {STG}
    v_lshl_add_u32 v3, v1, 4, s39
    v_lshrrev_b32 v4, 5, v1
    v_lshl_add_u32 v4, v4, 4, s39
    v_lshlrev_b32 v2, 4, v1
    s_waitcnt vmcnt(0)
    s_mov_b32 exec_hi, 0
    ds_write_b128 v3, v[{VC}:{VC+3}]
    s_mov_b64 exec, -1
    v_mul_f32 v{R}, {hex(LOG2E)}, v{VST+1}
    s_waitcnt lgkmcnt(0)
    """)
    for g in range(8):
        a(f"ds_read_b128 v[{VC+4*g}:{VC+4*g+3}], v4 offset:{32*g}")
        a(f"ds_read_b128 v[{VB+4*g}:{VB+4*g+3}], v4 offset:{256+32*g}")
    stamp(a, 3)
    def pr(r): return f"v[{r}:{r+1}]"
    T = 40
    OUT = 152
    for fr in range(4):
        prs = [(ACC + 8*fr + 2*p, VC + 8*fr + 2*p, VB + 8*fr + 2*p) for p in range(4)]
        Z = [T + 2*p for p in range(4)]
        E = [T + 8 + 2*p for p in range(4)]
        a(f"s_waitcnt lgkmcnt({12 - 4*fr})")
        for p, (ac, c, b) in enumerate(prs):
            a(f"v_pk_fma_f32 {pr(Z[p])}, {pr(VST)}, {pr(c)}, {pr(ac)} op_sel_hi:[0,1,1] neg_lo:[1,0,0] neg_hi:[1,0,0]")
        for p, (ac, c, b) in enumerate(prs):
            a(f"v_pk_fma_f32 {pr(Z[p])}, {pr(R)}, {pr(Z[p])}, {pr(b)} op_sel_hi:[0,1,1]")
        for p in range(4):
            a(f"v_exp_f32 v{E[p]}, v{Z[p]}")
            a(f"v_exp_f32 v{E[p]+1}, v{Z[p]+1}")
        for p in range(4):
            a(f"v_pk_add_f32 {pr(E[p])}, {pr(E[p])}, {pr(VK)}")
        for p in range(4):
            a(f"v_pk_fma_f32 {pr(E[p])}, {pr(E[p])}, {pr(E[p])}, {pr(VK)}")
        for p in range(4):
            a(f"v_rcp_f32 v{E[p]}, v{E[p]}")
            a(f"v_rcp_f32 v{E[p]+1}, v{E[p]+1}")
        for p in range(4):
            a(f"v_pk_fma_f32 {pr(E[p])}, {pr(E[p])}, {pr(VK+4)}, {pr(VK+2)}")
        for p in range(4):
            a(f"v_pk_mul_f32 {pr(Z[p])}, {pr(Z[p])}, {pr(E[p])}")
        o = OUT + 4*fr
        for p in range(4):
            a(f"v_cvt_pk_bf16_f32 v{o+p}, v{Z[p]}, v{Z[p]+1}")
        a(f"buffer_store_dwordx4 v[{o}:{o+3}], v2, s[28:31], s38 offen offset:{1024*fr}")

def front_kernel(mapping=0):
    a = Asm()
    kernel_begin(a, "front_kernel")
    a("""
    s_cmp_ge_u32 s2, 256
    s_cbranch_scc1 L_front_end
    """)
    stamp_begin(a)
    a("""
    s_cmp_ge_u32 s2, 32
    s_cbranch_scc1 L_front_gemm
    s_mov_b32 s3, s2
    """)
    emit_prep2(a, "s3")
    a("s_branch L_front_fin")
    a.lines.append("L_front_gemm:")
    a("s_sub_u32 s3, s2, 32")
    emit_gemm1_v2(a, "s3", mapping)
    a.lines.append("L_front_fin:")
    stamp_end(a, 0)
    a.lines.append("L_front_end:")
    a("s_endpgm")
    return a.text(), kernel_desc("front_kernel", 200, nsgpr(64))
```

```python
from common import *
import common
from gemm1 import emit_wgmap_gemm1

RING = 0
KT   = 131072
VT   = KT + 72*128
TR   = VT + 64*128
OPS  = TR + 64*128
CRED = OPS + 2048
FRONT_LDS = CRED + 2048

S_ID, S_WAVE = 2, 18
SRD_X, SRD_W1, SRD_WS, SRD_DBG = 20, 24, 28, 56

def emit_front_setup(a):
    a(f"""
    s_load_dwordx4 s[4:7], s[0:1], {KA['q']}       ; q, k
    s_load_dwordx4 s[8:11], s[0:1], {KA['v']}      ; v, shift
    s_load_dwordx4 s[12:15], s[0:1], {KA['w1']}    ; w1, b1
    s_load_dwordx4 s[48:51], s[0:1], {KA['dbg']}
    v_and_b32 v1, 63, v0
    v_lshrrev_b32 v2, 6, v0
    s_nop 0
    v_readfirstlane_b32 s{S_WAVE}, v2
    """)

def emit_kv_loads(a):
    a(f"""
    s_lshr_b32 s52, s2, 3                          ; tb64
    s_and_b32 s53, s2, 7                           ; cb64
    v_lshrrev_b32 v3, 3, v1
    v_and_b32 v4, 7, v1
    s_lshl_b32 s54, s52, 6
    s_lshl_b32 s55, s{S_WAVE}, 3
    s_add_u32 s54, s54, s55                        ; t0 + 8w
    v_add_u32 v5, s54, v3
    v_lshlrev_b32 v5, 10, v5
    v_lshl_add_u32 v5, v4, 4, v5
    s_lshl_b32 s55, s53, 7
    v_add_u32 v5, s55, v5                          ; v rows t0 + 8w + (l>>3)
    v_subrev_u32 v6, 8192, v5
    v_and_b32 v7, 31, v0
    v_lshlrev_b32 v7, 4, v7
    s_lshl_b32 s54, s53, 9
    v_add_u32 v7, s54, v7
    s_waitcnt lgkmcnt(0)
    """)
    srd(a, 36, 6, S*D*2)
    srd(a, 40, 8, S*D*2)
    srd(a, 44, 10, D*4*2)
    a(f"""
    s_lshl_b32 s54, s{S_WAVE}, 10
    s_add_u32 m0, s54, {KT}
    s_nop 0
    buffer_load_dwordx4 v6, s[36:39], 0 offen lds
    s_add_u32 m0, s54, {VT}
    s_cmp_lg_u32 s{S_WAVE}, 7
    buffer_load_dwordx4 v5, s[40:43], 0 offen lds
    """)
    l = a.label("kv_no9")
    a(f"""
    s_cbranch_scc1 {l}
    s_mov_b32 m0, {KT + 8192}
    s_nop 0
    buffer_load_dwordx4 v5, s[36:39], 0 offen lds
    """)
    a.lines.append(f"{l}:")
    a(f"buffer_load_dwordx4 v[108:111], v7, s[44:47], 0 offen")

def emit_kv_compute(a):
    K, V, SS, KV = 8, 24, 32, 40
    def pr(r): return f"v[{r}:{r+1}]"
    a(f"""
    v_and_b32 v2, 31, v0
    v_lshrrev_b32 v3, 5, v0                        ; g
    v_lshlrev_b32 v4, 9, v3
    v_lshl_add_u32 v4, v2, 2, v4                   ; g*4*128 + cp*4
    v_add_u32 v5, {KT + 5*128}, v4
    v_add_u32 v6, {VT}, v4
    """)
    for i in range(7):
        a(f"ds_read_b32 v{60+i}, v5 offset:{128*i}")
    for i in range(4):
        a(f"ds_read_b32 v{68+i}, v6 offset:{128*i}")
    a(f"""
    v_lshlrev_b32 v{SS+0}, 16, v108
    v_lshlrev_b32 v{SS+1}, 16, v110
    v_and_b32 v{SS+2}, 0xffff0000, v108
    v_and_b32 v{SS+3}, 0xffff0000, v110
    v_lshlrev_b32 v{SS+4}, 16, v109
    v_lshlrev_b32 v{SS+5}, 16, v111
    v_and_b32 v{SS+6}, 0xffff0000, v109
    v_and_b32 v{SS+7}, 0xffff0000, v111
    v_sub_u32 v3, 15, v3
    v_lshrrev_b32 v4, 1, v3
    v_and_b32 v5, 7, v2
    v_xor_b32 v4, v4, v5
    v_lshlrev_b32 v4, 4, v4
    v_and_b32 v3, 1, v3
    v_lshl_add_u32 v4, v3, 3, v4
    v_lshl_add_u32 v4, v2, 8, v4
    v_add_u32 v4, {TR}, v4
    s_waitcnt lgkmcnt(4)
    """)
    for i in range(7):
        a(f"v_lshlrev_b32 v{K+2*i}, 16, v{60+i}")
        a(f"v_and_b32 v{K+2*i+1}, 0xffff0000, v{60+i}")
    for tt in range(4):
        a(f"v_pk_mul_f32 {pr(KV+2*tt)}, {pr(K+2*tt)}, {pr(SS+6)}")
    a("s_waitcnt lgkmcnt(0)")
    for i in range(4):
        a(f"v_lshlrev_b32 v{V+2*i}, 16, v{68+i}")
        a(f"v_and_b32 v{V+2*i+1}, 0xffff0000, v{68+i}")
    for n, off in ((4, 1), (2, 2), (0, 3)):
        for tt in range(4):
            a(f"v_pk_fma_f32 {pr(KV+2*tt)}, {pr(K+2*(tt+off))}, {pr(SS+n)}, {pr(KV+2*tt)}")
    for tt in range(4):
        a(f"v_pk_mul_f32 {pr(KV+2*tt)}, {pr(KV+2*tt)}, {pr(V+2*tt)}")
    for ch in range(2):
        a(f"v_cvt_pk_bf16_f32 v{48+2*ch}, v{KV+6+ch}, v{KV+4+ch}")
        a(f"v_cvt_pk_bf16_f32 v{49+2*ch}, v{KV+2+ch}, v{KV+ch}")
        a(f"ds_write_b64 v4, v[{48+2*ch}:{49+2*ch}] offset:{128*ch}")
    stamp(a, 5)
    a("s_waitcnt lgkmcnt(0)")
    a("s_barrier")
    stamp(a, 6)
    a(f"""
    v_lshrrev_b32 v2, 3, v1
    s_lshl_b32 s54, s{S_WAVE}, 3
    v_add_u32 v2, s54, v2
    v_lshrrev_b32 v3, 1, v2
    v_and_b32 v3, 7, v3
    v_and_b32 v4, 7, v1
    v_xor_b32 v3, v3, v4
    v_lshlrev_b32 v3, 4, v3
    v_lshl_add_u32 v3, v2, 7, v3
    v_add_u32 v3, {TR}, v3
    ds_read_b128 v[8:11], v3
    s_lshr_b32 s52, s2, 3
    s_and_b32 s53, s2, 7
    s_lshl_b32 s53, s53, 6
    v_add_u32 v2, s53, v2
    v_lshlrev_b32 v2, 12, v2
    v_lshl_add_u32 v2, v4, 4, v2
    s_lshl_b32 s52, s52, 7
    s_sub_u32 s52, {WS_KVT + 2*1984}, s52
    s_waitcnt lgkmcnt(0)
    buffer_store_dwordx4 v[8:11], v2, s[{SRD_WS}:{SRD_WS+3}], s52 offen sc1
    """)

def emit_prep3(a, j):
    vX = 8
    w = f"s{S_WAVE}"
    a(f"""
    s_lshl_b32 s52, {j}, 6
    s_lshl_b32 s53, {w}, 3
    s_add_u32 s52, s52, s53                        ; tw
    v_lshrrev_b32 v3, 3, v1
    v_and_b32 v4, 7, v1
    v_lshlrev_b32 v5, 4, v4
    v_add_u32 v6, s52, v3
    v_lshl_add_u32 v6, v6, 10, v5
    """)
    for it in range(8):
        a(f"buffer_load_dwordx4 v[{vX+64+4*it}:{vX+64+4*it+3}], v6, s[{SRD_X}:{SRD_X+3}], 0 offen offset:{it*128}")
    a(f"""
    s_cmp_lt_u32 {j}, 28
    s_cselect_b32 s{SRD_W1+2}, s{SRD_W1+2}, 0
    s_lshl_b32 s53, {w}, 6
    v_add_u32 v7, s53, v3
    v_mul_u32_u24 v7, {F*2}, v7
    v_bfe_u32 v2, v1, 4, 1
    v_lshlrev_b32 v2, 2, v2
    v_xor_b32 v2, v2, v4
    v_lshl_add_u32 v7, v2, 4, v7
    s_lshl_b32 s53, {j}, 7
    s_lshl_b32 s54, {w}, 13
    """)
    for it in range(8):
        a(f"s_add_u32 m0, s54, {RING + 1024*it}")
        a(f"s_add_u32 s55, s53, {8*F*2*it}")
        a(f"buffer_load_dwordx4 v7, s[{SRD_W1}:{SRD_W1+3}], s55 offen lds")
    srd(a, 60, 14, F*2)
    a(f"""
    s_lshl_b32 s53, {j}, 6
    v_add_lshl_u32 v104, v1, s53, 1
    buffer_load_ushort v105, v104, s[60:63], 0 offen
    """)

def emit_prep3_compute(a, j):
    vX = 72
    w = f"s{S_WAVE}"
    A = 164
    a("s_waitcnt vmcnt(10)")
    stamp(a, 1)
    a(f"v_mov_b32 v60, 0x3f803f80")
    for q in range(4):
        a(f"v_dot2_f32_bf16 v{A+q}, v{vX+q}, v60, 0")
        a(f"v_dot2_f32_bf16 v{A+4+q}, v{vX+q}, v{vX+q}, 0")
    for i in range(4, 32):
        a(f"v_dot2_f32_bf16 v{A+i%4}, v{vX+i}, v60, v{A+i%4}")
        a(f"v_dot2_f32_bf16 v{A+4+i%4}, v{vX+i}, v{vX+i}, v{A+4+i%4}")
    a("s_nop 2")
    a(f"""
    v_add_f32 v{A}, v{A}, v{A+1}
    v_add_f32 v{A+2}, v{A+2}, v{A+3}
    v_add_f32 v{A+4}, v{A+4}, v{A+5}
    v_add_f32 v{A+6}, v{A+6}, v{A+7}
    v_add_f32 v{A}, v{A}, v{A+2}
    v_add_f32 v{A+4}, v{A+4}, v{A+6}
    """)
    for mod in ("quad_perm:[1,0,3,2]", "quad_perm:[2,3,0,1]", "row_half_mirror"):
        a("s_nop 1")
        a(f"v_add_f32_dpp v{A}, v{A}, v{A} {mod} row_mask:0xf bank_mask:0xf")
        a(f"v_add_f32_dpp v{A+4}, v{A+4}, v{A+4} {mod} row_mask:0xf bank_mask:0xf")
    a(f"""
    v_mul_f32 v{A+1}, 0x3b000000, v{A}
    v_mul_f32 v{A+4}, 0x3b000000, v{A+4}
    v_fma_f32 v{A+4}, -v{A+1}, v{A+1}, v{A+4}
    v_max_f32 v{A+4}, 0, v{A+4}
    """)
    bf16_round(a, A+4, A+4)
    a(f"v_add_f32 v{A+4}, 0x3727c5ac, v{A+4}")
    bf16_round(a, A+4, A+4)
    a(f"v_sqrt_f32 v{A+4}, v{A+4}")
    a("s_nop 0")
    bf16_round(a, A+4, A+4)
    a(f"v_rcp_f32 v{A+3}, v{A+4}")
    bf16_round(a, A+2, A+1)
    a(f"""
    v_lshrrev_b32 v3, 3, v1
    v_and_b32 v4, 7, v1
    s_lshl_b32 s52, {j}, 6
    s_lshl_b32 s53, {w}, 3
    s_add_u32 s52, s52, s53
    v_add_u32 v3, s52, v3
    v_lshlrev_b32 v3, 3, v3
    v_cmp_eq_u32 vcc, 0, v4
    s_and_saveexec_b64 s[60:61], vcc
    buffer_store_dwordx2 v[{A+2}:{A+3}], v3, s[{SRD_WS}:{SRD_WS+3}], 0 offen offset:{WS_STATS} sc1
    s_mov_b64 exec, s[60:61]
    v_bfe_u32 v2, v1, 2, 2
    v_bfe_u32 v3, v1, 4, 1
    v_lshrrev_b32 v5, 5, v1
    v_bfe_u32 v6, v1, 1, 1
    v_lshl_add_u32 v6, v3, 1, v6
    v_lshrrev_b32 v7, 1, v2
    v_lshl_add_u32 v2, v5, 2, v2
    v_lshlrev_b32 v2, 7, v2
    v_and_b32 v3, 1, v1
    v_lshl_add_u32 v2, v3, 3, v2
    s_lshl_b32 s53, {w}, 13
    v_add_u32 v2, s53, v2
    v_lshl_add_u32 v3, v7, 2, v6
    v_lshl_add_u32 v8, v3, 4, v2
    v_xor_b32 v3, 4, v3
    v_lshl_add_u32 v9, v3, 4, v2
    v_mov_b32 v61, v60
    v_mov_b32 v62, v60
    v_mov_b32 v63, v60
    s_waitcnt vmcnt(3)
    """)
    FR = 10
    for s in range(4):
        for di in range(2):
            r = FR + 8*s + 4*di
            a(f"ds_read_b64_tr_b16 v[{r}:{r+1}], v{8+di} offset:{RING + 2048*s}")
            a(f"ds_read_b64_tr_b16 v[{r+2}:{r+3}], v{8+di} offset:{RING + 2048*s+1024}")
        if s == 1: a("s_waitcnt lgkmcnt(4)")
    C0 = 164
    a("s_waitcnt lgkmcnt(0)")
    for s in range(4):
        for di in range(2):
            r = FR + 8*s + 4*di
            src = "0" if s == 0 else f"v[{C0+16*di}:{C0+16*di+15}]"
            a(f"v_mfma_f32_32x32x16_bf16 v[{C0+16*di}:{C0+16*di+15}], v[{r}:{r+3}], v[60:63], {src}")
    a(f"""
    s_lshl_b32 s53, {w}, 8
    s_add_u32 s53, s53, {CRED}
    v_lshl_add_u32 v3, v5, 4, s53
    s_mov_b32 s60, 1
    s_mov_b32 s61, 1
    s_nop 7
    s_nop 3
    s_mov_b64 exec, s[60:61]
    """)
    for di in range(2):
        for a4 in range(4):
            r = C0 + 16*di + 4*a4
            a(f"ds_write_b128 v3, v[{r}:{r+3}] offset:{128*di + 32*a4}")
    a(f"""
    s_mov_b64 exec, -1
    s_waitcnt vmcnt(0) lgkmcnt(0)
    s_barrier
    """)
    stamp(a, 2)
    lskip = a.label("pp_nocs")
    a(f"""
    s_cmp_lg_u32 {w}, 0
    s_cbranch_scc1 {lskip}
    v_lshlrev_b32 v2, 2, v1
    v_add_u32 v2, {CRED}, v2
    """)
    for ww in range(8):
        a(f"ds_read_b32 v{8+ww}, v2 offset:{256*ww}")
    a(f"""
    v_lshlrev_b32 v16, 16, v105
    v_mul_f32 v16, {hex(LOG2E)}, v16
    v_lshlrev_b32 v5, 1, v104
    s_cmp_lt_u32 {j}, 28
    s_cselect_b32 s{SRD_WS+2}, s{SRD_WS+2}, 0
    s_mov_b32 s53, {WS_BL}
    buffer_store_dword v16, v5, s[{SRD_WS}:{SRD_WS+3}], s53 offen sc1
    s_waitcnt lgkmcnt(0)
    v_add_f32 v8, v8, v9
    v_add_f32 v10, v10, v11
    v_add_f32 v12, v12, v13
    v_add_f32 v14, v14, v15
    v_add_f32 v8, v8, v10
    v_add_f32 v12, v12, v14
    v_add_f32 v8, v8, v12
    s_mov_b32 s53, {WS_CS}
    buffer_store_dword v8, v5, s[{SRD_WS}:{SRD_WS+3}], s53 offen sc1
    s_mov_b32 s{SRD_WS+2}, {WS_SIZE}
    s_lshl_b32 s53, {j}, 2
    v_mov_b32 v2, s53
    v_mov_b32 v3, 1
    s_waitcnt vmcnt(0)
    s_mov_b64 exec, 1
    buffer_store_dword v3, v2, s[{SRD_DBG}:{SRD_DBG+3}], 0 offen sc1
    s_mov_b64 exec, -1
    """)
    a.lines.append(f"{lskip}:")
    stamp(a, 3)

ACC = 8
FP, FQ = 40, 52
VC, VB = 64, 96
VXA, VWA = 128, 132
VX0, VX1, VW = 134, 135, 136
VST = 138
VK = 140
VOPS, VFL, VFO = 148, 149, 150

def g1_piece(a, k):
    if k == 0:
        a(f"s_mov_b32 m0, s40")
        a(f"s_add_u32 s44, s42, {4*F*2}")
        a(f"buffer_load_dwordx4 v{VX0}, s[{SRD_X}:{SRD_X+3}], s41 offen lds")
    elif k == 1:
        a(f"s_add_u32 m0, s40, 1024")
        a(f"s_nop 0")
        a(f"buffer_load_dwordx4 v{VX1}, s[{SRD_X}:{SRD_X+3}], s41 offen lds")
    elif k == 2:
        a(f"s_add_u32 m0, s40, 16384")
        a(f"s_add_u32 s41, s41, 128")
        a(f"buffer_load_dwordx4 v{VW}, s[{SRD_W1}:{SRD_W1+3}], s42 offen lds")
    else:
        a(f"s_add_u32 m0, s40, 17408")
        a(f"s_add_u32 s42, s42, {64*F*2}")
        a(f"buffer_load_dwordx4 v{VW}, s[{SRD_W1}:{SRD_W1+3}], s44 offen lds")
        a(f"s_add_u32 s40, s40, 32768")
        a(f"s_and_b32 s40, s40, 0x1ffff")

def g1_read(a, dst, step):
    a(f"ds_read_b128 v[{dst}:{dst+3}], v{VXA+step}")
    for n in range(2):
        for j in range(2):
            r = dst + 4 + 4*n + 2*j
            a(f"ds_read_b64_tr_b16 v[{r}:{r+1}], v{VWA+n} offset:{4096*step + 1024*j}")

def g1_mfma(a, src, n):
    a(f"v_mfma_f32_32x32x16_bf16 v[{ACC+16*n}:{ACC+16*n+15}], v[{src+4+4*n}:{src+7+4*n}], v[{src}:{src+3}], v[{ACC+16*n}:{ACC+16*n+15}]")

def emit_gemm1_loads(a, wid, mapping):
    emit_wgmap_gemm1(a, wid, mapping)
    w = f"s{S_WAVE}"
    a(f"""
    v_lshrrev_b32 v2, 3, v1
    v_lshrrev_b32 v3, 4, v1
    v_and_b32 v4, 7, v1
    s_lshl_b32 s38, s32, 7
    s_lshl_b32 s39, {w}, 4
    s_add_u32 s38, s38, s39
    v_add_u32 v5, s38, v2
    v_lshlrev_b32 v5, 10, v5
    v_xor_b32 v6, v4, v3
    v_lshl_add_u32 v{VX0}, v6, 4, v5
    v_xor_b32 v6, 4, v6
    v_lshl_add_u32 v{VX1}, v6, 4, v5
    v_add_u32 v{VX1}, 8192, v{VX1}
    s_lshl_b32 s39, {w}, 3
    v_add_u32 v5, s39, v3
    v_mul_u32_u24 v5, {F*2}, v5
    v_and_b32 v6, 15, v1
    v_lshlrev_b32 v7, 2, v3
    v_xor_b32 v6, v6, v7
    v_lshl_add_u32 v5, v6, 4, v5
    s_lshl_b32 s39, s33, 8
    v_add_u32 v{VW}, s39, v5
    s_lshl_b32 s40, {w}, 11
    s_mov_b32 s41, 0
    s_mov_b32 s42, 0
    """)
    for st in range(3):
        for k in range(4): g1_piece(a, k)

def g1_operand_dma(a):
    a(f"""
    s_mov_b32 m0, {OPS}
    s_lshl_b32 s52, s32, 10
    s_add_u32 s52, s52, {WS_STATS}
    v_lshlrev_b32 v2, 4, v1
    buffer_load_dwordx4 v2, s[{SRD_WS}:{SRD_WS+3}], s52 offen sc1 lds
    s_mov_b32 m0, {OPS + 1024}
    s_nop 0
    buffer_load_dwordx4 v{VOPS}, s[{SRD_WS}:{SRD_WS+3}], 0 offen sc1 lds
    """)

def g1_check(a, lnot):
    a(f"""
    v_cmp_ne_u32 vcc, 0, v{VFL}
    s_nop 1
    s_and_b32 s52, vcc_lo, s51
    s_cmp_eq_u32 s52, s51
    s_cbranch_scc0 {lnot}
    """)

def emit_gemm1_main(a):
    w = f"s{S_WAVE}"
    a(f"""
    s_and_b32 s36, {w}, 3                          ; tg
    s_lshr_b32 s37, {w}, 2                         ; fh
    v_and_b32 v5, 31, v1
    v_lshrrev_b32 v6, 5, v1                        ; h
    s_lshl_b32 s38, s33, 9
    v_lshl_add_u32 v2, v5, 4, s38
    v_mul_u32_u24 v3, {WS_BL - WS_CS}, v6
    v_add3_u32 v{VOPS}, v2, v3, 0
    v_add_u32 v{VOPS}, {WS_CS}, v{VOPS}
    s_lshl_b32 s38, s32, 1
    s_lshl_b32 s51, 3, s38
    s_lshl_b32 s38, s33, 1
    s_lshl_b32 s39, 3, s38
    s_or_b32 s51, s51, s39
    v_lshlrev_b32 v{VFO}, 2, v5
    v_lshrrev_b32 v2, 1, v5
    v_and_b32 v2, 7, v2
    v_xor_b32 v2, v2, v6
    s_lshl_b32 s38, s36, 12
    v_lshl_add_u32 v3, v5, 7, s38
    """)
    for s in range(4):
        a(f"v_xor_b32 v4, {2*s}, v2")
        a(f"v_lshl_add_u32 v{VXA+s}, v4, 4, v3")
    a(f"""
    v_bfe_u32 v2, v1, 2, 2
    v_bfe_u32 v3, v1, 4, 1
    v_and_b32 v4, 3, v1
    v_lshrrev_b32 v7, 1, v4
    v_lshl_add_u32 v7, v3, 1, v7
    v_and_b32 v4, 1, v4
    v_lshlrev_b32 v4, 3, v4
    v_lshl_add_u32 v3, v6, 3, v2
    v_lshl_add_u32 v4, v3, 8, v4
    v_add_u32 v4, 16384, v4
    s_lshl_b32 s38, s37, 1
    """)
    for n in range(2):
        a(f"s_add_u32 s39, s38, {n}")
        a(f"v_xor_b32 v3, s39, v2")
        a(f"v_lshl_add_u32 v3, v3, 2, v7")
        a(f"v_lshl_add_u32 v{VWA+n}, v3, 4, v4")
    for r in range(32):
        a(f"v_mov_b32 v{ACC+r}, 0")
    a(f"""
    s_mov_b32 s45, 0
    s_mov_b32 s46, 0
    s_mov_b32 s47, 32768
    s_mov_b32 s53, 0
    """)
    stamp(a, 8)
    a(f"""
    s_waitcnt vmcnt(9)
    s_barrier
    """)
    stamp(a, 1)
    g1_read(a, FP, 0)
    L = {x: a.label("g1_" + x) for x in ("loop", "nof1", "n1", "nof2", "got", "spin", "spun", "wait")}
    def step(cur, nxt, s, dma):
        g1_read(a, nxt, s+1)
        a("s_waitcnt lgkmcnt(5)")
        g1_mfma(a, cur, 0)
        if dma: g1_piece(a, s)
        g1_mfma(a, cur, 1)
    def stage_end(vm):
        a(f"s_waitcnt vmcnt({vm}) lgkmcnt(0)")
        a(f"""
        s_barrier
        s_add_u32 s46, s46, 32768
        s_and_b32 s46, s46, 0x1ffff
        s_cmp_eq_u32 s46, 0
        s_cselect_b32 s52, {(-98304) & 0xffffffff}, s47
        s_add_u32 s45, s45, 1
        """)
        for r in list(range(VXA, VXA+4)) + [VWA, VWA+1]:
            a(f"v_add_u32 v{r}, s52, v{r}")
        g1_read(a, FP, 0)
        g1_mfma(a, FQ, 0)
        g1_mfma(a, FQ, 1)
    def three(dma):
        step(FP, FQ, 0, dma); step(FQ, FP, 1, dma); step(FP, FQ, 2, dma)
    a.lines.append(f"{L['loop']}:")
    three(True)
    g1_piece(a, 3)
    stage_end(8)
    a(f"""
    s_cmp_lt_u32 s45, 5
    s_cbranch_scc1 {L['loop']}
    """)
    a(f"""
    s_cmp_lg_u32 {w}, 0
    s_cbranch_scc1 {L['nof1']}
    buffer_load_dword v{VFL}, v{VFO}, s[{SRD_DBG}:{SRD_DBG+3}], 0 offen sc1
    """)
    a.lines.append(f"{L['nof1']}:")
    three(False)
    lw0, lwd = a.label("g1_w0"), a.label("g1_wd")
    a(f"""
    s_cmp_eq_u32 {w}, 0
    s_cbranch_scc1 {lw0}
    s_waitcnt vmcnt(4)
    s_branch {lwd}
    """)
    a.lines.append(f"{lw0}:")
    a("s_waitcnt vmcnt(5)")
    a.lines.append(f"{lwd}:")
    stage_end(63)
    three(False)
    stage_end(0)
    a(f"""
    s_cmp_lg_u32 {w}, 0
    s_cbranch_scc1 {L['nof2']}
    """)
    g1_check(a, L['n1'])
    a("s_mov_b32 s53, 1")
    g1_operand_dma(a)
    a(f"s_branch {L['nof2']}")
    a.lines.append(f"{L['n1']}:")
    a(f"buffer_load_dword v{VFL}, v{VFO}, s[{SRD_DBG}:{SRD_DBG+3}], 0 offen sc1")
    a.lines.append(f"{L['nof2']}:")
    three(False)
    a("s_waitcnt lgkmcnt(0)")
    g1_mfma(a, FQ, 0); g1_mfma(a, FQ, 1)
    stamp(a, 2)
    a(f"""
    s_cmp_lg_u32 {w}, 0
    s_cbranch_scc1 {L['wait']}
    s_cmp_eq_u32 s53, 1
    s_cbranch_scc1 {L['got']}
    s_mov_b32 s54, 0
    """)
    a.lines.append(f"{L['spin']}:")
    a("s_waitcnt vmcnt(0)")
    g1_check(a, "L_g1_again")
    a(f"s_branch {L['spun']}")
    a.lines.append("L_g1_again:")
    a(f"""
    s_sleep 2
    buffer_load_dword v{VFL}, v{VFO}, s[{SRD_DBG}:{SRD_DBG+3}], 0 offen sc1
    s_add_u32 s54, s54, 1
    s_cmp_lt_u32 s54, 0x40000
    s_cbranch_scc1 {L['spin']}
    """)
    a.lines.append(f"{L['spun']}:")
    g1_operand_dma(a)
    a.lines.append(f"{L['got']}:")
    a("s_waitcnt vmcnt(0)")
    a.lines.append(f"{L['wait']}:")
    R = VK + 6
    a(f"""
    v_mov_b32 v{VK}, 1.0
    v_mov_b32 v{VK+1}, 1.0
    v_mov_b32 v{VK+2}, {hex(LN2)}
    v_mov_b32 v{VK+3}, {hex(LN2)}
    v_mov_b32 v{VK+4}, {hex(NEG2LN2)}
    v_mov_b32 v{VK+5}, {hex(NEG2LN2)}
    s_lshl_b32 s38, s32, 2
    s_add_u32 s38, s38, s36                        ; tb32
    s_mul_i32 s38, s38, 112
    s_lshl_b32 s39, s33, 3
    s_add_u32 s38, s38, s39
    s_lshl_b32 s39, s37, 2
    s_add_u32 s38, s38, s39
    s_lshl_b32 s38, s38, 10
    s_add_u32 s38, s38, {WS_ACT}
    v_and_b32 v5, 31, v1
    s_lshl_b32 s39, s36, 8
    v_lshl_add_u32 v3, v5, 3, s39
    v_add_u32 v3, {OPS}, v3
    v_lshrrev_b32 v4, 5, v1
    s_lshl_b32 s39, s37, 8
    v_lshl_add_u32 v4, v4, 4, s39
    v_add_u32 v4, {OPS + 1024}, v4
    v_lshlrev_b32 v2, 4, v1
    s_barrier
    ds_read_b64 v[{VST}:{VST+1}], v3
    """)
    for g in range(7):
        a(f"ds_read_b128 v[{VC+4*g}:{VC+4*g+3}], v4 offset:{32*g}")
        a(f"ds_read_b128 v[{VB+4*g}:{VB+4*g+3}], v4 offset:{512+32*g}")
    a("s_waitcnt lgkmcnt(14)")
    a(f"v_mul_f32 v{R}, {hex(LOG2E)}, v{VST+1}")
    a(f"ds_read_b128 v[{VC+28}:{VC+31}], v4 offset:{32*7}")
    a(f"ds_read_b128 v[{VB+28}:{VB+31}], v4 offset:{512+32*7}")
    stamp(a, 3)
    def pr(r): return f"v[{r}:{r+1}]"
    T = 40
    OUT = 152
    for fr in range(4):
        prs = [(ACC + 8*fr + 2*p, VC + 8*fr + 2*p, VB + 8*fr + 2*p) for p in range(4)]
        Z = [T + 2*p for p in range(4)]
        E = [T + 8 + 2*p for p in range(4)]
        a(f"s_waitcnt lgkmcnt({12 - 4*fr})")
        for p, (ac, c, b) in enumerate(prs):
            a(f"v_pk_fma_f32 {pr(Z[p])}, {pr(VST)}, {pr(c)}, {pr(ac)} op_sel_hi:[0,1,1] neg_lo:[1,0,0] neg_hi:[1,0,0]")
        for p, (ac, c, b) in enumerate(prs):
            a(f"v_pk_fma_f32 {pr(Z[p])}, {pr(R)}, {pr(Z[p])}, {pr(b)} op_sel_hi:[0,1,1]")
        for p in range(4):
            a(f"v_exp_f32 v{E[p]}, v{Z[p]}")
            a(f"v_exp_f32 v{E[p]+1}, v{Z[p]+1}")
        for p in range(4):
            a(f"v_pk_add_f32 {pr(E[p])}, {pr(E[p])}, {pr(VK)}")
        for p in range(4):
            a(f"v_pk_fma_f32 {pr(E[p])}, {pr(E[p])}, {pr(E[p])}, {pr(VK)}")
        for p in range(4):
            a(f"v_rcp_f32 v{E[p]}, v{E[p]}")
            a(f"v_rcp_f32 v{E[p]+1}, v{E[p]+1}")
        for p in range(4):
            a(f"v_pk_fma_f32 {pr(E[p])}, {pr(E[p])}, {pr(VK+4)}, {pr(VK+2)}")
        for p in range(4):
            a(f"v_pk_mul_f32 {pr(Z[p])}, {pr(Z[p])}, {pr(E[p])}")
        o = OUT + 4*fr
        for p in range(4):
            a(f"v_cvt_pk_bf16_f32 v{o+p}, v{Z[p]}, v{Z[p]+1}")
        a(f"buffer_store_dwordx4 v[{o}:{o+3}], v2, s[{SRD_WS}:{SRD_WS+3}], s38 offen offset:{1024*fr}")

def emit_front(a, mapping=0):
    emit_front_setup(a)
    emit_kv_loads(a)
    srd(a, SRD_X, 4, S*D*2)
    srd(a, SRD_W1, 12, D*F*2)
    srd(a, SRD_WS, 50, WS_SIZE)
    srd(a, SRD_DBG, 48, 256)
    lg, lkv, lg2, lfin = [a.label(x) for x in ("fr_gemm", "fr_kv", "fr_gemm2", "fr_fin")]
    a(f"""
    s_cmp_ge_u32 s2, 32
    s_cbranch_scc1 {lg}
    s_mov_b32 s3, s2
    s_mov_b32 s19, 0
    """)
    emit_prep3(a, "s3")
    a("s_waitcnt vmcnt(17)")
    a(f"s_branch {lkv}")
    a.lines.append(f"{lg}:")
    a("s_sub_u32 s3, s2, 32")
    a("s_mov_b32 s19, 1")
    emit_gemm1_loads(a, "s3", mapping)
    a("s_waitcnt vmcnt(12)")
    a.lines.append(f"{lkv}:")
    stamp(a, 0)
    a("s_barrier")
    stamp(a, 4)
    emit_kv_compute(a)
    stamp(a, 7)
    a(f"""
    s_cmp_eq_u32 s19, 1
    s_cbranch_scc1 {lg2}
    """)
    emit_prep3_compute(a, "s3")
    a(f"s_branch {lfin}")
    a.lines.append(f"{lg2}:")
    emit_gemm1_main(a)
    a.lines.append(f"{lfin}:")

def front2_kernel(mapping=0):
    a = Asm()
    kernel_begin(a, "front_kernel")
    a("""
    s_cmp_ge_u32 s2, 256
    s_cbranch_scc1 L_front_end
    """)
    stamp_begin(a)
    emit_front(a, mapping)
    stamp_end(a, 0)
    a.lines.append("L_front_end:")
    a("s_endpgm")
    return a.text(), kernel_desc("front_kernel", 200, nsgpr(64))
```

```python
from common import *
import common
from gemm1 import emit_wgmap_gemm1

RING = 0
KT   = 131072
VT   = KT + 72*128
TR   = VT + 64*128
OPS  = TR + 64*128
CRED = OPS + 2048
FRONT_LDS = CRED + 2048

ROTMASK = 7
DIAG_NODMA = False
DIAG_NOMFMA = False
DIAG_NODS = False
S_WAVE, S_ROLE, S_N = 18, 19, 62
SRD_X, SRD_W1, SRD_WS, SRD_DBG = 20, 24, 28, 56
VN = 151

def nonce_publish(a):
    l = a.label("nonce")
    a(f"""
    s_lshl_b32 s52, s2, 3
    s_add_u32 s52, s52, s{S_WAVE}
    s_cmp_lg_u32 s52, 1
    s_cbranch_scc1 {l}
    s_memrealtime s[52:53]
    s_waitcnt lgkmcnt(0)
    s_or_b32 s52, s52, 1
    v_mov_b32 v2, s52
    v_mov_b32 v3, 0
    s_mov_b64 exec, 1
    buffer_store_dword v2, v3, s[{SRD_DBG}:{SRD_DBG+3}], 0 offen sc1
    s_mov_b64 exec, -1
    """)
    a.lines.append(f"{l}:")

def nonce_load(a):
    a(f"v_mov_b32 v2, 0")
    a(f"buffer_load_dword v{VN}, v2, s[{SRD_DBG}:{SRD_DBG+3}], 0 offen sc1")

def nonce_get(a):
    lspin, ldone = a.label("nonce_spin"), a.label("nonce_done")
    a(f"s_mov_b32 s54, 0")
    a.lines.append(f"{lspin}:")
    a(f"""
    v_readfirstlane_b32 s{S_N}, v{VN}
    s_add_u32 s54, s54, 1
    s_cmp_lg_u32 s{S_N}, 0
    s_cbranch_scc1 {ldone}
    s_cmp_ge_u32 s54, 0x40000
    s_cbranch_scc1 {ldone}
    s_sleep 1
    """)
    nonce_load(a)
    a(f"""
    s_waitcnt vmcnt(0)
    s_branch {lspin}
    """)
    a.lines.append(f"{ldone}:")

def flag_post(a, off_sreg):
    a(f"""
    v_mov_b32 v2, {off_sreg}
    v_mov_b32 v3, s{S_N}
    s_mov_b64 exec, 1
    buffer_store_dword v3, v2, s[{SRD_WS}:{SRD_WS+3}], 0 offen sc1
    s_mov_b64 exec, -1
    """)

def emit_setup(a):
    a(f"""
    s_load_dwordx4 s[4:7], s[0:1], {KA['q']}       ; q, k
    s_load_dwordx4 s[8:11], s[0:1], {KA['v']}      ; v, shift
    s_load_dwordx4 s[12:15], s[0:1], {KA['w1']}    ; w1, b1
    s_load_dwordx4 s[48:51], s[0:1], {KA['dbg']}
    v_and_b32 v1, 63, v0
    v_lshrrev_b32 v2, 6, v0
    s_nop 0
    v_readfirstlane_b32 s{S_WAVE}, v2
    s_lshl_b32 s52, s2, 3
    s_add_u32 s52, s52, s{S_WAVE}
    s_lshl_b32 s52, s52, 10
    v_lshl_add_u32 v5, v1, 4, s52
    s_waitcnt lgkmcnt(0)
    """)
    srd(a, SRD_X, 4, S*D*2)
    a(f"buffer_load_dwordx4 v[112:115], v5, s[{SRD_X}:{SRD_X+3}], 0 offen")
    srd(a, SRD_DBG, 48, 256)
    nonce_publish(a)
    l = a.label("n0")
    a(f"""
    s_cmp_lg_u32 s{S_WAVE}, 0
    s_cbranch_scc1 {l}
    """)
    nonce_load(a)
    a.lines.append(f"{l}:")
    srd(a, SRD_W1, 12, D*F*2)
    srd(a, SRD_WS, 50, WS_SIZE)

def emit_touch(a):
    l, lx, ld = a.label("tch_skip"), a.label("tch_x"), a.label("tch_done")
    w = f"s{S_WAVE}"
    a(f"""
    s_lshr_b32 s52, s2, 3                          ; member 0..31
    s_cmp_ge_u32 s52, 28
    s_cbranch_scc1 {lx}
    s_lshl_b32 s53, s52, 6
    v_add_u32 v2, s53, v1                          ; i = 64 m + l
    s_mov_b32 s53, 0x9249250
    v_mul_hi_u32 v3, v2, s53                       ; i / 28
    v_mul_u32_u24 v4, 28, v3
    v_sub_u32 v4, v2, v4                           ; i % 28
    s_lshl_b32 s53, {w}, 6
    v_add_u32 v3, s53, v3
    v_mul_u32_u24 v3, {F*2}, v3
    v_lshl_add_u32 v3, v4, 7, v3
    buffer_load_dword v116, v3, s[{SRD_W1}:{SRD_W1+3}], 0 offen
    s_branch {ld}
    """)
    a.lines.append(f"{lx}:")
    a(f"""
    s_sub_u32 s52, s52, 28
    s_lshl_b32 s52, s52, 6
    s_and_b32 s53, s2, 7
    s_lshl_b32 s53, s53, 8
    s_add_u32 s52, s52, s53
    v_add_u32 v2, s52, v1
    v_lshlrev_b32 v2, 10, v2
    s_lshl_b32 s53, {w}, 7
    v_add_u32 v2, s53, v2
    buffer_load_dword v116, v2, s[{SRD_X}:{SRD_X+3}], 0 offen
    """)
    a.lines.append(f"{ld}:")

def emit_stats_row(a):
    A = 118
    a(f"""
    v_mov_b32 v117, 0x3f803f80
    s_nop 0
    v_dot2_f32_bf16 v{A}, v112, v117, 0
    v_dot2_f32_bf16 v{A+1}, v112, v112, 0
    v_dot2_f32_bf16 v{A+2}, v113, v117, 0
    v_dot2_f32_bf16 v{A+3}, v113, v113, 0
    v_dot2_f32_bf16 v{A}, v114, v117, v{A}
    v_dot2_f32_bf16 v{A+1}, v114, v114, v{A+1}
    v_dot2_f32_bf16 v{A+2}, v115, v117, v{A+2}
    v_dot2_f32_bf16 v{A+3}, v115, v115, v{A+3}
    s_nop 2
    v_add_f32 v{A}, v{A}, v{A+2}
    v_add_f32 v{A+1}, v{A+1}, v{A+3}
    """)
    for mod in ("quad_perm:[1,0,3,2]", "quad_perm:[2,3,0,1]", "row_half_mirror", "row_mirror"):
        a("s_nop 1")
        a(f"v_add_f32_dpp v{A}, v{A}, v{A} {mod} row_mask:0xf bank_mask:0xf")
        a(f"v_add_f32_dpp v{A+1}, v{A+1}, v{A+1} {mod} row_mask:0xf bank_mask:0xf")
    for op in ("v_permlane16_swap_b32", "v_permlane32_swap_b32"):
        a(f"v_mov_b32 v{A+2}, v{A}")
        a(f"v_mov_b32 v{A+3}, v{A+1}")
        a("s_nop 1")
        a(f"{op} v{A}, v{A+2}")
        a(f"{op} v{A+1}, v{A+3}")
        a("s_nop 1")
        a(f"v_add_f32 v{A}, v{A}, v{A+2}")
        a(f"v_add_f32 v{A+1}, v{A+1}, v{A+3}")
    a(f"""
    v_mul_f32 v{A}, 0x3b000000, v{A}               ; mean
    v_mul_f32 v{A+1}, 0x3b000000, v{A+1}
    v_fma_f32 v{A+1}, -v{A}, v{A}, v{A+1}          ; var
    v_max_f32 v{A+1}, 0, v{A+1}
    """)
    bf16_round(a, A+1, A+1)
    a(f"v_add_f32 v{A+1}, 0x3727c5ac, v{A+1}")
    bf16_round(a, A+1, A+1)
    a(f"v_sqrt_f32 v{A+1}, v{A+1}")
    a("s_nop 0")
    bf16_round(a, A+1, A+1)
    a(f"v_rcp_f32 v{A+3}, v{A+1}")
    bf16_round(a, A+2, A)
    a(f"""
    s_lshl_b32 s52, s2, 3
    s_add_u32 s52, s52, s{S_WAVE}
    s_lshl_b32 s52, s52, 3
    v_mov_b32 v2, s52
    s_mov_b64 exec, 1
    buffer_store_dwordx2 v[{A+2}:{A+3}], v2, s[{SRD_WS}:{SRD_WS+3}], 0 offen offset:{WS_STATS} sc1
    s_mov_b64 exec, -1
    """)

def post_stats_flag(a):
    a(f"""
    s_lshr_b32 s52, s2, 4
    s_lshl_b32 s52, s52, 7
    s_and_b32 s53, s2, 15
    s_lshl_b32 s53, s53, 2
    s_add_u32 s52, s52, s53
    s_add_u32 s52, s52, {WS_STF}
    """)
    flag_post(a, "s52")

def emit_kv_loads(a):
    a(f"""
    s_lshr_b32 s52, s2, 3                          ; tb64
    s_and_b32 s53, s2, 7                           ; cb64
    v_lshrrev_b32 v3, 3, v1
    v_and_b32 v4, 7, v1
    s_lshl_b32 s54, s52, 6
    s_lshl_b32 s55, s{S_WAVE}, 3
    s_add_u32 s54, s54, s55
    v_add_u32 v5, s54, v3
    v_lshlrev_b32 v5, 10, v5
    v_lshl_add_u32 v5, v4, 4, v5
    s_lshl_b32 s55, s53, 7
    v_add_u32 v5, s55, v5
    v_subrev_u32 v6, 8192, v5
    v_and_b32 v7, 31, v0
    v_lshlrev_b32 v7, 4, v7
    s_lshl_b32 s54, s53, 9
    v_add_u32 v7, s54, v7
    s_mov_b32 s60, s6
    s_mov_b32 s61, s7
    """)
    a(f"""
    s_mov_b32 s4, s60
    s_mov_b32 s5, s61
    s_mov_b32 s6, {S*D*2}
    s_mov_b32 s7, 0x00020000
    s_lshl_b32 s54, s{S_WAVE}, 10
    s_add_u32 m0, s54, {KT}
    s_cmp_lg_u32 s{S_WAVE}, 7
    buffer_load_dwordx4 v6, s[4:7], 0 offen lds
    """)
    l = a.label("kv_no9")
    a(f"""
    s_cbranch_scc1 {l}
    s_mov_b32 m0, {KT + 8192}
    s_nop 0
    buffer_load_dwordx4 v5, s[4:7], 0 offen lds
    """)
    a.lines.append(f"{l}:")
    a(f"""
    s_mov_b32 s4, s8
    s_mov_b32 s5, s9
    s_add_u32 m0, s54, {VT}
    s_nop 0
    buffer_load_dwordx4 v5, s[4:7], 0 offen lds
    s_mov_b32 s4, s10
    s_mov_b32 s5, s11
    s_mov_b32 s6, {D*4*2}
    buffer_load_dwordx4 v[124:127], v7, s[4:7], 0 offen
    """)

def emit_kv_compute(a, B):
    K, V, SS, KV, RK, RV, O = B, B+14, B+22, B+30, B+38, B+46, B+50
    def pr(r): return f"v[{r}:{r+1}]"
    a(f"""
    v_and_b32 v2, 31, v0
    v_lshrrev_b32 v3, 5, v0
    v_lshlrev_b32 v4, 9, v3
    v_lshl_add_u32 v4, v2, 2, v4
    v_add_u32 v5, {KT + 5*128}, v4
    v_add_u32 v6, {VT}, v4
    """)
    for i in range(7):
        a(f"ds_read_b32 v{RK+i}, v5 offset:{128*i}")
    for i in range(4):
        a(f"ds_read_b32 v{RV+i}, v6 offset:{128*i}")
    a(f"""
    v_lshlrev_b32 v{SS+0}, 16, v124
    v_lshlrev_b32 v{SS+1}, 16, v126
    v_and_b32 v{SS+2}, 0xffff0000, v124
    v_and_b32 v{SS+3}, 0xffff0000, v126
    v_lshlrev_b32 v{SS+4}, 16, v125
    v_lshlrev_b32 v{SS+5}, 16, v127
    v_and_b32 v{SS+6}, 0xffff0000, v125
    v_and_b32 v{SS+7}, 0xffff0000, v127
    v_sub_u32 v3, 15, v3
    v_lshrrev_b32 v4, 1, v3
    v_and_b32 v5, 7, v2
    v_xor_b32 v4, v4, v5
    v_lshlrev_b32 v4, 4, v4
    v_and_b32 v3, 1, v3
    v_lshl_add_u32 v4, v3, 3, v4
    v_lshl_add_u32 v4, v2, 8, v4
    v_add_u32 v4, {TR}, v4
    s_waitcnt lgkmcnt(4)
    """)
    for i in range(7):
        a(f"v_lshlrev_b32 v{K+2*i}, 16, v{RK+i}")
        a(f"v_and_b32 v{K+2*i+1}, 0xffff0000, v{RK+i}")
    for tt in range(4):
        a(f"v_pk_mul_f32 {pr(KV+2*tt)}, {pr(K+2*tt)}, {pr(SS+6)}")
    a("s_waitcnt lgkmcnt(0)")
    for i in range(4):
        a(f"v_lshlrev_b32 v{V+2*i}, 16, v{RV+i}")
        a(f"v_and_b32 v{V+2*i+1}, 0xffff0000, v{RV+i}")
    for n, off in ((4, 1), (2, 2), (0, 3)):
        for tt in range(4):
            a(f"v_pk_fma_f32 {pr(KV+2*tt)}, {pr(K+2*(tt+off))}, {pr(SS+n)}, {pr(KV+2*tt)}")
    for tt in range(4):
        a(f"v_pk_mul_f32 {pr(KV+2*tt)}, {pr(KV+2*tt)}, {pr(V+2*tt)}")
    for ch in range(2):
        a(f"v_cvt_pk_bf16_f32 v{O+2*ch}, v{KV+6+ch}, v{KV+4+ch}")
        a(f"v_cvt_pk_bf16_f32 v{O+1+2*ch}, v{KV+2+ch}, v{KV+ch}")
        a(f"ds_write_b64 v4, v[{O+2*ch}:{O+1+2*ch}] offset:{128*ch}")
    a("s_waitcnt lgkmcnt(0)")
    a("s_barrier")
    a(f"""
    v_lshrrev_b32 v2, 3, v1
    s_lshl_b32 s54, s{S_WAVE}, 3
    v_add_u32 v2, s54, v2
    v_lshrrev_b32 v3, 1, v2
    v_and_b32 v3, 7, v3
    v_and_b32 v4, 7, v1
    v_xor_b32 v3, v3, v4
    v_lshlrev_b32 v3, 4, v3
    v_lshl_add_u32 v3, v2, 7, v3
    v_add_u32 v3, {TR}, v3
    ds_read_b128 v[{K}:{K+3}], v3
    s_lshr_b32 s52, s2, 3
    s_and_b32 s53, s2, 7
    s_lshl_b32 s53, s53, 6
    v_add_u32 v2, s53, v2
    v_lshlrev_b32 v2, 12, v2
    v_lshl_add_u32 v2, v4, 4, v2
    s_lshl_b32 s52, s52, 7
    s_sub_u32 s52, {WS_KVT + 2*1984}, s52
    s_waitcnt lgkmcnt(0)
    buffer_store_dwordx4 v[{K}:{K+3}], v2, s[{SRD_WS}:{SRD_WS+3}], s52 offen sc1
    """)

def emit_prep_role(a, j):
    w = f"s{S_WAVE}"
    a(f"""
    s_cmp_lt_u32 {j}, 28
    s_cselect_b32 s63, s{SRD_W1+2}, 0
    v_lshrrev_b32 v3, 3, v1
    v_and_b32 v4, 7, v1
    s_lshl_b32 s53, {w}, 6
    v_add_u32 v7, s53, v3
    v_mul_u32_u24 v7, {F*2}, v7
    v_bfe_u32 v2, v1, 4, 1
    v_lshlrev_b32 v2, 2, v2
    v_xor_b32 v2, v2, v4
    v_lshl_add_u32 v7, v2, 4, v7
    s_lshl_b32 s53, {j}, 7
    s_lshl_b32 s54, {w}, 13
    s_mov_b32 s36, s{SRD_W1}
    s_mov_b32 s37, s{SRD_W1+1}
    s_mov_b32 s38, s63
    s_mov_b32 s39, 0x00020000
    """)
    for it in range(8):
        a(f"s_add_u32 m0, s54, {RING + 1024*it}")
        a(f"s_add_u32 s55, s53, {8*F*2*it}")
        a(f"buffer_load_dwordx4 v7, s[36:39], s55 offen lds")
    srd(a, 40, 14, F*2)
    a(f"""
    s_lshl_b32 s53, {j}, 6
    v_add_lshl_u32 v104, v1, s53, 1
    buffer_load_ushort v105, v104, s[40:43], 0 offen
    s_waitcnt vmcnt(9)
    """)
    emit_stats_row(a)
    stamp(a, 0)
    a(f"""
    v_mov_b32 v60, 0x3f803f80
    v_bfe_u32 v2, v1, 2, 2
    v_bfe_u32 v3, v1, 4, 1
    v_lshrrev_b32 v5, 5, v1
    v_bfe_u32 v6, v1, 1, 1
    v_lshl_add_u32 v6, v3, 1, v6
    v_lshrrev_b32 v7, 1, v2
    v_lshl_add_u32 v2, v5, 2, v2
    v_lshlrev_b32 v2, 7, v2
    v_and_b32 v3, 1, v1
    v_lshl_add_u32 v2, v3, 3, v2
    s_lshl_b32 s53, {w}, 13
    v_add_u32 v2, s53, v2
    v_lshl_add_u32 v3, v7, 2, v6
    v_lshl_add_u32 v8, v3, 4, v2
    v_xor_b32 v3, 4, v3
    v_lshl_add_u32 v9, v3, 4, v2
    v_mov_b32 v61, v60
    v_mov_b32 v62, v60
    v_mov_b32 v63, v60
    s_waitcnt vmcnt(2)
    """)
    stamp(a, 1)
    FR = 10
    for s in range(4):
        for di in range(2):
            r = FR + 8*s + 4*di
            a(f"ds_read_b64_tr_b16 v[{r}:{r+1}], v{8+di} offset:{RING + 2048*s}")
            a(f"ds_read_b64_tr_b16 v[{r+2}:{r+3}], v{8+di} offset:{RING + 2048*s+1024}")
        if s == 1: a("s_waitcnt lgkmcnt(4)")
    C0 = 164
    a("s_waitcnt lgkmcnt(0)")
    for s in range(4):
        for di in range(2):
            r = FR + 8*s + 4*di
            src = "0" if s == 0 else f"v[{C0+16*di}:{C0+16*di+15}]"
            a(f"v_mfma_f32_32x32x16_bf16 v[{C0+16*di}:{C0+16*di+15}], v[{r}:{r+3}], v[60:63], {src}")
    a(f"""
    s_lshl_b32 s53, {w}, 8
    s_add_u32 s53, s53, {CRED}
    v_lshl_add_u32 v3, v5, 4, s53
    s_mov_b32 s60, 1
    s_mov_b32 s61, 1
    s_nop 7
    s_nop 3
    s_mov_b64 exec, s[60:61]
    """)
    for di in range(2):
        for a4 in range(4):
            r = C0 + 16*di + 4*a4
            a(f"ds_write_b128 v3, v[{r}:{r+3}] offset:{128*di + 32*a4}")
    a(f"""
    s_mov_b64 exec, -1
    s_waitcnt vmcnt(0) lgkmcnt(0)
    s_barrier
    """)
    stamp(a, 2)
    lskip = a.label("pp_nocs")
    a(f"""
    s_cmp_lg_u32 {w}, 0
    s_cbranch_scc1 {lskip}
    v_lshlrev_b32 v2, 2, v1
    v_add_u32 v2, {CRED}, v2
    """)
    for ww in range(8):
        a(f"ds_read_b32 v{8+ww}, v2 offset:{256*ww}")
    a(f"""
    v_lshlrev_b32 v16, 16, v105
    v_mul_f32 v16, {hex(LOG2E)}, v16
    v_lshlrev_b32 v5, 1, v104
    s_mov_b32 s36, s{SRD_WS}
    s_mov_b32 s37, s{SRD_WS+1}
    s_cmp_lt_u32 {j}, 28
    s_cselect_b32 s38, s{SRD_WS+2}, 0
    s_mov_b32 s39, 0x00020000
    s_mov_b32 s53, {WS_BL}
    buffer_store_dword v16, v5, s[36:39], s53 offen sc1
    s_waitcnt lgkmcnt(0)
    v_add_f32 v8, v8, v9
    v_add_f32 v10, v10, v11
    v_add_f32 v12, v12, v13
    v_add_f32 v14, v14, v15
    v_add_f32 v8, v8, v10
    v_add_f32 v12, v12, v14
    v_add_f32 v8, v8, v12
    s_mov_b32 s53, {WS_CS}
    buffer_store_dword v8, v5, s[36:39], s53 offen sc1
    """)
    nonce_get(a)
    post_stats_flag(a)
    a(f"""
    s_lshl_b32 s52, {j}, 2
    s_add_u32 s52, s52, {WS_CSF}
    s_waitcnt vmcnt(0)
    """)
    flag_post(a, "s52")
    a.lines.append(f"{lskip}:")
    stamp(a, 3)
    emit_kv_loads(a)
    a("s_waitcnt vmcnt(0)")
    a("s_barrier")
    emit_kv_compute(a, 8)

ACC = 8
FP, FQ = 40, 52
VC, VB = 64, 96
VXA, VWA = 128, 132
VX0, VX1, VW = 134, 135, 136
VST = 138
VK = 140
VOPS, VFL, VFO = 148, 149, 150

def g1_piece(a, k, inloop=False):
    if inloop and DIAG_NODMA: return
    if k == 0:
        a(f"s_mov_b32 m0, s40")
        a(f"s_add_u32 s44, s42, {4*F*2}")
        a(f"buffer_load_dwordx4 v{VX0}, s[{SRD_X}:{SRD_X+3}], s41 offen lds")
    elif k == 1:
        a(f"s_add_u32 m0, s40, 1024")
        a(f"s_nop 0")
        a(f"buffer_load_dwordx4 v{VX1}, s[{SRD_X}:{SRD_X+3}], s41 offen lds")
    elif k == 2:
        a(f"s_add_u32 m0, s40, 16384")
        a(f"s_add_u32 s41, s41, 128")
        a(f"buffer_load_dwordx4 v{VW}, s[{SRD_W1}:{SRD_W1+3}], s42 offen lds")
    else:
        a(f"s_add_u32 m0, s40, 17408")
        a(f"s_add_u32 s42, s42, {64*F*2}")
        a(f"buffer_load_dwordx4 v{VW}, s[{SRD_W1}:{SRD_W1+3}], s44 offen lds")
        a(f"s_add_u32 s40, s40, 32768")
        a(f"s_and_b32 s40, s40, 0x1ffff")
        a(f"s_and_b32 s41, s41, 1023")
        a(f"s_cselect_b32 s42, s42, 0")

def g1_read(a, dst, step):
    if DIAG_NODS: return
    a(f"ds_read_b128 v[{dst}:{dst+3}], v{VXA+step}")
    for n in range(2):
        for j in range(2):
            r = dst + 4 + 4*n + 2*j
            a(f"ds_read_b64_tr_b16 v[{r}:{r+1}], v{VWA+n} offset:{4096*step + 1024*j}")

def g1_mfma(a, src, n):
    if DIAG_NOMFMA: return
    a(f"v_mfma_f32_32x32x16_bf16 v[{ACC+16*n}:{ACC+16*n+15}], v[{src+4+4*n}:{src+7+4*n}], v[{src}:{src+3}], v[{ACC+16*n}:{ACC+16*n+15}]")

def g1_operand_dma(a):
    a(f"""
    s_mov_b32 m0, {OPS}
    s_lshl_b32 s52, s32, 10
    s_add_u32 s52, s52, {WS_STATS}
    v_lshlrev_b32 v2, 4, v1
    buffer_load_dwordx4 v2, s[{SRD_WS}:{SRD_WS+3}], s52 offen sc1 lds
    s_mov_b32 m0, {OPS + 1024}
    s_nop 0
    buffer_load_dwordx4 v{VOPS}, s[{SRD_WS}:{SRD_WS+3}], 0 offen sc1 lds
    """)

def g1_poll(a):
    a(f"buffer_load_dword v{VFL}, v{VFO}, s[{SRD_WS}:{SRD_WS+3}], 0 offen sc1")

def g1_check(a, lnot):
    a(f"""
    v_cmp_ne_u32 vcc, s{S_N}, v{VFL}
    s_nop 1
    s_cmp_eq_u64 vcc, 0
    s_cbranch_scc0 {lnot}
    """)

def emit_gemm1_role(a, wid, mapping, touch=True):
    emit_wgmap_gemm1(a, wid, mapping)
    w = f"s{S_WAVE}"
    a(f"""
    v_lshrrev_b32 v2, 3, v1
    v_lshrrev_b32 v3, 4, v1
    v_and_b32 v4, 7, v1
    s_lshl_b32 s38, s32, 7
    s_lshl_b32 s39, {w}, 4
    s_add_u32 s38, s38, s39
    v_add_u32 v5, s38, v2
    v_lshlrev_b32 v5, 10, v5
    v_xor_b32 v6, v4, v3
    v_lshl_add_u32 v{VX0}, v6, 4, v5
    v_xor_b32 v6, 4, v6
    v_lshl_add_u32 v{VX1}, v6, 4, v5
    v_add_u32 v{VX1}, 8192, v{VX1}
    s_lshl_b32 s39, {w}, 3
    v_add_u32 v5, s39, v3
    v_mul_u32_u24 v5, {F*2}, v5
    v_and_b32 v6, 15, v1
    v_lshlrev_b32 v7, 2, v3
    v_xor_b32 v6, v6, v7
    v_lshl_add_u32 v5, v6, 4, v5
    s_lshl_b32 s39, s33, 8
    v_add_u32 v{VW}, s39, v5
    s_lshl_b32 s40, {w}, 11
    s_and_b32 s41, s32, 1
    s_lshl_b32 s41, s41, 2
    s_add_u32 s41, s41, s33
    s_and_b32 s41, s41, {ROTMASK}
    s_mul_i32 s42, s41, {64*F*2}
    s_lshl_b32 s41, s41, 7
    """)
    for k in range(4): g1_piece(a, k)
    a("s_barrier")
    lt = a.label("g1_notouch")
    a(f"""
    s_cmp_eq_u32 {w}, 0
    s_cbranch_scc1 {lt}
    """)
    if touch: emit_touch(a)
    a.lines.append(f"{lt}:")
    for st in range(2):
        for k in range(4): g1_piece(a, k)
    a(f"""
    s_and_b32 s36, {w}, 3                          ; tg
    s_lshr_b32 s37, {w}, 2                         ; fh
    v_and_b32 v5, 31, v1
    v_lshrrev_b32 v6, 5, v1                        ; h
    s_lshl_b32 s38, s33, 9
    v_lshl_add_u32 v2, v5, 4, s38
    v_mul_u32_u24 v3, {WS_BL - WS_CS}, v6
    v_add3_u32 v{VOPS}, v2, v3, 0
    v_add_u32 v{VOPS}, {WS_CS}, v{VOPS}
    s_lshl_b32 s38, s32, 7
    s_add_u32 s38, s38, {WS_STF}
    v_and_b32 v2, 15, v1
    v_lshl_add_u32 v2, v2, 2, s38
    s_lshl_b32 s38, s33, 3
    s_add_u32 s38, s38, {WS_CSF}
    v_and_b32 v3, 1, v1
    v_lshl_add_u32 v3, v3, 2, s38
    v_cmp_gt_u32 vcc, 16, v1
    v_lshrrev_b32 v4, 1, v5
    v_and_b32 v4, 7, v4
    v_cndmask_b32 v{VFO}, v3, v2, vcc
    v_xor_b32 v2, v4, v6
    s_lshl_b32 s38, s36, 12
    v_lshl_add_u32 v3, v5, 7, s38
    """)
    for s in range(4):
        a(f"v_xor_b32 v4, {2*s}, v2")
        a(f"v_lshl_add_u32 v{VXA+s}, v4, 4, v3")
    a(f"""
    v_bfe_u32 v2, v1, 2, 2
    v_bfe_u32 v3, v1, 4, 1
    v_and_b32 v4, 3, v1
    v_lshrrev_b32 v7, 1, v4
    v_lshl_add_u32 v7, v3, 1, v7
    v_and_b32 v4, 1, v4
    v_lshlrev_b32 v4, 3, v4
    v_lshl_add_u32 v3, v6, 3, v2
    v_lshl_add_u32 v4, v3, 8, v4
    v_add_u32 v4, 16384, v4
    s_lshl_b32 s38, s37, 1
    """)
    for n in range(2):
        a(f"s_add_u32 s39, s38, {n}")
        a(f"v_xor_b32 v3, s39, v2")
        a(f"v_lshl_add_u32 v3, v3, 2, v7")
        a(f"v_lshl_add_u32 v{VWA+n}, v3, 4, v4")
    for r in range(32):
        a(f"v_mov_b32 v{ACC+r}, 0")
    a(f"""
    s_mov_b32 s45, 0
    s_mov_b32 s46, 0
    s_mov_b32 s47, 32768
    s_mov_b32 s63, 0
    s_waitcnt vmcnt(12)
    """)
    emit_stats_row(a)
    stamp(a, 0)
    a("""
    s_waitcnt vmcnt(9)
    s_barrier
    """)
    stamp(a, 1)
    g1_read(a, FP, 0)
    L = {x: a.label("g1_" + x) for x in ("loop", "nopost", "nof1", "n1", "nof2", "got", "spin", "again", "spun", "wait")}
    def step(cur, nxt, s, dma):
        g1_read(a, nxt, s+1)
        a("s_waitcnt lgkmcnt(5)")
        g1_mfma(a, cur, 0)
        if dma: g1_piece(a, s, True)
        g1_mfma(a, cur, 1)
    def stage_end(vm):
        a(f"s_waitcnt vmcnt({vm}) lgkmcnt(0)")
        a(f"""
        s_barrier
        s_add_u32 s46, s46, 32768
        s_and_b32 s46, s46, 0x1ffff
        s_cmp_eq_u32 s46, 0
        s_cselect_b32 s52, {(-98304) & 0xffffffff}, s47
        s_add_u32 s45, s45, 1
        """)
        for r in list(range(VXA, VXA+4)) + [VWA, VWA+1]:
            a(f"v_add_u32 v{r}, s52, v{r}")
        g1_read(a, FP, 0)
        g1_mfma(a, FQ, 0)
        g1_mfma(a, FQ, 1)
    def three(dma):
        step(FP, FQ, 0, dma); step(FQ, FP, 1, dma); step(FP, FQ, 2, dma)
    a.lines.append(f"{L['loop']}:")
    three(True)
    g1_piece(a, 3, True)
    stage_end(8)
    a(f"""
    s_cmp_lg_u32 s45, 2
    s_cbranch_scc1 {L['nopost']}
    s_cmp_lg_u32 {w}, 0
    s_cbranch_scc1 {L['nopost']}
    """)
    nonce_get(a)
    post_stats_flag(a)
    a.lines.append(f"{L['nopost']}:")
    a(f"""
    s_cmp_lt_u32 s45, 5
    s_cbranch_scc1 {L['loop']}
    """)
    emit_kv_loads(a)
    a(f"""
    s_cmp_lg_u32 {w}, 0
    s_cbranch_scc1 {L['nof1']}
    """)
    g1_poll(a)
    a.lines.append(f"{L['nof1']}:")
    three(False)
    stage_end(7)
    three(False)
    stage_end(0)
    a(f"""
    s_cmp_lg_u32 {w}, 0
    s_cbranch_scc1 {L['nof2']}
    """)
    g1_check(a, L['n1'])
    a("s_mov_b32 s63, 1")
    g1_operand_dma(a)
    a(f"s_branch {L['nof2']}")
    a.lines.append(f"{L['n1']}:")
    g1_poll(a)
    a.lines.append(f"{L['nof2']}:")
    three(False)
    a("s_waitcnt lgkmcnt(0)")
    g1_mfma(a, FQ, 0); g1_mfma(a, FQ, 1)
    stamp(a, 2)
    emit_kv_compute(a, 64)
    stamp(a, 3)
    a(f"""
    s_cmp_lg_u32 {w}, 0
    s_cbranch_scc1 {L['wait']}
    s_cmp_eq_u32 s63, 1
    s_cbranch_scc1 {L['got']}
    s_mov_b32 s54, 0
    """)
    a.lines.append(f"{L['spin']}:")
    a("s_waitcnt vmcnt(0)")
    g1_check(a, L['again'])
    a(f"s_branch {L['spun']}")
    a.lines.append(f"{L['again']}:")
    a("s_sleep 2")
    g1_poll(a)
    a(f"""
    s_add_u32 s54, s54, 1
    s_cmp_lt_u32 s54, 0x40000
    s_cbranch_scc1 {L['spin']}
    """)
    a.lines.append(f"{L['spun']}:")
    g1_operand_dma(a)
    a("s_waitcnt vmcnt(0)")
    a.lines.append(f"{L['got']}:")
    a("s_waitcnt vmcnt(1)")
    a.lines.append(f"{L['wait']}:")
    R = VK + 6
    a(f"""
    v_mov_b32 v{VK}, 1.0
    v_mov_b32 v{VK+1}, 1.0
    v_mov_b32 v{VK+2}, {hex(LN2)}
    v_mov_b32 v{VK+3}, {hex(LN2)}
    v_mov_b32 v{VK+4}, {hex(NEG2LN2)}
    v_mov_b32 v{VK+5}, {hex(NEG2LN2)}
    s_lshl_b32 s38, s32, 2
    s_add_u32 s38, s38, s36
    s_mul_i32 s38, s38, 112
    s_lshl_b32 s39, s33, 3
    s_add_u32 s38, s38, s39
    s_lshl_b32 s39, s37, 2
    s_add_u32 s38, s38, s39
    s_lshl_b32 s38, s38, 10
    s_add_u32 s38, s38, {WS_ACT}
    v_and_b32 v5, 31, v1
    s_lshl_b32 s39, s36, 8
    v_lshl_add_u32 v3, v5, 3, s39
    v_add_u32 v3, {OPS}, v3
    v_lshrrev_b32 v4, 5, v1
    s_lshl_b32 s39, s37, 8
    v_lshl_add_u32 v4, v4, 4, s39
    v_add_u32 v4, {OPS + 1024}, v4
    v_lshlrev_b32 v2, 4, v1
    s_barrier
    ds_read_b64 v[{VST}:{VST+1}], v3
    """)
    for g in range(7):
        a(f"ds_read_b128 v[{VC+4*g}:{VC+4*g+3}], v4 offset:{32*g}")
        a(f"ds_read_b128 v[{VB+4*g}:{VB+4*g+3}], v4 offset:{512+32*g}")
    a("s_waitcnt lgkmcnt(14)")
    a(f"v_mul_f32 v{R}, {hex(LOG2E)}, v{VST+1}")
    a(f"ds_read_b128 v[{VC+28}:{VC+31}], v4 offset:{32*7}")
    a(f"ds_read_b128 v[{VB+28}:{VB+31}], v4 offset:{512+32*7}")
    stamp(a, 4)
    def pr(r): return f"v[{r}:{r+1}]"
    T = 40
    OUT = 152
    for fr in range(4):
        prs = [(ACC + 8*fr + 2*p, VC + 8*fr + 2*p, VB + 8*fr + 2*p) for p in range(4)]
        Z = [T + 2*p for p in range(4)]
        E = [T + 8 + 2*p for p in range(4)]
        a(f"s_waitcnt lgkmcnt({12 - 4*fr})")
        for p, (ac, c, b) in enumerate(prs):
            a(f"v_pk_fma_f32 {pr(Z[p])}, {pr(VST)}, {pr(c)}, {pr(ac)} op_sel_hi:[0,1,1] neg_lo:[1,0,0] neg_hi:[1,0,0]")
        for p, (ac, c, b) in enumerate(prs):
            a(f"v_pk_fma_f32 {pr(Z[p])}, {pr(R)}, {pr(Z[p])}, {pr(b)} op_sel_hi:[0,1,1]")
        for p in range(4):
            a(f"v_exp_f32 v{E[p]}, v{Z[p]}")
            a(f"v_exp_f32 v{E[p]+1}, v{Z[p]+1}")
        for p in range(4):
            a(f"v_pk_add_f32 {pr(E[p])}, {pr(E[p])}, {pr(VK)}")
        for p in range(4):
            a(f"v_pk_fma_f32 {pr(E[p])}, {pr(E[p])}, {pr(E[p])}, {pr(VK)}")
        for p in range(4):
            a(f"v_rcp_f32 v{E[p]}, v{E[p]}")
            a(f"v_rcp_f32 v{E[p]+1}, v{E[p]+1}")
        for p in range(4):
            a(f"v_pk_fma_f32 {pr(E[p])}, {pr(E[p])}, {pr(VK+4)}, {pr(VK+2)}")
        for p in range(4):
            a(f"v_pk_mul_f32 {pr(Z[p])}, {pr(Z[p])}, {pr(E[p])}")
        o = OUT + 4*fr
        for p in range(4):
            a(f"v_cvt_pk_bf16_f32 v{o+p}, v{Z[p]}, v{Z[p]+1}")
        a(f"buffer_store_dwordx4 v[{o}:{o+3}], v2, s[{SRD_WS}:{SRD_WS+3}], s38 offen offset:{1024*fr}")
    stamp(a, 5)

def emit_front(a, mapping=0, touch=True):
    emit_setup(a)
    lg, lfin = a.label("fr_gemm"), a.label("fr_fin")
    a(f"""
    s_cmp_ge_u32 s2, 32
    s_cbranch_scc1 {lg}
    s_mov_b32 s3, s2
    """)
    emit_prep_role(a, "s3")
    a(f"s_branch {lfin}")
    a.lines.append(f"{lg}:")
    a("s_sub_u32 s3, s2, 32")
    emit_gemm1_role(a, "s3", mapping, touch)
    a.lines.append(f"{lfin}:")

def front3_kernel(mapping=0, touch=True):
    a = Asm()
    kernel_begin(a, "front_kernel")
    a("""
    s_cmp_ge_u32 s2, 256
    s_cbranch_scc1 L_front_end
    """)
    stamp_begin(a)
    emit_front(a, mapping, touch)
    stamp_end(a, 0)
    a.lines.append("L_front_end:")
    a("s_endpgm")
    return a.text(), kernel_desc("front_kernel", 200, nsgpr(64))
```

```python
from common import *
import common
from gemm1 import emit_wgmap_gemm1

RING = 0
KT   = 131072
VT   = KT + 72*128
TR   = VT + 64*128
OPS  = TR + 64*128
CRED = OPS + 2048
FRONT_LDS = CRED + 2048

ROTMASK = 7
DIAG_NODMA = False
DIAG_NOMFMA = False
DIAG_NODS = False
S_WAVE, S_ROLE, S_N = 18, 19, 62
SRD_X, SRD_W1, SRD_WS, SRD_DBG = 20, 24, 28, 56
VN = 151

def nonce_publish(a):
    l = a.label("nonce")
    a(f"""
    s_lshl_b32 s52, s2, 3
    s_add_u32 s52, s52, s{S_WAVE}
    s_cmp_lg_u32 s52, 1
    s_cbranch_scc1 {l}
    s_memrealtime s[52:53]
    s_waitcnt lgkmcnt(0)
    s_or_b32 s52, s52, 1
    v_mov_b32 v2, s52
    v_mov_b32 v3, 0
    s_mov_b64 exec, 1
    buffer_store_dword v2, v3, s[{SRD_DBG}:{SRD_DBG+3}], 0 offen sc1
    s_mov_b64 exec, -1
    """)
    a.lines.append(f"{l}:")

def nonce_load(a):
    a(f"v_mov_b32 v2, 0")
    a(f"buffer_load_dword v{VN}, v2, s[{SRD_DBG}:{SRD_DBG+3}], 0 offen sc1")

def nonce_get(a):
    lspin, ldone = a.label("nonce_spin"), a.label("nonce_done")
    a(f"s_mov_b32 s54, 0")
    a.lines.append(f"{lspin}:")
    a(f"""
    v_readfirstlane_b32 s{S_N}, v{VN}
    s_add_u32 s54, s54, 1
    s_cmp_lg_u32 s{S_N}, 0
    s_cbranch_scc1 {ldone}
    s_cmp_ge_u32 s54, 0x40000
    s_cbranch_scc1 {ldone}
    s_sleep 1
    """)
    nonce_load(a)
    a(f"""
    s_waitcnt vmcnt(0)
    s_branch {lspin}
    """)
    a.lines.append(f"{ldone}:")

def flag_post(a, off_sreg):
    a(f"""
    v_mov_b32 v2, {off_sreg}
    v_mov_b32 v3, s{S_N}
    s_mov_b64 exec, 1
    buffer_store_dword v3, v2, s[{SRD_WS}:{SRD_WS+3}], 0 offen sc1
    s_mov_b64 exec, -1
    """)

def emit_setup(a):
    a(f"""
    s_load_dwordx4 s[4:7], s[0:1], {KA['q']}       ; q, k
    s_load_dwordx4 s[8:11], s[0:1], {KA['v']}      ; v, shift
    s_load_dwordx4 s[12:15], s[0:1], {KA['w1']}    ; w1, b1
    s_load_dwordx4 s[48:51], s[0:1], {KA['dbg']}
    v_and_b32 v1, 63, v0
    v_lshrrev_b32 v2, 6, v0
    s_nop 0
    v_readfirstlane_b32 s{S_WAVE}, v2
    s_lshl_b32 s52, s2, 3
    s_add_u32 s52, s52, s{S_WAVE}
    s_lshl_b32 s52, s52, 10
    v_lshl_add_u32 v5, v1, 4, s52
    s_waitcnt lgkmcnt(0)
    """)
    srd(a, SRD_X, 4, S*D*2)
    a(f"buffer_load_dwordx4 v[112:115], v5, s[{SRD_X}:{SRD_X+3}], 0 offen")
    srd(a, SRD_DBG, 48, 256)
    nonce_publish(a)
    l = a.label("n0")
    a(f"""
    s_cmp_lg_u32 s{S_WAVE}, 0
    s_cbranch_scc1 {l}
    """)
    nonce_load(a)
    a.lines.append(f"{l}:")
    srd(a, SRD_W1, 12, D*F*2)
    srd(a, SRD_WS, 50, WS_SIZE)
    a(f"""
    s_load_dwordx2 s[48:49], s[0:1], {KA['w2']}
    s_load_dwordx2 s[50:51], s[0:1], {KA['ssmk']}
    """)

def emit_touch(a):
    l, lx, ld = a.label("tch_skip"), a.label("tch_x"), a.label("tch_done")
    w = f"s{S_WAVE}"
    a(f"""
    s_lshr_b32 s52, s2, 3                          ; member 0..31
    s_cmp_ge_u32 s52, 28
    s_cbranch_scc1 {lx}
    s_lshl_b32 s53, s52, 6
    v_add_u32 v2, s53, v1                          ; i = 64 m + l
    s_mov_b32 s53, 0x9249250
    v_mul_hi_u32 v3, v2, s53                       ; i / 28
    v_mul_u32_u24 v4, 28, v3
    v_sub_u32 v4, v2, v4                           ; i % 28
    s_lshl_b32 s53, {w}, 6
    v_add_u32 v3, s53, v3
    v_mul_u32_u24 v3, {F*2}, v3
    v_lshl_add_u32 v3, v4, 7, v3
    buffer_load_dword v192, v3, s[{SRD_W1}:{SRD_W1+3}], 0 offen
    s_branch {ld}
    """)
    a.lines.append(f"{lx}:")
    a(f"""
    s_sub_u32 s52, s52, 28
    s_lshl_b32 s52, s52, 6
    s_and_b32 s53, s2, 7
    s_lshl_b32 s53, s53, 8
    s_add_u32 s52, s52, s53
    v_add_u32 v2, s52, v1
    v_lshlrev_b32 v2, 10, v2
    s_lshl_b32 s53, {w}, 7
    v_add_u32 v2, s53, v2
    buffer_load_dword v192, v2, s[{SRD_X}:{SRD_X+3}], 0 offen
    """)
    a.lines.append(f"{ld}:")

def emit_stats_row(a, store=True):
    A = 118
    a(f"""
    v_mov_b32 v117, 0x3f803f80
    s_nop 0
    v_dot2_f32_bf16 v{A}, v112, v117, 0
    v_dot2_f32_bf16 v{A+1}, v112, v112, 0
    v_dot2_f32_bf16 v{A+2}, v113, v117, 0
    v_dot2_f32_bf16 v{A+3}, v113, v113, 0
    v_dot2_f32_bf16 v{A}, v114, v117, v{A}
    v_dot2_f32_bf16 v{A+1}, v114, v114, v{A+1}
    v_dot2_f32_bf16 v{A+2}, v115, v117, v{A+2}
    v_dot2_f32_bf16 v{A+3}, v115, v115, v{A+3}
    s_nop 2
    v_add_f32 v{A}, v{A}, v{A+2}
    v_add_f32 v{A+1}, v{A+1}, v{A+3}
    """)
    for mod in ("quad_perm:[1,0,3,2]", "quad_perm:[2,3,0,1]", "row_half_mirror", "row_mirror"):
        a("s_nop 1")
        a(f"v_add_f32_dpp v{A}, v{A}, v{A} {mod} row_mask:0xf bank_mask:0xf")
        a(f"v_add_f32_dpp v{A+1}, v{A+1}, v{A+1} {mod} row_mask:0xf bank_mask:0xf")
    for op in ("v_permlane16_swap_b32", "v_permlane32_swap_b32"):
        a(f"v_mov_b32 v{A+2}, v{A}")
        a(f"v_mov_b32 v{A+3}, v{A+1}")
        a("s_nop 1")
        a(f"{op} v{A}, v{A+2}")
        a(f"{op} v{A+1}, v{A+3}")
        a("s_nop 1")
        a(f"v_add_f32 v{A}, v{A}, v{A+2}")
        a(f"v_add_f32 v{A+1}, v{A+1}, v{A+3}")
    a(f"""
    v_mul_f32 v{A}, 0x3b000000, v{A}               ; mean
    v_mul_f32 v{A+1}, 0x3b000000, v{A+1}
    v_fma_f32 v{A+1}, -v{A}, v{A}, v{A+1}          ; var
    v_max_f32 v{A+1}, 0, v{A+1}
    """)
    bf16_round(a, A+1, A+1)
    a(f"v_add_f32 v{A+1}, 0x3727c5ac, v{A+1}")
    bf16_round(a, A+1, A+1)
    a(f"v_sqrt_f32 v{A+1}, v{A+1}")
    a("s_nop 0")
    bf16_round(a, A+1, A+1)
    a(f"v_rcp_f32 v{A+3}, v{A+1}")
    bf16_round(a, A+2, A)
    if store: emit_stats_store(a)

def emit_stats_store(a):
    A = 118
    a(f"""
    s_lshl_b32 s52, s2, 3
    s_add_u32 s52, s52, s{S_WAVE}
    s_lshl_b32 s52, s52, 3
    v_mov_b32 v2, s52
    s_mov_b64 exec, 1
    buffer_store_dwordx2 v[{A+2}:{A+3}], v2, s[{SRD_WS}:{SRD_WS+3}], 0 offen offset:{WS_STATS} sc1
    s_mov_b64 exec, -1
    """)

def post_stats_flag(a):
    a(f"""
    s_lshr_b32 s52, s2, 4
    s_lshl_b32 s52, s52, 7
    s_and_b32 s53, s2, 15
    s_lshl_b32 s53, s53, 2
    s_add_u32 s52, s52, s53
    s_add_u32 s52, s52, {WS_STF}
    """)
    flag_post(a, "s52")

def emit_kv_loads(a):
    a(f"""
    s_lshr_b32 s52, s2, 3                          ; tb64
    s_and_b32 s53, s2, 7                           ; cb64
    v_lshrrev_b32 v3, 3, v1
    v_and_b32 v4, 7, v1
    s_lshl_b32 s54, s52, 6
    s_lshl_b32 s55, s{S_WAVE}, 3
    s_add_u32 s54, s54, s55
    v_add_u32 v5, s54, v3
    v_lshlrev_b32 v5, 10, v5
    v_lshl_add_u32 v5, v4, 4, v5
    s_lshl_b32 s55, s53, 7
    v_add_u32 v5, s55, v5
    v_subrev_u32 v6, 8192, v5
    v_and_b32 v7, 31, v0
    v_lshlrev_b32 v7, 4, v7
    s_lshl_b32 s54, s53, 9
    v_add_u32 v7, s54, v7
    s_mov_b32 s60, s6
    s_mov_b32 s61, s7
    """)
    a(f"""
    s_mov_b32 s4, s60
    s_mov_b32 s5, s61
    s_mov_b32 s6, {S*D*2}
    s_mov_b32 s7, 0x00020000
    s_lshl_b32 s54, s{S_WAVE}, 10
    s_add_u32 m0, s54, {KT}
    s_cmp_lg_u32 s{S_WAVE}, 7
    buffer_load_dwordx4 v6, s[4:7], 0 offen lds
    """)
    l = a.label("kv_no9")
    a(f"""
    s_cbranch_scc1 {l}
    s_mov_b32 m0, {KT + 8192}
    s_nop 0
    buffer_load_dwordx4 v5, s[4:7], 0 offen lds
    """)
    a.lines.append(f"{l}:")
    a(f"""
    s_mov_b32 s4, s8
    s_mov_b32 s5, s9
    s_add_u32 m0, s54, {VT}
    s_nop 0
    buffer_load_dwordx4 v5, s[4:7], 0 offen lds
    s_mov_b32 s4, s10
    s_mov_b32 s5, s11
    s_mov_b32 s6, {D*4*2}
    buffer_load_dwordx4 v[124:127], v7, s[4:7], 0 offen
    """)

def emit_kv_compute(a, B):
    K, V, SS, KV, RK, RV, O = B, B+14, B+22, B+30, B+38, B+46, B+50
    def pr(r): return f"v[{r}:{r+1}]"
    a(f"""
    v_and_b32 v2, 31, v0
    v_lshrrev_b32 v3, 5, v0
    v_lshlrev_b32 v4, 9, v3
    v_lshl_add_u32 v4, v2, 2, v4
    v_add_u32 v5, {KT + 5*128}, v4
    v_add_u32 v6, {VT}, v4
    """)
    for i in range(7):
        a(f"ds_read_b32 v{RK+i}, v5 offset:{128*i}")
    for i in range(4):
        a(f"ds_read_b32 v{RV+i}, v6 offset:{128*i}")
    a(f"""
    v_lshlrev_b32 v{SS+0}, 16, v124
    v_lshlrev_b32 v{SS+1}, 16, v126
    v_and_b32 v{SS+2}, 0xffff0000, v124
    v_and_b32 v{SS+3}, 0xffff0000, v126
    v_lshlrev_b32 v{SS+4}, 16, v125
    v_lshlrev_b32 v{SS+5}, 16, v127
    v_and_b32 v{SS+6}, 0xffff0000, v125
    v_and_b32 v{SS+7}, 0xffff0000, v127
    v_sub_u32 v3, 15, v3
    v_lshrrev_b32 v4, 1, v3
    v_and_b32 v5, 7, v2
    v_xor_b32 v4, v4, v5
    v_lshlrev_b32 v4, 4, v4
    v_and_b32 v3, 1, v3
    v_lshl_add_u32 v4, v3, 3, v4
    v_lshl_add_u32 v4, v2, 8, v4
    v_add_u32 v4, {TR}, v4
    s_waitcnt lgkmcnt(4)
    """)
    for i in range(7):
        a(f"v_lshlrev_b32 v{K+2*i}, 16, v{RK+i}")
        a(f"v_and_b32 v{K+2*i+1}, 0xffff0000, v{RK+i}")
    for tt in range(4):
        a(f"v_pk_mul_f32 {pr(KV+2*tt)}, {pr(K+2*tt)}, {pr(SS+6)}")
    a("s_waitcnt lgkmcnt(0)")
    for i in range(4):
        a(f"v_lshlrev_b32 v{V+2*i}, 16, v{RV+i}")
        a(f"v_and_b32 v{V+2*i+1}, 0xffff0000, v{RV+i}")
    for n, off in ((4, 1), (2, 2), (0, 3)):
        for tt in range(4):
            a(f"v_pk_fma_f32 {pr(KV+2*tt)}, {pr(K+2*(tt+off))}, {pr(SS+n)}, {pr(KV+2*tt)}")
    for tt in range(4):
        a(f"v_pk_mul_f32 {pr(KV+2*tt)}, {pr(KV+2*tt)}, {pr(V+2*tt)}")
    for ch in range(2):
        a(f"v_cvt_pk_bf16_f32 v{O+2*ch}, v{KV+6+ch}, v{KV+4+ch}")
        a(f"v_cvt_pk_bf16_f32 v{O+1+2*ch}, v{KV+2+ch}, v{KV+ch}")
        a(f"ds_write_b64 v4, v[{O+2*ch}:{O+1+2*ch}] offset:{128*ch}")
    a("s_waitcnt lgkmcnt(0)")
    a("s_barrier")
    a(f"""
    v_lshrrev_b32 v2, 3, v1
    s_lshl_b32 s54, s{S_WAVE}, 3
    v_add_u32 v2, s54, v2
    v_lshrrev_b32 v3, 1, v2
    v_and_b32 v3, 7, v3
    v_and_b32 v4, 7, v1
    v_xor_b32 v3, v3, v4
    v_lshlrev_b32 v3, 4, v3
    v_lshl_add_u32 v3, v2, 7, v3
    v_add_u32 v3, {TR}, v3
    ds_read_b128 v[{K}:{K+3}], v3
    s_lshr_b32 s52, s2, 3
    s_and_b32 s53, s2, 7
    s_lshl_b32 s53, s53, 6
    v_add_u32 v2, s53, v2
    v_lshlrev_b32 v2, 12, v2
    v_lshl_add_u32 v2, v4, 4, v2
    s_lshl_b32 s52, s52, 7
    s_sub_u32 s52, {WS_KVT + 2*1984}, s52
    s_waitcnt lgkmcnt(0)
    buffer_store_dwordx4 v[{K}:{K+3}], v2, s[{SRD_WS}:{SRD_WS+3}], s52 offen sc1
    """)

def emit_prep_role(a, j):
    w = f"s{S_WAVE}"
    a(f"""
    s_cmp_lt_u32 {j}, 28
    s_cselect_b32 s63, s{SRD_W1+2}, 0
    v_lshrrev_b32 v3, 3, v1
    v_and_b32 v4, 7, v1
    s_lshl_b32 s53, {w}, 6
    v_add_u32 v7, s53, v3
    v_mul_u32_u24 v7, {F*2}, v7
    v_bfe_u32 v2, v1, 4, 1
    v_lshlrev_b32 v2, 2, v2
    v_xor_b32 v2, v2, v4
    v_lshl_add_u32 v7, v2, 4, v7
    s_lshl_b32 s53, {j}, 7
    s_lshl_b32 s54, {w}, 13
    s_mov_b32 s36, s{SRD_W1}
    s_mov_b32 s37, s{SRD_W1+1}
    s_mov_b32 s38, s63
    s_mov_b32 s39, 0x00020000
    """)
    for it in range(8):
        a(f"s_add_u32 m0, s54, {RING + 1024*it}")
        a(f"s_add_u32 s55, s53, {8*F*2*it}")
        a(f"buffer_load_dwordx4 v7, s[36:39], s55 offen lds")
    srd(a, 40, 14, F*2)
    a(f"""
    s_lshl_b32 s53, {j}, 6
    v_add_lshl_u32 v104, v1, s53, 1
    buffer_load_ushort v105, v104, s[40:43], 0 offen
    s_waitcnt vmcnt(9)
    """)
    emit_stats_row(a)
    stamp(a, 0)
    a(f"""
    v_mov_b32 v60, 0x3f803f80
    v_bfe_u32 v2, v1, 2, 2
    v_bfe_u32 v3, v1, 4, 1
    v_lshrrev_b32 v5, 5, v1
    v_bfe_u32 v6, v1, 1, 1
    v_lshl_add_u32 v6, v3, 1, v6
    v_lshrrev_b32 v7, 1, v2
    v_lshl_add_u32 v2, v5, 2, v2
    v_lshlrev_b32 v2, 7, v2
    v_and_b32 v3, 1, v1
    v_lshl_add_u32 v2, v3, 3, v2
    s_lshl_b32 s53, {w}, 13
    v_add_u32 v2, s53, v2
    v_lshl_add_u32 v3, v7, 2, v6
    v_lshl_add_u32 v8, v3, 4, v2
    v_xor_b32 v3, 4, v3
    v_lshl_add_u32 v9, v3, 4, v2
    v_mov_b32 v61, v60
    v_mov_b32 v62, v60
    v_mov_b32 v63, v60
    s_waitcnt vmcnt(2)
    """)
    stamp(a, 1)
    FR = 10
    for s in range(4):
        for di in range(2):
            r = FR + 8*s + 4*di
            a(f"ds_read_b64_tr_b16 v[{r}:{r+1}], v{8+di} offset:{RING + 2048*s}")
            a(f"ds_read_b64_tr_b16 v[{r+2}:{r+3}], v{8+di} offset:{RING + 2048*s+1024}")
        if s == 1: a("s_waitcnt lgkmcnt(4)")
    C0 = 164
    a("s_waitcnt lgkmcnt(0)")
    for s in range(4):
        for di in range(2):
            r = FR + 8*s + 4*di
            src = "0" if s == 0 else f"v[{C0+16*di}:{C0+16*di+15}]"
            a(f"v_mfma_f32_32x32x16_bf16 v[{C0+16*di}:{C0+16*di+15}], v[{r}:{r+3}], v[60:63], {src}")
    a(f"""
    s_lshl_b32 s53, {w}, 8
    s_add_u32 s53, s53, {CRED}
    v_lshl_add_u32 v3, v5, 4, s53
    s_mov_b32 s60, 1
    s_mov_b32 s61, 1
    s_nop 7
    s_nop 3
    s_mov_b64 exec, s[60:61]
    """)
    for di in range(2):
        for a4 in range(4):
            r = C0 + 16*di + 4*a4
            a(f"ds_write_b128 v3, v[{r}:{r+3}] offset:{128*di + 32*a4}")
    a(f"""
    s_mov_b64 exec, -1
    s_waitcnt vmcnt(0) lgkmcnt(0)
    s_barrier
    """)
    stamp(a, 2)
    lskip = a.label("pp_nocs")
    a(f"""
    s_cmp_lg_u32 {w}, 0
    s_cbranch_scc1 {lskip}
    v_lshlrev_b32 v2, 2, v1
    v_add_u32 v2, {CRED}, v2
    """)
    for ww in range(8):
        a(f"ds_read_b32 v{8+ww}, v2 offset:{256*ww}")
    a(f"""
    v_lshlrev_b32 v16, 16, v105
    v_mul_f32 v16, {hex(LOG2E)}, v16
    v_lshlrev_b32 v5, 1, v104
    s_mov_b32 s36, s{SRD_WS}
    s_mov_b32 s37, s{SRD_WS+1}
    s_cmp_lt_u32 {j}, 28
    s_cselect_b32 s38, s{SRD_WS+2}, 0
    s_mov_b32 s39, 0x00020000
    s_mov_b32 s53, {WS_BL}
    buffer_store_dword v16, v5, s[36:39], s53 offen sc1
    s_waitcnt lgkmcnt(0)
    v_add_f32 v8, v8, v9
    v_add_f32 v10, v10, v11
    v_add_f32 v12, v12, v13
    v_add_f32 v14, v14, v15
    v_add_f32 v8, v8, v10
    v_add_f32 v12, v12, v14
    v_add_f32 v8, v8, v12
    s_mov_b32 s53, {WS_CS}
    buffer_store_dword v8, v5, s[36:39], s53 offen sc1
    """)
    nonce_get(a)
    post_stats_flag(a)
    a(f"""
    s_lshl_b32 s52, {j}, 2
    s_add_u32 s52, s52, {WS_CSF}
    s_waitcnt vmcnt(0)
    """)
    flag_post(a, "s52")
    a.lines.append(f"{lskip}:")
    stamp(a, 3)
    emit_kv_loads(a)
    a("s_waitcnt vmcnt(0)")
    a("s_barrier")
    emit_kv_compute(a, 8)
    emit_warm_touch(a)

ACC = 8
FS = (40, 52, 168, 180)
VC, VB = 64, 96
VXA, VWA = 128, 132
VX0, VX1, VW = 134, 135, 136
VST = 138
VK = 140
VOPS, VFL, VFO = 148, 149, 150

def g1_piece(a, k, inloop=False):
    if inloop and DIAG_NODMA: return
    if k == 0:
        a(f"s_mov_b32 m0, s40")
        a(f"s_add_u32 s44, s42, {4*F*2}")
        a(f"buffer_load_dwordx4 v{VX0}, s[{SRD_X}:{SRD_X+3}], s41 offen lds")
    elif k == 1:
        a(f"s_add_u32 m0, s40, 1024")
        a(f"s_nop 0")
        a(f"buffer_load_dwordx4 v{VX1}, s[{SRD_X}:{SRD_X+3}], s41 offen lds")
    elif k == 2:
        a(f"s_add_u32 m0, s40, 16384")
        a(f"s_add_u32 s41, s41, 128")
        a(f"buffer_load_dwordx4 v{VW}, s[{SRD_W1}:{SRD_W1+3}], s42 offen lds")
    else:
        a(f"s_add_u32 m0, s40, 17408")
        a(f"s_add_u32 s42, s42, {64*F*2}")
        a(f"buffer_load_dwordx4 v{VW}, s[{SRD_W1}:{SRD_W1+3}], s44 offen lds")
        a(f"s_add_u32 s40, s40, 32768")
        a(f"s_and_b32 s40, s40, 0x1ffff")
        a(f"s_and_b32 s41, s41, 1023")
        a(f"s_cselect_b32 s42, s42, 0")

def g1_read(a, step):
    if DIAG_NODS: return
    dst = FS[step]
    a(f"ds_read_b128 v[{dst}:{dst+3}], v{VXA+step}")
    for n in range(2):
        for j in range(2):
            r = dst + 4 + 4*n + 2*j
            a(f"ds_read_b64_tr_b16 v[{r}:{r+1}], v{VWA+n} offset:{4096*step + 1024*j}")

def g1_mfma(a, step, n):
    if DIAG_NOMFMA: return
    src = FS[step]
    a(f"v_mfma_f32_32x32x16_bf16 v[{ACC+16*n}:{ACC+16*n+15}], v[{src+4+4*n}:{src+7+4*n}], v[{src}:{src+3}], v[{ACC+16*n}:{ACC+16*n+15}]")

def g1_pair(a, step, dma):
    g1_mfma(a, step, 0)
    if dma: g1_piece(a, step, True)
    g1_mfma(a, step, 1)

def g1_operand_dma(a):
    a(f"""
    s_mov_b32 m0, {OPS}
    s_lshl_b32 s52, s32, 10
    s_add_u32 s52, s52, {WS_STATS}
    v_lshlrev_b32 v2, 4, v1
    buffer_load_dwordx4 v2, s[{SRD_WS}:{SRD_WS+3}], s52 offen sc1 lds
    s_mov_b32 m0, {OPS + 1024}
    s_nop 0
    buffer_load_dwordx4 v{VOPS}, s[{SRD_WS}:{SRD_WS+3}], 0 offen sc1 lds
    """)

def g1_poll(a):
    a(f"buffer_load_dword v{VFL}, v{VFO}, s[{SRD_WS}:{SRD_WS+3}], 0 offen sc1")

def g1_check(a, lnot):
    a(f"""
    v_cmp_ne_u32 vcc, s{S_N}, v{VFL}
    s_nop 1
    s_cmp_eq_u64 vcc, 0
    s_cbranch_scc0 {lnot}
    """)

def emit_warm_touch(a):
    l0, ld = a.label("wt_w0"), a.label("wt_done")
    w = f"s{S_WAVE}"
    a(f"""
    s_cmp_eq_u32 {w}, 0
    s_cbranch_scc1 {l0}
    s_mov_b32 s4, s48
    s_mov_b32 s5, s49
    s_mov_b32 s6, {F*D*2}
    s_mov_b32 s7, 0x00020000
    s_lshr_b32 s52, s2, 3
    s_mul_i32 s52, s52, 7
    s_add_u32 s52, s52, {w}
    s_sub_u32 s52, s52, 1
    s_lshl_b32 s52, s52, 13
    v_lshl_add_u32 v2, v1, 7, s52
    buffer_load_dword v192, v2, s[4:7], 0 offen
    s_branch {ld}
    """)
    a.lines.append(f"{l0}:")
    a(f"""
    s_mov_b32 s4, s50
    s_mov_b32 s5, s51
    s_mov_b32 s6, {D*S*2}
    s_mov_b32 s7, 0x00020000
    s_lshl_b32 s52, s2, 13
    v_lshl_add_u32 v2, v1, 7, s52
    buffer_load_dword v192, v2, s[4:7], 0 offen
    """)
    a.lines.append(f"{ld}:")

def emit_gemm1_role(a, wid, mapping, touch=True):
    emit_wgmap_gemm1(a, wid, mapping)
    w = f"s{S_WAVE}"
    a(f"""
    v_lshrrev_b32 v2, 3, v1
    v_lshrrev_b32 v3, 4, v1
    v_and_b32 v4, 7, v1
    s_lshl_b32 s38, s32, 7
    s_lshl_b32 s39, {w}, 4
    s_add_u32 s38, s38, s39
    v_add_u32 v5, s38, v2
    v_lshlrev_b32 v5, 10, v5
    v_xor_b32 v6, v4, v3
    v_lshl_add_u32 v{VX0}, v6, 4, v5
    v_xor_b32 v6, 4, v6
    v_lshl_add_u32 v{VX1}, v6, 4, v5
    v_add_u32 v{VX1}, 8192, v{VX1}
    s_lshl_b32 s39, {w}, 3
    v_add_u32 v5, s39, v3
    v_mul_u32_u24 v5, {F*2}, v5
    v_and_b32 v6, 15, v1
    v_lshlrev_b32 v7, 2, v3
    v_xor_b32 v6, v6, v7
    v_lshl_add_u32 v5, v6, 4, v5
    s_lshl_b32 s39, s33, 8
    v_add_u32 v{VW}, s39, v5
    s_lshl_b32 s40, {w}, 11
    s_and_b32 s41, s32, 1
    s_lshl_b32 s41, s41, 2
    s_add_u32 s41, s41, s33
    s_and_b32 s41, s41, {ROTMASK}
    s_mul_i32 s42, s41, {64*F*2}
    s_lshl_b32 s41, s41, 7
    """)
    for k in range(4): g1_piece(a, k)
    a("s_barrier")
    for k in range(4): g1_piece(a, k)
    a(f"""
    s_and_b32 s36, {w}, 3                          ; tg
    s_lshr_b32 s37, {w}, 2                         ; fh
    v_and_b32 v5, 31, v1
    v_lshrrev_b32 v6, 5, v1                        ; h
    s_lshl_b32 s38, s33, 9
    v_lshl_add_u32 v2, v5, 4, s38
    v_mul_u32_u24 v3, {WS_BL - WS_CS}, v6
    v_add3_u32 v{VOPS}, v2, v3, 0
    v_add_u32 v{VOPS}, {WS_CS}, v{VOPS}
    s_lshl_b32 s38, s32, 7
    s_add_u32 s38, s38, {WS_STF}
    v_and_b32 v2, 15, v1
    v_lshl_add_u32 v2, v2, 2, s38
    s_lshl_b32 s38, s33, 3
    s_add_u32 s38, s38, {WS_CSF}
    v_and_b32 v3, 1, v1
    v_lshl_add_u32 v3, v3, 2, s38
    v_cmp_gt_u32 vcc, 16, v1
    v_lshrrev_b32 v4, 1, v5
    v_and_b32 v4, 7, v4
    v_cndmask_b32 v{VFO}, v3, v2, vcc
    v_xor_b32 v2, v4, v6
    s_lshl_b32 s38, s36, 12
    v_lshl_add_u32 v3, v5, 7, s38
    """)
    for s in range(4):
        a(f"v_xor_b32 v4, {2*s}, v2")
        a(f"v_lshl_add_u32 v{VXA+s}, v4, 4, v3")
    a(f"""
    v_bfe_u32 v2, v1, 2, 2
    v_bfe_u32 v3, v1, 4, 1
    v_and_b32 v4, 3, v1
    v_lshrrev_b32 v7, 1, v4
    v_lshl_add_u32 v7, v3, 1, v7
    v_and_b32 v4, 1, v4
    v_lshlrev_b32 v4, 3, v4
    v_lshl_add_u32 v3, v6, 3, v2
    v_lshl_add_u32 v4, v3, 8, v4
    v_add_u32 v4, 16384, v4
    s_lshl_b32 s38, s37, 1
    """)
    for n in range(2):
        a(f"s_add_u32 s39, s38, {n}")
        a(f"v_xor_b32 v3, s39, v2")
        a(f"v_lshl_add_u32 v3, v3, 2, v7")
        a(f"v_lshl_add_u32 v{VWA+n}, v3, 4, v4")
    for r in range(32):
        a(f"v_mov_b32 v{ACC+r}, 0")
    a(f"""
    s_mov_b32 s45, 0
    s_mov_b32 s46, 0
    s_mov_b32 s47, 32768
    s_mov_b32 s63, 0
    s_cmp_eq_u32 {w}, 0
    s_cselect_b32 s19, 3, 1
    s_waitcnt vmcnt(8) lgkmcnt(0)
    """)
    emit_stats_row(a, store=False)
    stamp(a, 0)
    a("""
    s_waitcnt vmcnt(4)
    s_barrier
    """)
    stamp(a, 1)
    g1_read(a, 0); g1_read(a, 1)
    L = {x: a.label("g1_" + x) for x in ("loop", "nopost", "nof1", "n1", "nof2", "got", "spin", "again", "spun", "wait", "w0", "wd")}
    def reads_of(step):
        if DIAG_NODS: return []
        dst = FS[step]
        r = [f"ds_read_b128 v[{dst}:{dst+3}], v{VXA+step}"]
        for n in range(2):
            for j in range(2):
                q = dst + 4 + 4*n + 2*j
                r.append(f"ds_read_b64_tr_b16 v[{q}:{q+1}], v{VWA+n} offset:{4096*step + 1024*j}")
        return r
    def step(k, dma, rd=True):
        r = reads_of((k + 2) % 4) if rd else []
        a("s_waitcnt lgkmcnt(5)" if rd or k < 3 else "s_waitcnt lgkmcnt(0)")
        g1_mfma(a, k, 0)
        for x in r[:3]: a(x)
        if dma: g1_piece(a, k, True)
        g1_mfma(a, k, 1)
        for x in r[3:]: a(x)
    def mid(vm, inloop=False):
        if inloop:
            l3, lj = a.label("g1_vm3"), a.label("g1_vmj")
            a(f"""
            s_cmp_eq_u32 s45, 1
            s_cbranch_scc1 {l3}
            s_cmp_eq_u32 s45, s19
            s_cbranch_scc1 {l3}
            s_waitcnt vmcnt(2)
            s_branch {lj}
            """)
            a.lines.append(f"{l3}:")
            a("s_waitcnt vmcnt(3)")
            a.lines.append(f"{lj}:")
        else:
            a(f"s_waitcnt vmcnt({vm})")
        a(f"""
        s_barrier
        s_add_u32 s46, s46, 32768
        s_and_b32 s46, s46, 0x1ffff
        s_cmp_eq_u32 s46, 0
        s_cselect_b32 s52, {(-98304) & 0xffffffff}, s47
        s_add_u32 s45, s45, 1
        """)
        for r in list(range(VXA, VXA+4)) + [VWA, VWA+1]:
            a(f"v_add_u32 v{r}, s52, v{r}")
    a.lines.append(f"{L['loop']}:")
    step(0, True); step(1, True)
    mid(2, True)
    step(2, True); step(3, True)
    lns = a.label("g1_nostore")
    a(f"""
    s_cmp_lg_u32 s45, 1
    s_cbranch_scc1 {lns}
    """)
    emit_stats_store(a)
    a.lines.append(f"{lns}:")
    a(f"""
    s_cmp_lg_u32 s45, 3
    s_cbranch_scc1 {L['nopost']}
    s_cmp_lg_u32 {w}, 0
    s_cbranch_scc1 {L['nopost']}
    """)
    nonce_get(a)
    post_stats_flag(a)
    a.lines.append(f"{L['nopost']}:")
    a(f"""
    s_cmp_lt_u32 s45, 6
    s_cbranch_scc1 {L['loop']}
    """)
    stamp(a, 6)
    emit_kv_loads(a)
    a(f"""
    s_cmp_lg_u32 {w}, 0
    s_cbranch_scc1 {L['nof1']}
    """)
    g1_poll(a)
    a.lines.append(f"{L['nof1']}:")
    step(0, False); step(1, False)
    mid(3)
    step(2, False); step(3, False)
    stamp(a, 7)
    a(f"""
    s_cmp_lg_u32 {w}, 0
    s_cbranch_scc1 {L['nof2']}
    s_waitcnt vmcnt(0)
    """)
    g1_check(a, L['n1'])
    a("s_mov_b32 s63, 1")
    g1_operand_dma(a)
    a(f"s_branch {L['nof2']}")
    a.lines.append(f"{L['n1']}:")
    g1_poll(a)
    a.lines.append(f"{L['nof2']}:")
    if touch: emit_warm_touch(a)
    else: a(f"buffer_load_dword v192, v1, s[{SRD_X}:{SRD_X+3}], 0 offen")
    stamp(a, 8)
    step(0, False); step(1, False)
    step(2, False, rd=False); step(3, False, rd=False)
    stamp(a, 2)
    a(f"""
    s_cmp_eq_u32 {w}, 0
    s_cbranch_scc1 {L['w0']}
    s_waitcnt vmcnt(1)
    """)
    a.lines.append(f"{L['w0']}:")
    a("s_barrier")
    emit_kv_compute(a, 64)
    stamp(a, 3)
    a(f"""
    s_cmp_lg_u32 {w}, 0
    s_cbranch_scc1 {L['wait']}
    s_cmp_eq_u32 s63, 1
    s_cbranch_scc1 {L['got']}
    s_mov_b32 s54, 0
    s_waitcnt vmcnt(2)
    """)
    a.lines.append(f"{L['spin']}:")
    g1_check(a, L['again'])
    a(f"s_branch {L['spun']}")
    a.lines.append(f"{L['again']}:")
    a("s_sleep 2")
    g1_poll(a)
    a(f"""
    s_add_u32 s54, s54, 1
    s_waitcnt vmcnt(0)
    s_cmp_lt_u32 s54, 0x40000
    s_cbranch_scc1 {L['spin']}
    """)
    a.lines.append(f"{L['spun']}:")
    g1_operand_dma(a)
    a("s_waitcnt vmcnt(0)")
    a.lines.append(f"{L['got']}:")
    a("s_waitcnt vmcnt(2)")
    a.lines.append(f"{L['wait']}:")
    R = VK + 6
    a(f"""
    v_mov_b32 v{VK}, 1.0
    v_mov_b32 v{VK+1}, 1.0
    v_mov_b32 v{VK+2}, {hex(LN2)}
    v_mov_b32 v{VK+3}, {hex(LN2)}
    v_mov_b32 v{VK+4}, {hex(NEG2LN2)}
    v_mov_b32 v{VK+5}, {hex(NEG2LN2)}
    s_lshl_b32 s38, s32, 2
    s_add_u32 s38, s38, s36
    s_mul_i32 s38, s38, 112
    s_lshl_b32 s39, s33, 3
    s_add_u32 s38, s38, s39
    s_lshl_b32 s39, s37, 2
    s_add_u32 s38, s38, s39
    s_lshl_b32 s38, s38, 10
    s_add_u32 s38, s38, {WS_ACT}
    v_and_b32 v5, 31, v1
    s_lshl_b32 s39, s36, 8
    v_lshl_add_u32 v3, v5, 3, s39
    v_add_u32 v3, {OPS}, v3
    v_lshrrev_b32 v4, 5, v1
    s_lshl_b32 s39, s37, 8
    v_lshl_add_u32 v4, v4, 4, s39
    v_add_u32 v4, {OPS + 1024}, v4
    v_lshlrev_b32 v2, 4, v1
    s_barrier
    ds_read_b64 v[{VST}:{VST+1}], v3
    """)
    for g in range(7):
        a(f"ds_read_b128 v[{VC+4*g}:{VC+4*g+3}], v4 offset:{32*g}")
        a(f"ds_read_b128 v[{VB+4*g}:{VB+4*g+3}], v4 offset:{512+32*g}")
    a("s_waitcnt lgkmcnt(14)")
    a(f"v_mul_f32 v{R}, {hex(LOG2E)}, v{VST+1}")
    a(f"ds_read_b128 v[{VC+28}:{VC+31}], v4 offset:{32*7}")
    a(f"ds_read_b128 v[{VB+28}:{VB+31}], v4 offset:{512+32*7}")
    stamp(a, 4)
    def pr(r): return f"v[{r}:{r+1}]"
    T = 40
    OUT = 152
    for fr in range(4):
        prs = [(ACC + 8*fr + 2*p, VC + 8*fr + 2*p, VB + 8*fr + 2*p) for p in range(4)]
        Z = [T + 2*p for p in range(4)]
        E = [T + 8 + 2*p for p in range(4)]
        a(f"s_waitcnt lgkmcnt({12 - 4*fr})")
        for p, (ac, c, b) in enumerate(prs):
            a(f"v_pk_fma_f32 {pr(Z[p])}, {pr(VST)}, {pr(c)}, {pr(ac)} op_sel_hi:[0,1,1] neg_lo:[1,0,0] neg_hi:[1,0,0]")
        for p, (ac, c, b) in enumerate(prs):
            a(f"v_pk_fma_f32 {pr(Z[p])}, {pr(R)}, {pr(Z[p])}, {pr(b)} op_sel_hi:[0,1,1]")
        for p in range(4):
            a(f"v_exp_f32 v{E[p]}, v{Z[p]}")
            a(f"v_exp_f32 v{E[p]+1}, v{Z[p]+1}")
        for p in range(4):
            a(f"v_pk_add_f32 {pr(E[p])}, {pr(E[p])}, {pr(VK)}")
        for p in range(4):
            a(f"v_pk_fma_f32 {pr(E[p])}, {pr(E[p])}, {pr(E[p])}, {pr(VK)}")
        for p in range(4):
            a(f"v_rcp_f32 v{E[p]}, v{E[p]}")
            a(f"v_rcp_f32 v{E[p]+1}, v{E[p]+1}")
        for p in range(4):
            a(f"v_pk_fma_f32 {pr(E[p])}, {pr(E[p])}, {pr(VK+4)}, {pr(VK+2)}")
        for p in range(4):
            a(f"v_pk_mul_f32 {pr(Z[p])}, {pr(Z[p])}, {pr(E[p])}")
        o = OUT + 4*fr
        for p in range(4):
            a(f"v_cvt_pk_bf16_f32 v{o+p}, v{Z[p]}, v{Z[p]+1}")
        a(f"buffer_store_dwordx4 v[{o}:{o+3}], v2, s[{SRD_WS}:{SRD_WS+3}], s38 offen offset:{1024*fr}")
    stamp(a, 5)

def emit_front(a, mapping=0, touch=True):
    emit_setup(a)
    lg, lfin = a.label("fr_gemm"), a.label("fr_fin")
    a(f"""
    s_cmp_ge_u32 s2, 32
    s_cbranch_scc1 {lg}
    s_mov_b32 s3, s2
    """)
    emit_prep_role(a, "s3")
    a(f"s_branch {lfin}")
    a.lines.append(f"{lg}:")
    a("s_sub_u32 s3, s2, 32")
    emit_gemm1_role(a, "s3", mapping, touch)
    a.lines.append(f"{lfin}:")

def front3_kernel(mapping=0, touch=True):
    a = Asm()
    kernel_begin(a, "front_kernel")
    a("""
    s_cmp_ge_u32 s2, 256
    s_cbranch_scc1 L_front_end
    """)
    stamp_begin(a)
    emit_front(a, mapping, touch)
    stamp_end(a, 0)
    a.lines.append("L_front_end:")
    a("s_endpgm")
    return a.text(), kernel_desc("front_kernel", 200, nsgpr(64))
```

```python
from common import *
import common
from gemm1 import emit_wgmap_gemm1

RING = 0
KT   = 131072
VT   = KT + 72*128
TR   = VT + 64*128
OPS  = TR + 64*128
CRED = OPS + 2048
FRONT_LDS = CRED + 2048

ROTMASK = 7
DIAG_NODMA = False
DIAG_NOMFMA = False
DIAG_NODS = False
DIST = 3
TOUCH = True
S_WAVE, S_ROLE, S_N = 18, 19, 62
SRD_X, SRD_W1, SRD_WS, SRD_DBG = 20, 24, 28, 56
VN = 151

def nonce_publish(a):
    l = a.label("nonce")
    a(f"""
    s_lshl_b32 s52, s2, 3
    s_add_u32 s52, s52, s{S_WAVE}
    s_cmp_lg_u32 s52, 1
    s_cbranch_scc1 {l}
    s_memrealtime s[52:53]
    s_waitcnt lgkmcnt(0)
    s_or_b32 s52, s52, 1
    v_mov_b32 v2, s52
    v_mov_b32 v3, 0
    s_mov_b64 exec, 1
    buffer_store_dword v2, v3, s[{SRD_DBG}:{SRD_DBG+3}], 0 offen sc1
    s_mov_b64 exec, -1
    """)
    a.lines.append(f"{l}:")

def nonce_load(a):
    a(f"v_mov_b32 v2, 0")
    a(f"buffer_load_dword v{VN}, v2, s[{SRD_DBG}:{SRD_DBG+3}], 0 offen sc1")

def nonce_get(a):
    lspin, ldone = a.label("nonce_spin"), a.label("nonce_done")
    a(f"s_mov_b32 s54, 0")
    a.lines.append(f"{lspin}:")
    a(f"""
    v_readfirstlane_b32 s{S_N}, v{VN}
    s_add_u32 s54, s54, 1
    s_cmp_lg_u32 s{S_N}, 0
    s_cbranch_scc1 {ldone}
    s_cmp_ge_u32 s54, 0x40000
    s_cbranch_scc1 {ldone}
    s_sleep 1
    """)
    nonce_load(a)
    a(f"""
    s_waitcnt vmcnt(0)
    s_branch {lspin}
    """)
    a.lines.append(f"{ldone}:")

def flag_post(a, off_sreg):
    a(f"""
    v_mov_b32 v2, {off_sreg}
    v_mov_b32 v3, s{S_N}
    s_mov_b64 exec, 1
    buffer_store_dword v3, v2, s[{SRD_WS}:{SRD_WS+3}], 0 offen sc1
    s_mov_b64 exec, -1
    """)

def emit_setup(a):
    a(f"""
    s_load_dwordx4 s[4:7], s[0:1], {KA['q']}       ; q, k
    s_load_dwordx4 s[8:11], s[0:1], {KA['v']}      ; v, shift
    s_load_dwordx4 s[12:15], s[0:1], {KA['w1']}    ; w1, b1
    s_load_dwordx4 s[48:51], s[0:1], {KA['dbg']}
    v_and_b32 v1, 63, v0
    v_lshrrev_b32 v2, 6, v0
    s_nop 0
    v_readfirstlane_b32 s{S_WAVE}, v2
    s_lshl_b32 s52, s2, 3
    s_add_u32 s52, s52, s{S_WAVE}
    s_lshl_b32 s52, s52, 10
    v_lshl_add_u32 v5, v1, 4, s52
    s_waitcnt lgkmcnt(0)
    """)
    srd(a, SRD_X, 4, S*D*2)
    a(f"buffer_load_dwordx4 v[112:115], v5, s[{SRD_X}:{SRD_X+3}], 0 offen")
    srd(a, SRD_DBG, 48, 256)
    nonce_publish(a)
    srd(a, SRD_W1, 12, D*F*2)
    srd(a, SRD_WS, 50, WS_SIZE)
    a(f"""
    s_load_dwordx2 s[48:49], s[0:1], {KA['w2']}
    s_load_dwordx2 s[50:51], s[0:1], {KA['ssmk']}
    """)

def emit_touch(a):
    l, lx, ld = a.label("tch_skip"), a.label("tch_x"), a.label("tch_done")
    w = f"s{S_WAVE}"
    a(f"""
    s_lshr_b32 s52, s2, 3                          ; member 0..31
    s_cmp_ge_u32 s52, 28
    s_cbranch_scc1 {lx}
    s_lshl_b32 s53, s52, 6
    v_add_u32 v2, s53, v1                          ; i = 64 m + l
    s_mov_b32 s53, 0x9249250
    v_mul_hi_u32 v3, v2, s53                       ; i / 28
    v_mul_u32_u24 v4, 28, v3
    v_sub_u32 v4, v2, v4                           ; i % 28
    s_lshl_b32 s53, {w}, 6
    v_add_u32 v3, s53, v3
    v_mul_u32_u24 v3, {F*2}, v3
    v_lshl_add_u32 v3, v4, 7, v3
    buffer_load_dword v192, v3, s[{SRD_W1}:{SRD_W1+3}], 0 offen
    s_branch {ld}
    """)
    a.lines.append(f"{lx}:")
    a(f"""
    s_sub_u32 s52, s52, 28
    s_lshl_b32 s52, s52, 6
    s_and_b32 s53, s2, 7
    s_lshl_b32 s53, s53, 8
    s_add_u32 s52, s52, s53
    v_add_u32 v2, s52, v1
    v_lshlrev_b32 v2, 10, v2
    s_lshl_b32 s53, {w}, 7
    v_add_u32 v2, s53, v2
    buffer_load_dword v192, v2, s[{SRD_X}:{SRD_X+3}], 0 offen
    """)
    a.lines.append(f"{ld}:")

def emit_stats_row(a, store=True):
    A = 118
    a(f"""
    v_mov_b32 v117, 0x3f803f80
    s_nop 0
    v_dot2_f32_bf16 v{A}, v112, v117, 0
    v_dot2_f32_bf16 v{A+1}, v112, v112, 0
    v_dot2_f32_bf16 v{A+2}, v113, v117, 0
    v_dot2_f32_bf16 v{A+3}, v113, v113, 0
    v_dot2_f32_bf16 v{A}, v114, v117, v{A}
    v_dot2_f32_bf16 v{A+1}, v114, v114, v{A+1}
    v_dot2_f32_bf16 v{A+2}, v115, v117, v{A+2}
    v_dot2_f32_bf16 v{A+3}, v115, v115, v{A+3}
    s_nop 2
    v_add_f32 v{A}, v{A}, v{A+2}
    v_add_f32 v{A+1}, v{A+1}, v{A+3}
    """)
    for mod in ("quad_perm:[1,0,3,2]", "quad_perm:[2,3,0,1]", "row_half_mirror", "row_mirror"):
        a("s_nop 1")
        a(f"v_add_f32_dpp v{A}, v{A}, v{A} {mod} row_mask:0xf bank_mask:0xf")
        a(f"v_add_f32_dpp v{A+1}, v{A+1}, v{A+1} {mod} row_mask:0xf bank_mask:0xf")
    for op in ("v_permlane16_swap_b32", "v_permlane32_swap_b32"):
        a(f"v_mov_b32 v{A+2}, v{A}")
        a(f"v_mov_b32 v{A+3}, v{A+1}")
        a("s_nop 1")
        a(f"{op} v{A}, v{A+2}")
        a(f"{op} v{A+1}, v{A+3}")
        a("s_nop 1")
        a(f"v_add_f32 v{A}, v{A}, v{A+2}")
        a(f"v_add_f32 v{A+1}, v{A+1}, v{A+3}")
    a(f"""
    v_mul_f32 v{A}, 0x3b000000, v{A}               ; mean
    v_mul_f32 v{A+1}, 0x3b000000, v{A+1}
    v_fma_f32 v{A+1}, -v{A}, v{A}, v{A+1}          ; var
    v_max_f32 v{A+1}, 0, v{A+1}
    """)
    bf16_round(a, A+1, A+1)
    a(f"v_add_f32 v{A+1}, 0x3727c5ac, v{A+1}")
    bf16_round(a, A+1, A+1)
    a(f"v_sqrt_f32 v{A+1}, v{A+1}")
    a("s_nop 0")
    bf16_round(a, A+1, A+1)
    a(f"v_rcp_f32 v{A+3}, v{A+1}")
    bf16_round(a, A+2, A)
    if store: emit_stats_store(a)

def emit_stats_store(a):
    A = 118
    a(f"""
    s_lshl_b32 s52, s2, 3
    s_add_u32 s52, s52, s{S_WAVE}
    s_lshl_b32 s52, s52, 3
    v_mov_b32 v2, s52
    s_mov_b64 exec, 1
    buffer_store_dwordx2 v[{A+2}:{A+3}], v2, s[{SRD_WS}:{SRD_WS+3}], 0 offen offset:{WS_STATS} sc1
    s_mov_b64 exec, -1
    """)

def post_stats_flag(a):
    a(f"""
    s_lshr_b32 s52, s2, 4
    s_lshl_b32 s52, s52, 7
    s_and_b32 s53, s2, 15
    s_lshl_b32 s53, s53, 2
    s_add_u32 s52, s52, s53
    s_add_u32 s52, s52, {WS_STF}
    """)
    flag_post(a, "s52")

def emit_kv_loads(a):
    a(f"""
    s_lshr_b32 s52, s2, 3                          ; tb64
    s_and_b32 s53, s2, 7                           ; cb64
    v_lshrrev_b32 v3, 3, v1
    v_and_b32 v4, 7, v1
    s_lshl_b32 s54, s52, 6
    s_lshl_b32 s55, s{S_WAVE}, 3
    s_add_u32 s54, s54, s55
    v_add_u32 v5, s54, v3
    v_lshlrev_b32 v5, 10, v5
    v_lshl_add_u32 v5, v4, 4, v5
    s_lshl_b32 s55, s53, 7
    v_add_u32 v5, s55, v5
    v_subrev_u32 v6, 8192, v5
    v_and_b32 v7, 31, v0
    v_lshlrev_b32 v7, 4, v7
    s_lshl_b32 s54, s53, 9
    v_add_u32 v7, s54, v7
    s_mov_b32 s60, s6
    s_mov_b32 s61, s7
    """)
    a(f"""
    s_mov_b32 s4, s60
    s_mov_b32 s5, s61
    s_mov_b32 s6, {S*D*2}
    s_mov_b32 s7, 0x00020000
    s_lshl_b32 s54, s{S_WAVE}, 10
    s_add_u32 m0, s54, {KT}
    s_cmp_lg_u32 s{S_WAVE}, 7
    buffer_load_dwordx4 v6, s[4:7], 0 offen lds
    """)
    l = a.label("kv_no9")
    a(f"""
    s_cbranch_scc1 {l}
    s_mov_b32 m0, {KT + 8192}
    s_nop 0
    buffer_load_dwordx4 v5, s[4:7], 0 offen lds
    """)
    a.lines.append(f"{l}:")
    a(f"""
    s_mov_b32 s4, s8
    s_mov_b32 s5, s9
    s_add_u32 m0, s54, {VT}
    s_nop 0
    buffer_load_dwordx4 v5, s[4:7], 0 offen lds
    s_mov_b32 s4, s10
    s_mov_b32 s5, s11
    s_mov_b32 s6, {D*4*2}
    buffer_load_dwordx4 v[124:127], v7, s[4:7], 0 offen
    """)

def emit_kv_compute(a, B):
    K, V, SS, KV, RK, RV, O = B, B+14, B+22, B+30, B+38, B+46, B+50
    def pr(r): return f"v[{r}:{r+1}]"
    a(f"""
    v_and_b32 v2, 31, v0
    v_lshrrev_b32 v3, 5, v0
    v_lshlrev_b32 v4, 9, v3
    v_lshl_add_u32 v4, v2, 2, v4
    v_add_u32 v5, {KT + 5*128}, v4
    v_add_u32 v6, {VT}, v4
    """)
    for i in range(7):
        a(f"ds_read_b32 v{RK+i}, v5 offset:{128*i}")
    for i in range(4):
        a(f"ds_read_b32 v{RV+i}, v6 offset:{128*i}")
    a(f"""
    v_lshlrev_b32 v{SS+0}, 16, v124
    v_lshlrev_b32 v{SS+1}, 16, v126
    v_and_b32 v{SS+2}, 0xffff0000, v124
    v_and_b32 v{SS+3}, 0xffff0000, v126
    v_lshlrev_b32 v{SS+4}, 16, v125
    v_lshlrev_b32 v{SS+5}, 16, v127
    v_and_b32 v{SS+6}, 0xffff0000, v125
    v_and_b32 v{SS+7}, 0xffff0000, v127
    v_sub_u32 v3, 15, v3
    v_lshrrev_b32 v4, 1, v3
    v_and_b32 v5, 7, v2
    v_xor_b32 v4, v4, v5
    v_lshlrev_b32 v4, 4, v4
    v_and_b32 v3, 1, v3
    v_lshl_add_u32 v4, v3, 3, v4
    v_lshl_add_u32 v4, v2, 8, v4
    v_add_u32 v4, {TR}, v4
    s_waitcnt lgkmcnt(4)
    """)
    for i in range(7):
        a(f"v_lshlrev_b32 v{K+2*i}, 16, v{RK+i}")
        a(f"v_and_b32 v{K+2*i+1}, 0xffff0000, v{RK+i}")
    for tt in range(4):
        a(f"v_pk_mul_f32 {pr(KV+2*tt)}, {pr(K+2*tt)}, {pr(SS+6)}")
    a("s_waitcnt lgkmcnt(0)")
    for i in range(4):
        a(f"v_lshlrev_b32 v{V+2*i}, 16, v{RV+i}")
        a(f"v_and_b32 v{V+2*i+1}, 0xffff0000, v{RV+i}")
    for n, off in ((4, 1), (2, 2), (0, 3)):
        for tt in range(4):
            a(f"v_pk_fma_f32 {pr(KV+2*tt)}, {pr(K+2*(tt+off))}, {pr(SS+n)}, {pr(KV+2*tt)}")
    for tt in range(4):
        a(f"v_pk_mul_f32 {pr(KV+2*tt)}, {pr(KV+2*tt)}, {pr(V+2*tt)}")
    for ch in range(2):
        a(f"v_cvt_pk_bf16_f32 v{O+2*ch}, v{KV+6+ch}, v{KV+4+ch}")
        a(f"v_cvt_pk_bf16_f32 v{O+1+2*ch}, v{KV+2+ch}, v{KV+ch}")
        a(f"ds_write_b64 v4, v[{O+2*ch}:{O+1+2*ch}] offset:{128*ch}")
    a("s_waitcnt lgkmcnt(0)")
    a("s_barrier")
    a(f"""
    v_lshrrev_b32 v2, 3, v1
    s_lshl_b32 s54, s{S_WAVE}, 3
    v_add_u32 v2, s54, v2
    v_lshrrev_b32 v3, 1, v2
    v_and_b32 v3, 7, v3
    v_and_b32 v4, 7, v1
    v_xor_b32 v3, v3, v4
    v_lshlrev_b32 v3, 4, v3
    v_lshl_add_u32 v3, v2, 7, v3
    v_add_u32 v3, {TR}, v3
    ds_read_b128 v[{K}:{K+3}], v3
    s_lshr_b32 s52, s2, 3
    s_and_b32 s53, s2, 7
    s_lshl_b32 s53, s53, 6
    v_add_u32 v2, s53, v2
    v_lshlrev_b32 v2, 12, v2
    v_lshl_add_u32 v2, v4, 4, v2
    s_lshl_b32 s52, s52, 7
    s_sub_u32 s52, {WS_KVT + 2*1984}, s52
    s_waitcnt lgkmcnt(0)
    buffer_store_dwordx4 v[{K}:{K+3}], v2, s[{SRD_WS}:{SRD_WS+3}], s52 offen sc1
    """)

def emit_prep_role(a, j):
    w = f"s{S_WAVE}"
    a(f"""
    s_cmp_lt_u32 {j}, 28
    s_cselect_b32 s63, s{SRD_W1+2}, 0
    v_lshrrev_b32 v3, 3, v1
    v_and_b32 v4, 7, v1
    s_lshl_b32 s53, {w}, 6
    v_add_u32 v7, s53, v3
    v_mul_u32_u24 v7, {F*2}, v7
    v_bfe_u32 v2, v1, 4, 1
    v_lshlrev_b32 v2, 2, v2
    v_xor_b32 v2, v2, v4
    v_lshl_add_u32 v7, v2, 4, v7
    s_lshl_b32 s53, {j}, 7
    s_lshl_b32 s54, {w}, 13
    s_mov_b32 s36, s{SRD_W1}
    s_mov_b32 s37, s{SRD_W1+1}
    s_mov_b32 s38, s63
    s_mov_b32 s39, 0x00020000
    """)
    for it in range(8):
        a(f"s_add_u32 m0, s54, {RING + 1024*it}")
        a(f"s_add_u32 s55, s53, {8*F*2*it}")
        a(f"buffer_load_dwordx4 v7, s[36:39], s55 offen lds")
    srd(a, 40, 14, F*2)
    a(f"""
    s_lshl_b32 s53, {j}, 6
    v_add_lshl_u32 v104, v1, s53, 1
    buffer_load_ushort v105, v104, s[40:43], 0 offen
    s_waitcnt vmcnt(9)
    """)
    emit_stats_row(a)
    stamp(a, 0)
    a(f"""
    v_mov_b32 v60, 0x3f803f80
    v_bfe_u32 v2, v1, 2, 2
    v_bfe_u32 v3, v1, 4, 1
    v_lshrrev_b32 v5, 5, v1
    v_bfe_u32 v6, v1, 1, 1
    v_lshl_add_u32 v6, v3, 1, v6
    v_lshrrev_b32 v7, 1, v2
    v_lshl_add_u32 v2, v5, 2, v2
    v_lshlrev_b32 v2, 7, v2
    v_and_b32 v3, 1, v1
    v_lshl_add_u32 v2, v3, 3, v2
    s_lshl_b32 s53, {w}, 13
    v_add_u32 v2, s53, v2
    v_lshl_add_u32 v3, v7, 2, v6
    v_lshl_add_u32 v8, v3, 4, v2
    v_xor_b32 v3, 4, v3
    v_lshl_add_u32 v9, v3, 4, v2
    v_mov_b32 v61, v60
    v_mov_b32 v62, v60
    v_mov_b32 v63, v60
    s_waitcnt vmcnt(2)
    """)
    stamp(a, 1)
    FR = 10
    for s in range(4):
        for di in range(2):
            r = FR + 8*s + 4*di
            a(f"ds_read_b64_tr_b16 v[{r}:{r+1}], v{8+di} offset:{RING + 2048*s}")
            a(f"ds_read_b64_tr_b16 v[{r+2}:{r+3}], v{8+di} offset:{RING + 2048*s+1024}")
        if s == 1: a("s_waitcnt lgkmcnt(4)")
    C0 = 164
    a("s_waitcnt lgkmcnt(0)")
    for s in range(4):
        for di in range(2):
            r = FR + 8*s + 4*di
            src = "0" if s == 0 else f"v[{C0+16*di}:{C0+16*di+15}]"
            a(f"v_mfma_f32_32x32x16_bf16 v[{C0+16*di}:{C0+16*di+15}], v[{r}:{r+3}], v[60:63], {src}")
    a(f"""
    s_lshl_b32 s53, {w}, 8
    s_add_u32 s53, s53, {CRED}
    v_lshl_add_u32 v3, v5, 4, s53
    s_mov_b32 s60, 1
    s_mov_b32 s61, 1
    s_nop 7
    s_nop 3
    s_mov_b64 exec, s[60:61]
    """)
    for di in range(2):
        for a4 in range(4):
            r = C0 + 16*di + 4*a4
            a(f"ds_write_b128 v3, v[{r}:{r+3}] offset:{128*di + 32*a4}")
    a(f"""
    s_mov_b64 exec, -1
    s_waitcnt lgkmcnt(0)
    s_barrier
    """)
    stamp(a, 2)
    lskip = a.label("pp_nocs")
    a(f"""
    s_cmp_lg_u32 {w}, 0
    s_cbranch_scc1 {lskip}
    v_lshlrev_b32 v2, 2, v1
    v_add_u32 v2, {CRED}, v2
    """)
    nonce_load(a)
    a(f"v_lshlrev_b32 v2, 2, v1")
    a(f"v_add_u32 v2, {CRED}, v2")
    for ww in range(8):
        a(f"ds_read_b32 v{8+ww}, v2 offset:{256*ww}")
    a(f"""
    v_lshlrev_b32 v16, 16, v105
    v_mul_f32 v16, {hex(LOG2E)}, v16
    v_lshlrev_b32 v5, 1, v104
    s_mov_b32 s36, s{SRD_WS}
    s_mov_b32 s37, s{SRD_WS+1}
    s_cmp_lt_u32 {j}, 28
    s_cselect_b32 s38, s{SRD_WS+2}, 0
    s_mov_b32 s39, 0x00020000
    s_mov_b32 s53, {WS_BL}
    buffer_store_dword v16, v5, s[36:39], s53 offen sc1
    s_waitcnt lgkmcnt(0)
    v_add_f32 v8, v8, v9
    v_add_f32 v10, v10, v11
    v_add_f32 v12, v12, v13
    v_add_f32 v14, v14, v15
    v_add_f32 v8, v8, v10
    v_add_f32 v12, v12, v14
    v_add_f32 v8, v8, v12
    s_mov_b32 s53, {WS_CS}
    buffer_store_dword v8, v5, s[36:39], s53 offen sc1
    s_waitcnt vmcnt(2)
    """)
    nonce_get(a)
    a(f"""
    s_lshl_b32 s52, {j}, 2
    s_add_u32 s52, s52, {WS_CSF}
    s_waitcnt vmcnt(0)
    """)
    flag_post(a, "s52")
    a.lines.append(f"{lskip}:")
    stamp(a, 3)
    emit_kv_loads(a)
    a("s_waitcnt vmcnt(0)")
    a("s_barrier")
    lns = a.label("pp_nostf")
    a(f"""
    s_cmp_lg_u32 {w}, 0
    s_cbranch_scc1 {lns}
    """)
    post_stats_flag(a)
    a.lines.append(f"{lns}:")
    emit_kv_compute(a, 8)
    if TOUCH: emit_warm_touch(a)

ACC = 8
FS = (40, 52, 168, 180)
VC, VB = 64, 96
VXA, VWA = 128, 132
VXH, VWH = 194, 198
VX0, VX1, VW = 134, 135, 136
VST = 138
VK = 140
VOPS, VFL, VFO = 148, 149, 150

def g1_piece(a, k, inloop=False):
    if inloop and DIAG_NODMA: return
    if k == 0:
        a(f"s_mov_b32 m0, s40")
        a(f"s_add_u32 s44, s42, {4*F*2}")
        a(f"buffer_load_dwordx4 v{VX0}, s[{SRD_X}:{SRD_X+3}], s41 offen lds")
    elif k == 1:
        a(f"s_add_u32 m0, s40, 1024")
        a(f"s_nop 0")
        a(f"buffer_load_dwordx4 v{VX1}, s[{SRD_X}:{SRD_X+3}], s41 offen lds")
    elif k == 2:
        a(f"s_add_u32 m0, s40, 16384")
        a(f"s_add_u32 s41, s41, 128")
        a(f"buffer_load_dwordx4 v{VW}, s[{SRD_W1}:{SRD_W1+3}], s42 offen lds")
    else:
        a(f"s_add_u32 m0, s40, 17408")
        a(f"s_add_u32 s42, s42, {64*F*2}")
        a(f"buffer_load_dwordx4 v{VW}, s[{SRD_W1}:{SRD_W1+3}], s44 offen lds")
        a(f"s_add_u32 s40, s40, 32768")
        a(f"s_and_b32 s40, s40, 0x1ffff")
        a(f"s_and_b32 s41, s41, 1023")
        a(f"s_cselect_b32 s42, s42, 0")

def g1_read(a, step):
    if DIAG_NODS: return
    dst = FS[step]
    a(f"ds_read_b128 v[{dst}:{dst+3}], v{VXA+step}")
    for n in range(2):
        for j in range(2):
            r = dst + 4 + 4*n + 2*j
            a(f"ds_read_b64_tr_b16 v[{r}:{r+1}], v{VWA+n} offset:{4096*step + 1024*j}")

def g1_mfma(a, step, n):
    if DIAG_NOMFMA: return
    src = FS[step]
    a(f"v_mfma_f32_32x32x16_bf16 v[{ACC+16*n}:{ACC+16*n+15}], v[{src+4+4*n}:{src+7+4*n}], v[{src}:{src+3}], v[{ACC+16*n}:{ACC+16*n+15}]")

def g1_pair(a, step, dma):
    g1_mfma(a, step, 0)
    if dma: g1_piece(a, step, True)
    g1_mfma(a, step, 1)

def g1_operand_dma(a):
    a(f"""
    s_mov_b32 m0, {OPS}
    s_lshl_b32 s52, s32, 10
    s_add_u32 s52, s52, {WS_STATS}
    v_lshlrev_b32 v2, 4, v1
    buffer_load_dwordx4 v2, s[{SRD_WS}:{SRD_WS+3}], s52 offen sc1 lds
    s_mov_b32 m0, {OPS + 1024}
    s_nop 0
    buffer_load_dwordx4 v{VOPS}, s[{SRD_WS}:{SRD_WS+3}], 0 offen sc1 lds
    """)

def g1_poll(a):
    a(f"buffer_load_dword v{VFL}, v{VFO}, s[{SRD_WS}:{SRD_WS+3}], 0 offen sc1")

def g1_check(a, lnot):
    a(f"""
    v_cmp_ne_u32 vcc, s{S_N}, v{VFL}
    s_nop 1
    s_cmp_eq_u64 vcc, 0
    s_cbranch_scc0 {lnot}
    """)

def emit_warm_touch(a):
    l0 = a.label("wt_w0")
    w = f"s{S_WAVE}"
    a(f"""
    s_mov_b32 s4, s50
    s_mov_b32 s5, s51
    s_mov_b32 s6, {D*S*2}
    s_mov_b32 s7, 0x00020000
    s_lshl_b32 s52, s2, 3
    s_add_u32 s52, s52, {w}
    s_lshl_b32 s52, s52, 13
    v_lshl_add_u32 v2, v1, 7, s52
    buffer_load_dword v192, v2, s[4:7], 0 offen
    s_cmp_eq_u32 {w}, 0
    s_cbranch_scc1 {l0}
    s_mov_b32 s4, s48
    s_mov_b32 s5, s49
    s_mov_b32 s6, {F*D*2}
    s_mul_i32 s52, s2, 7
    s_add_u32 s52, s52, {w}
    s_sub_u32 s52, s52, 1
    s_lshl_b32 s52, s52, 13
    v_lshl_add_u32 v2, v1, 7, s52
    buffer_load_dword v193, v2, s[4:7], 0 offen
    """)
    a.lines.append(f"{l0}:")

def emit_gemm1_role(a, wid, mapping, touch=True):
    emit_wgmap_gemm1(a, wid, mapping)
    w = f"s{S_WAVE}"
    a(f"""
    v_lshrrev_b32 v2, 3, v1
    v_lshrrev_b32 v3, 4, v1
    v_and_b32 v4, 7, v1
    s_lshl_b32 s38, s32, 7
    s_lshl_b32 s39, {w}, 4
    s_add_u32 s38, s38, s39
    v_add_u32 v5, s38, v2
    v_lshlrev_b32 v5, 10, v5
    v_xor_b32 v6, v4, v3
    v_lshl_add_u32 v{VX0}, v6, 4, v5
    v_xor_b32 v6, 4, v6
    v_lshl_add_u32 v{VX1}, v6, 4, v5
    v_add_u32 v{VX1}, 8192, v{VX1}
    s_lshl_b32 s39, {w}, 3
    v_add_u32 v5, s39, v3
    v_mul_u32_u24 v5, {F*2}, v5
    v_and_b32 v6, 15, v1
    v_lshlrev_b32 v7, 2, v3
    v_xor_b32 v6, v6, v7
    v_lshl_add_u32 v5, v6, 4, v5
    s_lshl_b32 s39, s33, 8
    v_add_u32 v{VW}, s39, v5
    s_lshl_b32 s40, {w}, 11
    s_and_b32 s41, s32, 1
    s_lshl_b32 s41, s41, 2
    s_add_u32 s41, s41, s33
    s_and_b32 s41, s41, {ROTMASK}
    s_mul_i32 s42, s41, {64*F*2}
    s_lshl_b32 s41, s41, 7
    """)
    for k in range(4): g1_piece(a, k)
    stamp(a, 0)
    a("s_barrier")
    for k in range(4): g1_piece(a, k)
    stamp(a, 8)
    a(f"""
    s_and_b32 s36, {w}, 3                          ; tg
    s_lshr_b32 s37, {w}, 2                         ; fh
    v_and_b32 v5, 31, v1
    v_lshrrev_b32 v6, 5, v1                        ; h
    s_lshl_b32 s38, s33, 9
    v_lshl_add_u32 v2, v5, 4, s38
    v_mul_u32_u24 v3, {WS_BL - WS_CS}, v6
    v_add3_u32 v{VOPS}, v2, v3, 0
    v_add_u32 v{VOPS}, {WS_CS}, v{VOPS}
    s_lshl_b32 s38, s32, 7
    s_add_u32 s38, s38, {WS_STF}
    v_and_b32 v2, 15, v1
    v_lshl_add_u32 v2, v2, 2, s38
    s_lshl_b32 s38, s33, 3
    s_add_u32 s38, s38, {WS_CSF}
    v_and_b32 v3, 1, v1
    v_lshl_add_u32 v3, v3, 2, s38
    v_cmp_gt_u32 vcc, 16, v1
    v_lshrrev_b32 v4, 1, v5
    v_and_b32 v4, 7, v4
    v_cndmask_b32 v{VFO}, v3, v2, vcc
    v_xor_b32 v2, v4, v6
    s_lshl_b32 s38, s36, 12
    v_lshl_add_u32 v3, v5, 7, s38
    """)
    for s in range(4):
        a(f"v_xor_b32 v4, {2*s}, v2")
        a(f"v_lshl_add_u32 v{VXA+s}, v4, 4, v3")
    a(f"""
    v_bfe_u32 v2, v1, 2, 2
    v_bfe_u32 v3, v1, 4, 1
    v_and_b32 v4, 3, v1
    v_lshrrev_b32 v7, 1, v4
    v_lshl_add_u32 v7, v3, 1, v7
    v_and_b32 v4, 1, v4
    v_lshlrev_b32 v4, 3, v4
    v_lshl_add_u32 v3, v6, 3, v2
    v_lshl_add_u32 v4, v3, 8, v4
    v_add_u32 v4, 16384, v4
    s_lshl_b32 s38, s37, 1
    """)
    for n in range(2):
        a(f"s_add_u32 s39, s38, {n}")
        a(f"v_xor_b32 v3, s39, v2")
        a(f"v_lshl_add_u32 v3, v3, 2, v7")
        a(f"v_lshl_add_u32 v{VWA+n}, v3, 4, v4")
    for r in range(4): a(f"v_add_u32 v{VXH+r}, 65536, v{VXA+r}")
    for r in range(2): a(f"v_add_u32 v{VWH+r}, 65536, v{VWA+r}")
    for r in range(32):
        a(f"v_mov_b32 v{ACC+r}, 0")
    a(f"""
    s_mov_b32 s63, 0
    s_waitcnt vmcnt(8) lgkmcnt(0)
    """)
    stamp(a, 7)
    emit_stats_row(a, store=False)
    stamp(a, 6)
    if DIST == 3:
        for k in range(4): g1_piece(a, k)
    a(f"""
    s_waitcnt vmcnt({4*(DIST-1)})
    s_barrier
    """)
    stamp(a, 1)
    L = {x: a.label("g1_" + x) for x in ("got", "spin", "again", "spun", "wait", "w0")}
    tail = []
    def reads_of(stage, step):
        if DIAG_NODS: return []
        slot = stage % 4
        hi, off = slot >> 1, 32768 * (slot & 1)
        dst = FS[step]
        r = [f"ds_read_b128 v[{dst}:{dst+3}], v{(VXH if hi else VXA)+step} offset:{off}"]
        for n in range(2):
            for j in range(2):
                q = dst + 4 + 4*n + 2*j
                r.append(f"ds_read_b64_tr_b16 v[{q}:{q+1}], v{(VWH if hi else VWA)+n} offset:{off + 4096*step + 1024*j}")
        return r
    def step(stage, k):
        nst = stage + (k >= 2)
        r = reads_of(nst, (k + 2) % 4) if nst < 8 else []
        a("s_waitcnt lgkmcnt(0)" if (stage == 7 and k == 3) else "s_waitcnt lgkmcnt(5)")
        g1_mfma(a, k, 0)
        for x in r[:3]: a(x)
        if stage + DIST < 8: g1_piece(a, k, True)
        g1_mfma(a, k, 1)
        for x in r[3:]: a(x)
    def wave0_only(name, body):
        lo, lb = a.label(name + "_out"), a.label(name + "_back")
        a(f"s_cmp_eq_u32 {w}, 0")
        a(f"s_cbranch_scc1 {lo}")
        a.lines.append(f"{lb}:")
        b = Asm(); b.nlabel = a.nlabel + 1000 * (len(tail) + 1)
        b.lines.append(f"{lo}:")
        body(b)
        b(f"s_branch {lb}")
        tail.append(b)
    for x in reads_of(0, 0) + reads_of(0, 1): a(x)
    VM = {3: [6, 7, 7, 6, 6, 7, 3], 2: [2, 3, 2, 2, 2, 2, 3]}[DIST]
    for st in range(8):
        if st == (5 if DIST == 3 else 6):
            emit_kv_loads(a)
        if st == 6:
            wave0_only("g1_poll1", lambda b: g1_poll(b))
        if st == 7:
            def req(b):
                ln, le = b.label("g1_n1"), b.label("g1_e1")
                b("s_waitcnt vmcnt(0)")
                g1_check(b, ln)
                b("s_mov_b32 s63, 1")
                g1_operand_dma(b)
                b(f"s_branch {le}")
                b.lines.append(f"{ln}:")
                g1_poll(b)
                b.lines.append(f"{le}:")
            wave0_only("g1_req", req)

        step(st, 0); step(st, 1)
        if st < 7:
            a(f"s_waitcnt vmcnt({VM[st]})")
            a("s_barrier")
        step(st, 2); step(st, 3)
        if st == 0:
            wave0_only("g1_nld", lambda b: nonce_load(b))
            emit_stats_store(a)
        if st == 3:
            def post(b):
                nonce_get(b)
                post_stats_flag(b)
            wave0_only("g1_post", post)
    stamp(a, 2)
    def req2(b):
        ln, le = b.label("g1_n2"), b.label("g1_e2")
        b(f"""
        s_cmp_eq_u32 s63, 1
        s_cbranch_scc1 {le}
        s_waitcnt vmcnt(0)
        """)
        g1_check(b, ln)
        b("s_mov_b32 s63, 2")
        g1_operand_dma(b)
        b(f"s_branch {le}")
        b.lines.append(f"{ln}:")
        g1_poll(b)
        b.lines.append(f"{le}:")
    lo, lb = a.label("g1_req2_out"), a.label("g1_req2_back")
    a(f"s_cmp_eq_u32 {w}, 0")
    a(f"s_cbranch_scc1 {lo}")
    a("s_waitcnt vmcnt(0)")
    a.lines.append(f"{lb}:")
    b = Asm(); b.nlabel = a.nlabel + 50000
    b.lines.append(f"{lo}:"); req2(b); b(f"s_branch {lb}"); tail.append(b)
    a("s_barrier")
    emit_kv_compute(a, 64)
    stamp(a, 3)
    def fin(b):
        l1, l2, lspin, lagain, lspun, le = [b.label("g1_f" + x) for x in ("1", "2", "spin", "again", "spun", "e")]
        b(f"""
        s_cmp_eq_u32 s63, 1
        s_cbranch_scc1 {l1}
        s_cmp_eq_u32 s63, 2
        s_cbranch_scc1 {l2}
        s_mov_b32 s54, 0
        s_waitcnt vmcnt(1)
        """)
        b.lines.append(f"{lspin}:")
        g1_check(b, lagain)
        b(f"s_branch {lspun}")
        b.lines.append(f"{lagain}:")
        b("s_sleep 1")
        g1_poll(b)
        b(f"""
        s_add_u32 s54, s54, 1
        s_waitcnt vmcnt(0)
        s_cmp_lt_u32 s54, 0x40000
        s_cbranch_scc1 {lspin}
        """)
        b.lines.append(f"{lspun}:")
        g1_operand_dma(b)
        b("s_waitcnt vmcnt(0)")
        b(f"s_branch {le}")
        b.lines.append(f"{l1}:")
        b("s_waitcnt vmcnt(1)")
        b(f"s_branch {le}")
        b.lines.append(f"{l2}:")
        b("s_waitcnt vmcnt(1)")
        b.lines.append(f"{le}:")
        if common.INSTR:
            b("s_waitcnt lgkmcnt(0)")
            b("s_lshl_b32 s86, s63, 16")
            b("s_add_u32 s86, s86, s54")
            b("s_add_u32 s86, s86, 1")
            b("s_add_u32 s86, s86, s66")
    wave0_only("g1_fin", fin)
    R = VK + 6
    a(f"""
    v_mov_b32 v{VK}, 1.0
    v_mov_b32 v{VK+1}, 1.0
    v_mov_b32 v{VK+2}, {hex(LN2)}
    v_mov_b32 v{VK+3}, {hex(LN2)}
    v_mov_b32 v{VK+4}, {hex(NEG2LN2)}
    v_mov_b32 v{VK+5}, {hex(NEG2LN2)}
    s_lshl_b32 s38, s32, 2
    s_add_u32 s38, s38, s36
    s_mul_i32 s38, s38, 112
    s_lshl_b32 s39, s33, 3
    s_add_u32 s38, s38, s39
    s_lshl_b32 s39, s37, 2
    s_add_u32 s38, s38, s39
    s_lshl_b32 s38, s38, 10
    s_add_u32 s38, s38, {WS_ACT}
    v_and_b32 v5, 31, v1
    s_lshl_b32 s39, s36, 8
    v_lshl_add_u32 v3, v5, 3, s39
    v_add_u32 v3, {OPS}, v3
    v_lshrrev_b32 v4, 5, v1
    s_lshl_b32 s39, s37, 8
    v_lshl_add_u32 v4, v4, 4, s39
    v_add_u32 v4, {OPS + 1024}, v4
    v_lshlrev_b32 v2, 4, v1
    s_barrier
    ds_read_b64 v[{VST}:{VST+1}], v3
    """)
    for g in range(7):
        a(f"ds_read_b128 v[{VC+4*g}:{VC+4*g+3}], v4 offset:{32*g}")
        a(f"ds_read_b128 v[{VB+4*g}:{VB+4*g+3}], v4 offset:{512+32*g}")
    a("s_waitcnt lgkmcnt(14)")
    a(f"v_mul_f32 v{R}, {hex(LOG2E)}, v{VST+1}")
    a(f"ds_read_b128 v[{VC+28}:{VC+31}], v4 offset:{32*7}")
    a(f"ds_read_b128 v[{VB+28}:{VB+31}], v4 offset:{512+32*7}")
    stamp(a, 4)
    def pr(r): return f"v[{r}:{r+1}]"
    T = 40
    OUT = 152
    for fr in range(4):
        prs = [(ACC + 8*fr + 2*p, VC + 8*fr + 2*p, VB + 8*fr + 2*p) for p in range(4)]
        Z = [T + 2*p for p in range(4)]
        E = [T + 8 + 2*p for p in range(4)]
        a(f"s_waitcnt lgkmcnt({12 - 4*fr})")
        for p, (ac, c, b) in enumerate(prs):
            a(f"v_pk_fma_f32 {pr(Z[p])}, {pr(VST)}, {pr(c)}, {pr(ac)} op_sel_hi:[0,1,1] neg_lo:[1,0,0] neg_hi:[1,0,0]")
        for p, (ac, c, b) in enumerate(prs):
            a(f"v_pk_fma_f32 {pr(Z[p])}, {pr(R)}, {pr(Z[p])}, {pr(b)} op_sel_hi:[0,1,1]")
        for p in range(4):
            a(f"v_exp_f32 v{E[p]}, v{Z[p]}")
            a(f"v_exp_f32 v{E[p]+1}, v{Z[p]+1}")
        for p in range(4):
            a(f"v_pk_add_f32 {pr(E[p])}, {pr(E[p])}, {pr(VK)}")
        for p in range(4):
            a(f"v_pk_fma_f32 {pr(E[p])}, {pr(E[p])}, {pr(E[p])}, {pr(VK)}")
        for p in range(4):
            a(f"v_rcp_f32 v{E[p]}, v{E[p]}")
            a(f"v_rcp_f32 v{E[p]+1}, v{E[p]+1}")
        for p in range(4):
            a(f"v_pk_fma_f32 {pr(E[p])}, {pr(E[p])}, {pr(VK+4)}, {pr(VK+2)}")
        for p in range(4):
            a(f"v_pk_mul_f32 {pr(Z[p])}, {pr(Z[p])}, {pr(E[p])}")
        o = OUT + 4*fr
        for p in range(4):
            a(f"v_cvt_pk_bf16_f32 v{o+p}, v{Z[p]}, v{Z[p]+1}")
        a(f"buffer_store_dwordx4 v[{o}:{o+3}], v2, s[{SRD_WS}:{SRD_WS+3}], s38 offen offset:{1024*fr}")
    stamp(a, 5)
    lend = a.label("g1_end")
    a(f"s_branch {lend}")
    for b in tail: a.lines += b.lines
    a.lines.append(f"{lend}:")

def emit_front(a, mapping=0, touch=True):
    emit_setup(a)
    lg, lfin = a.label("fr_gemm"), a.label("fr_fin")
    a(f"""
    s_cmp_ge_u32 s2, 32
    s_cbranch_scc1 {lg}
    s_mov_b32 s3, s2
    """)
    emit_prep_role(a, "s3")
    a(f"s_branch {lfin}")
    a.lines.append(f"{lg}:")
    a("s_sub_u32 s3, s2, 32")
    emit_gemm1_role(a, "s3", mapping, touch)
    a.lines.append(f"{lfin}:")

def front3_kernel(mapping=0, touch=True):
    a = Asm()
    kernel_begin(a, "front_kernel")
    a("""
    s_cmp_ge_u32 s2, 256
    s_cbranch_scc1 L_front_end
    """)
    stamp_begin(a)
    emit_front(a, mapping, touch)
    stamp_end(a, 0)
    a.lines.append("L_front_end:")
    a("s_endpgm")
    return a.text(), kernel_desc("front_kernel", 200, nsgpr(64))
```

```python
import sys
from common import *
import prep, gemm1, conv, gemm2
HDR = open("recurrent_scan__ssm_conv_h3__dense_activation_mish__prompt.s.ref").read().split("; Override launch geometry")[0]
def build_v1(mapping=0):
    ks = [("prep_kernel", prep.prep_kernel(), (32, 512, 67584)),
          ("gemm1_kernel", gemm1.gemm1_kernel(mapping), (224, 512, 131072)),
          ("conv_kernel", conv.conv_kernel(), (256, 256, 2*conv.CHSZ + 32768)),
          ("gemm2_kernel", gemm2.gemm2_kernel(), (256, 256, 131072))]
    s = HDR
    for n, _, (g, b, l) in ks:
        s += f"; @launch kernel={n} grid=({g},1,1) block=({b},1,1) lds={l}\n"
    s += '.amdgcn_target "amdgcn-amd-amdhsa--gfx950"\n.text\n'
    for n, (t, d), _ in ks: s += t
    s += '.section .rodata,"a"\n'
    for n, (t, d), _ in ks: s += d
    return s
def assemble_list(ks):
    s = HDR
    for n, _, (g, b, l) in ks:
        s += f"; @launch kernel={n} grid=({g},1,1) block=({b},1,1) lds={l}\n"
    s += '.amdgcn_target "amdgcn-amd-amdhsa--gfx950"\n.text\n'
    for n, (t, d), _ in ks: s += t
    s += '.section .rodata,"a"\n'
    for n, (t, d), _ in ks: s += d
    return s
def build_v2(mapping=0):
    import back
    return assemble_list([("prep_kernel", prep.prep_kernel(), (32, 512, 67584)),
          ("gemm1_kernel", gemm1.gemm1_kernel(mapping), (224, 512, 131072)),
          ("back_kernel", back.back_kernel(), (256, 512, 131072 + 2*conv.CHSZ))])
def build_v3(mapping=0):
    import back, front
    return assemble_list([("front_kernel", front.front_kernel(mapping), (256, 512, 131072 + 4096)),
          ("back_kernel", back.back_kernel(), (256, 512, 131072 + 2*conv.CHSZ))])
def build_v4(mapping=0):
    import back, front2
    return assemble_list([("front_kernel", front2.front2_kernel(mapping), (256, 512, front2.FRONT_LDS)),
          ("back_kernel", back.back_kernel(), (256, 512, 131072 + 2*conv.CHSZ))])
def build_v5(mapping=0, touch=True):
    import back, front3
    return assemble_list([("front_kernel", front3.front3_kernel(mapping, touch), (256, 512, front3.FRONT_LDS)),
          ("back_kernel", back.back_kernel(), (256, 512, 131072 + 2*conv.CHSZ))])
def build_v5nt(): return build_v5(0, False)
def _diag(**kw):
    import front3
    for k, v in kw.items(): setattr(front3, k, v)
    return build_v5(0, False)
def build_v5nodma(): return _diag(DIAG_NODMA=True)
def build_v5nomfma(): return _diag(DIAG_NOMFMA=True)
def build_v5nomfmads(): return _diag(DIAG_NOMFMA=True, DIAG_NODS=True)
def build_v5m1(): return build_v5(1, False)
def build_v5norot():
    import front3
    front3.ROTMASK = 0
    return build_v5(0, False)
def build_v6(mapping=0, touch=True, **kw):
    import back, front4
    for k, v in kw.items(): setattr(front4, k, v)
    return assemble_list([("front_kernel", front4.front3_kernel(mapping, touch), (256, 512, front4.FRONT_LDS)),
          ("back_kernel", back.back_kernel(), (256, 512, 131072 + 2*conv.CHSZ))])
def build_v6nt(): return build_v6(0, False)
def build_v6m1(): return build_v6(1, True)
def build_v6nodma(): return build_v6(0, True, DIAG_NODMA=True)
def build_v6norot(): return build_v6(0, True, ROTMASK=0)
def build_v7(mapping=0, touch=True, **kw):
    import back, front5
    for k, v in kw.items(): setattr(front5, k, v)
    return assemble_list([("front_kernel", front5.front3_kernel(mapping, touch), (256, 512, front5.FRONT_LDS)),
          ("back_kernel", back.back_kernel(), (256, 512, 131072 + 2*conv.CHSZ))])
def build_v7m1(): return build_v7(1, True)
def build_v7m1nt2():
    import back
    back.TOUCH2 = False
    return build_v7(1, True)
def build_v7nodma(): return build_v7(0, True, DIAG_NODMA=True)
def build_v7d2(): return build_v7(0, True, DIST=2)
def build_v7norot(): return build_v7(0, True, ROTMASK=0)
if __name__ == "__main__":
    out = sys.argv[1]
    import common
    common.INSTR = len(sys.argv) > 2 and sys.argv[2] in ("instr", "dbg")
    common.DBGMODE = len(sys.argv) > 2 and sys.argv[2] == "dbg"
    ver = sys.argv[3] if len(sys.argv) > 3 else "v1"
    open(out, "w").write(globals()["build_" + ver]())
```

```python
from common import *
import common
from conv import OB, UB, CHSZ

CV_BASE = 131072
EX_BASE = 98304
NST = 14
NW = None
TOUCH2 = True

S_WAVE, S_DB, S_TB, S_ACTF, S_N = 18, 34, 35, 19, 62
SRD_X, SRD_W2, SRD_WS, SRD_OUT, SRD_K = 20, 24, 28, 40, 44

def emit_prefetch(a):
    w = f"s{S_WAVE}"
    a(f"""
    s_and_b32 s52, s2, 7
    s_lshr_b32 s53, s2, 3
    s_lshr_b32 s{S_TB}, s53, 3
    s_lshl_b32 s52, s52, 2
    s_add_u32 s{S_TB}, s{S_TB}, s52
    s_and_b32 s{S_DB}, s53, 7
    s_mov_b32 s{SRD_K}, s50
    s_mov_b32 s{SRD_K+1}, s51
    s_mov_b32 s{SRD_K+2}, {D*S*2}
    s_mov_b32 s{SRD_K+3}, 0x00020000
    s_mov_b32 s{SRD_W2}, s48
    s_mov_b32 s{SRD_W2+1}, s49
    s_mov_b32 s{SRD_W2+2}, {F*D*2}
    s_mov_b32 s{SRD_W2+3}, 0x00020000
    s_lshr_b32 s52, {w}, 2                         ; ch
    s_bfe_u32 s53, {w}, 0x10001                    ; copy
    s_and_b32 s54, {w}, 1
    s_lshl_b32 s54, s54, 11                        ; 2048*half
    s_lshl_b32 s55, s53, 1
    v_lshl_add_u32 v183, v1, 4, s55                ; 16 l + 2 copy
    s_mul_i32 s53, s53, {OB}
    s_mul_i32 s55, s52, {CHSZ}
    s_add_u32 s53, s53, s55
    s_add_u32 s53, s53, s54
    s_add_u32 m0, s53, {CV_BASE + 32}
    s_lshl_b32 s53, s2, 1
    s_add_u32 s53, s53, s52
    s_lshl_b32 s53, s53, 12
    s_add_u32 s53, s53, s54
    buffer_load_dwordx4 v183, s[{SRD_K}:{SRD_K+3}], s53 offen lds
    buffer_load_dwordx4 v183, s[{SRD_K}:{SRD_K+3}], s53 offen offset:1024 lds
    v_lshrrev_b32 v183, 3, v1
    v_lshlrev_b32 v183, 10, v183
    v_bfe_u32 v184, v1, 4, 1
    v_lshlrev_b32 v184, 2, v184
    v_xor_b32 v184, v184, v1
    v_and_b32 v184, 7, v184
    v_lshl_add_u32 v183, v184, 4, v183
    s_lshl_b32 s52, {w}, 14
    s_lshl_b32 s53, s{S_DB}, 7
    s_add_u32 s52, s52, s53
    s_lshl_b32 s53, {w}, 11
    s_add_u32 s53, s53, 16384
    """)
    for st in range(3):
        a(f"""
        s_add_u32 m0, s53, {32768*st}
        s_add_u32 s54, s52, {131072*st}
        s_add_u32 s55, s52, {131072*st + 8192 - 1024}
        buffer_load_dwordx4 v183, s[{SRD_W2}:{SRD_W2+3}], s54 offen lds
        buffer_load_dwordx4 v183, s[{SRD_W2}:{SRD_W2+3}], s55 offen offset:1024 lds
        """)

def spin_flags(a, name, voff, vdst, nlanes, on_ready_first=None):
    lsp, ldn = a.label(name + "_spin"), a.label(name + "_done")
    a(f"s_mov_b32 s63, 0")
    a.lines.append(f"{lsp}:")
    a(f"""
    buffer_load_dword v{vdst}, v{voff}, s[{SRD_WS}:{SRD_WS+3}], 0 offen sc1
    s_add_u32 s63, s63, 1
    s_waitcnt vmcnt(0)
    v_cmp_ne_u32 vcc, s{S_N}, v{vdst}
    s_nop 1
    s_cmp_eq_u64 vcc, 0
    s_cbranch_scc1 {ldn}
    s_cmp_ge_u32 s63, 0x40000
    s_cbranch_scc1 {ldn}
    s_sleep 2
    s_branch {lsp}
    """)
    a.lines.append(f"{ldn}:")

def emit_entry(a):
    a(f"""
    s_load_dwordx2 s[4:5], s[0:1], {KA['out']}
    s_load_dwordx2 s[6:7], s[0:1], {KA['ssmD']}
    s_mov_b64 exec, -1
    v_and_b32 v1, 63, v0
    v_mov_b32 v2, {NW}
    ds_read_b32 v2, v2
    s_waitcnt lgkmcnt(0)
    v_readfirstlane_b32 s{S_N}, v2
    """)
    srd(a, SRD_OUT, 4, S*D*2)

VSA, VSW = 60, 61
def act_pieces(a):
    a(f"""
    s_add_u32 m0, s54, s57
    s_nop 0
    buffer_load_dwordx4 v{VSA}, s[{SRD_WS}:{SRD_WS+3}], s55 offen sc1 lds
    buffer_load_dwordx4 v{VSA}, s[{SRD_WS}:{SRD_WS+3}], s55 offen offset:1024 sc1 lds
    buffer_load_dwordx4 v{VSA}, s[{SRD_WS}:{SRD_WS+3}], s55 offen offset:2048 sc1 lds
    buffer_load_dwordx4 v{VSA}, s[{SRD_WS}:{SRD_WS+3}], s55 offen offset:3072 sc1 lds
    s_add_u32 s55, s55, 8192
    """)
def w2_pieces(a):
    a(f"""
    s_add_u32 m0, s54, s58
    s_add_u32 s59, s56, {8192-1024}
    s_add_u32 s60, s56, {2*(8192-1024)}
    buffer_load_dwordx4 v{VSW}, s[{SRD_W2}:{SRD_W2+3}], s56 offen lds
    buffer_load_dwordx4 v{VSW}, s[{SRD_W2}:{SRD_W2+3}], s59 offen offset:1024 lds
    s_add_u32 s59, s56, {3*(8192-1024)}
    buffer_load_dwordx4 v{VSW}, s[{SRD_W2}:{SRD_W2+3}], s60 offen offset:2048 lds
    buffer_load_dwordx4 v{VSW}, s[{SRD_W2}:{SRD_W2+3}], s59 offen offset:3072 lds
    s_add_u32 s56, s56, {128*1024}
    """)
def next_slot(a):
    a("s_add_u32 s54, s54, 32768")
    a("s_and_b32 s54, s54, 0x1ffff")

def emit_loader(a):
    lw = "s52"
    a(f"""
    s_sub_u32 {lw}, s{S_WAVE}, 4
    s_lshr_b32 s53, s2, 5
    s_lshl_b32 s53, s53, 7
    s_add_u32 s53, s53, {WS_KVF}
    v_and_b32 v2, 31, v1
    v_lshl_add_u32 v2, v2, 2, s53
    """)
    spin_flags(a, "ld_kvf", 2, 3, 32)
    stamp(a, 6)
    a(f"""
    s_lshr_b32 s53, {lw}, 1
    s_and_b32 s54, {lw}, 1
    s_lshl_b32 s54, s54, 11
    s_lshl_b32 s55, s2, 1
    s_add_u32 s55, s55, s53
    s_lshl_b32 s55, s55, 12
    s_add_u32 s55, s55, s54
    s_add_u32 s55, s55, {WS_KVT}
    s_mul_i32 s56, s53, {CHSZ}
    s_add_u32 s56, s56, s54
    s_add_u32 m0, s56, {CV_BASE + UB}
    v_lshlrev_b32 v2, 4, v1
    buffer_load_dwordx4 v2, s[{SRD_WS}:{SRD_WS+3}], s55 offen sc1 lds
    buffer_load_dwordx4 v2, s[{SRD_WS}:{SRD_WS+3}], s55 offen offset:1024 sc1 lds
    v_lshlrev_b32 v{VSA}, 4, v1
    s_lshl_b32 s53, s{S_TB}, 1
    s_lshr_b32 s54, {lw}, 1
    s_add_u32 s53, s53, s54
    s_mul_i32 s53, s53, 112
    s_and_b32 s54, {lw}, 1
    s_lshl_b32 s54, s54, 2
    s_add_u32 s53, s53, s54
    s_lshl_b32 s55, s53, 10
    s_add_u32 s55, s55, {WS_ACT}
    s_lshl_b32 s57, {lw}, 12
    s_add_u32 s58, s57, 16384
    v_lshrrev_b32 v2, 3, v1
    v_lshlrev_b32 v2, 10, v2
    v_bfe_u32 v3, v1, 4, 1
    v_lshlrev_b32 v3, 2, v3
    v_and_b32 v4, 7, v1
    v_xor_b32 v3, v3, v4
    v_lshl_add_u32 v{VSW}, v3, 4, v2
    s_lshl_b32 s56, {lw}, 15
    s_lshl_b32 s53, s{S_DB}, 7
    s_add_u32 s56, s56, s53
    s_add_u32 s56, s56, {3*131072}
    s_mov_b32 s54, 0
    s_waitcnt vmcnt(0)
    s_barrier
    """)
    lna = a.label("ld_noactf")
    a(f"""
    s_cmp_lg_u32 s{S_WAVE}, 4
    s_cbranch_scc1 {lna}
    s_cmp_eq_u32 s{S_ACTF}, -1
    s_cbranch_scc1 {lna}
    v_mov_b32 v2, s{S_ACTF}
    v_mov_b32 v3, s{S_N}
    s_mov_b64 exec, 1
    buffer_store_dword v3, v2, s[{SRD_WS}:{SRD_WS+3}], 0 offen sc1
    s_mov_b64 exec, -1
    """)
    a.lines.append(f"{lna}:")
    a(f"""
    s_lshr_b32 s53, s{S_TB}, 1
    s_lshl_b32 s53, s53, 7
    s_add_u32 s53, s53, {WS_ACTF}
    v_min_u32 v2, 13, v1
    v_lshl_add_u32 v2, v2, 2, s53
    """)
    spin_flags(a, "ld_actf", 2, 3, 14)
    stamp(a, 7)
    for st in range(3):
        act_pieces(a); next_slot(a)
    if TOUCH2:
        a(f"""
        s_lshr_b32 s59, s2, 3
        s_lshl_b32 s59, s59, 12
        v_and_b32 v2, 31, v1
        v_lshlrev_b32 v2, 7, v2
        v_lshrrev_b32 v3, 5, v1
        s_lshl_b32 s60, {lw}, 1
        v_add_u32 v3, s60, v3
        v_add_u32 v3, 3, v3
        v_lshlrev_b32 v3, 17, v3
        v_add3_u32 v2, v2, v3, s59
        buffer_load_dword v8, v2, s[{SRD_W2}:{SRD_W2+3}], 0 offen
        s_mov_b32 s60, {8 << 17}
        s_cmp_ge_u32 {lw}, 2
        s_cselect_b32 s60, 0x7fffffff, s60
        v_add_u32 v2, s60, v2
        buffer_load_dword v9, v2, s[{SRD_W2}:{SRD_W2+3}], 0 offen
        """)
    nt = 2 if TOUCH2 else 0
    a("s_barrier")
    def stage(vm, issue):
        a(f"s_waitcnt vmcnt({vm})")
        a("s_barrier")
        if issue:
            act_pieces(a); w2_pieces(a); next_slot(a)
    stage(8, True)
    stage(12, True)
    stage(16, True)
    lns = a.label("ld_nosig")
    a(f"""
    s_cmp_lg_u32 s{S_WAVE}, 4
    s_cbranch_scc1 {lns}
    s_lshr_b32 s53, s2, 5
    s_lshl_b32 s53, s53, 7
    s_and_b32 s59, s2, 31
    s_lshl_b32 s59, s59, 2
    s_add_u32 s53, s53, s59
    s_add_u32 s53, s53, {WS_Y2F}
    v_mov_b32 v2, s53
    v_mov_b32 v3, s{S_N}
    s_mov_b64 exec, 1
    buffer_store_dword v3, v2, s[{SRD_WS}:{SRD_WS+3}], 0 offen sc1
    s_mov_b64 exec, -1
    """)
    a.lines.append(f"{lns}:")
    loop = a.label("ld_loop")
    a("s_mov_b32 s61, 3")
    a.lines.append(f"{loop}:")
    stage(16, True)
    a(f"""
    s_add_u32 s61, s61, 1
    s_cmp_lt_u32 s61, {NST-3}
    s_cbranch_scc1 {loop}
    """)
    stage(16, False)
    stage(8, False)
    stage(0, False)

def emit_conv_compute(a):
    ACC = 8
    A0, B0, A1, B1 = 40, 72, 104, 136
    VA, VB = 168, 172
    p = "s2"
    lodd, lpad = a.label("cv_odd"), a.label("cv_pad")
    a(f"""
    s_lshr_b32 s52, s{S_WAVE}, 1                   ; ch
    s_and_b32 s53, s{S_WAVE}, 1                    ; half
    s_lshl_b32 s54, {p}, 1
    s_add_u32 s54, s54, s52
    s_lshl_b32 s55, s54, 12
    s_add_u32 s56, s50, s55
    s_addc_u32 s57, s51, 0
    s_load_dword s58, s[56:57], 0                  ; (K[0], K[1])
    s_waitcnt lgkmcnt(0)
    s_lshl_b32 s55, {p}, 2
    s_add_u32 s56, s6, s55
    s_addc_u32 s57, s7, 0
    s_load_dword s59, s[56:57], 0                  ; (D[d0], D[d0+1])
    s_mul_i32 s60, s52, {CHSZ}
    s_add_u32 s60, s60, {CV_BASE}
    v_lshlrev_b32 v2, 4, v1
    v_mov_b32 v4, 0
    v_mov_b32 v5, 0
    v_mov_b32 v6, 0
    v_mov_b32 v7, 0
    v_add_u32 v3, s60, v2
    s_cmp_eq_u32 s53, 1
    s_cbranch_scc1 {lodd}
    s_mov_b64 exec, 3
    ds_write_b128 v3, v[4:7]
    s_mov_b64 exec, 0x3fffffff
    ds_write_b128 v3, v[4:7] offset:{UB+4096}
    s_mov_b64 exec, -1
    s_branch {lpad}
    """)
    a.lines.append(f"{lodd}:")
    a(f"""
    s_lshl_b32 s58, s58, 16
    v_cmp_eq_u32 vcc, 1, v1
    v_mov_b32 v7, s58
    s_nop 0
    v_cndmask_b32 v7, 0, v7, vcc
    s_mov_b64 exec, 3
    ds_write_b128 v3, v[4:7] offset:{OB}
    s_mov_b64 exec, -1
    """)
    a.lines.append(f"{lpad}:")
    a(f"""
    v_and_b32 v2, 15, v1
    v_lshrrev_b32 v3, 4, v1
    v_lshlrev_b32 v4, 3, v3
    v_sub_u32 v4, v2, v4
    v_add_u32 v4, 9, v4
    v_lshlrev_b32 v4, 1, v4
    v_and_b32 v5, 1, v2
    v_cmp_eq_u32 vcc, 0, v5
    v_mov_b32 v6, {OB-2}
    s_lshl_b32 s61, s53, 8
    v_cndmask_b32 v6, 0, v6, vcc
    s_add_u32 s63, s60, 32
    s_add_u32 s63, s63, s61
    v_add3_u32 v{VA}, v4, v6, s63
    v_add_u32 v{VA+1}, 1024, v{VA}
    v_add_u32 v{VA+2}, 2048, v{VA}
    v_add_u32 v{VA+3}, 3072, v{VA}
    v_lshlrev_b32 v4, 5, v2
    v_lshl_add_u32 v4, v3, 4, v4
    s_add_u32 s63, s60, {UB + 4112 - 3584}
    s_add_u32 s63, s63, s61
    v_sub_u32 v{VB}, s63, v4
    """)
    for r in range(32):
        a(f"v_mov_b32 v{ACC+r}, 0")
    stamp(a, 6)
    a("""
    s_waitcnt vmcnt(0) lgkmcnt(0)
    s_barrier                                      ; B0
    """)
    stamp(a, 7)
    def reads(A, B):
        ins = []
        for mu in range(8):
            base = VA + (mu >> 1); o = 128*(mu & 1)
            ins.append(f"ds_read_b128 v[{B+4*mu}:{B+4*mu+3}], v{VB} offset:{512*(7-mu)}")
            ins.append(f"ds_read2_b32 v[{A+4*mu}:{A+4*mu+1}], v{base} offset0:{o} offset1:{o+1}")
            ins.append(f"ds_read2_b32 v[{A+4*mu+2}:{A+4*mu+3}], v{base} offset0:{o+2} offset1:{o+3}")
        return ins
    def advance():
        return [f"v_add_u32 v{r}, 64, v{r}" for r in (VA, VA+1, VA+2, VA+3, VB)]
    def mfmas(A, B):
        ins = []
        for q in range(8):
            for mu in range(q+1):
                n = q - mu
                ins.append(f"v_mfma_f32_16x16x32_bf16 v[{ACC+4*q}:{ACC+4*q+3}], v[{A+4*mu}:{A+4*mu+3}], v[{B+4*n}:{B+4*n+3}], v[{ACC+4*q}:{ACC+4*q+3}]")
        return ins
    def interleave(m, rd):
        k = 0
        for x in m:
            a(x)
            if k < len(rd):
                a(rd[k]); k += 1
        assert k == len(rd)
    for x in reads(A0, B0): a(x)
    loop, ldone = a.label("cv_loop"), a.label("cv_done")
    a("s_mov_b32 s61, 0")
    a.lines.append(f"{loop}:")
    a("s_waitcnt lgkmcnt(0)")
    interleave(mfmas(A0, B0), advance() + reads(A1, B1))
    a("s_waitcnt lgkmcnt(0)")
    a(f"""
    s_cmp_eq_u32 s61, 1
    s_cbranch_scc1 {ldone}
    s_mov_b32 s61, 1
    """)
    interleave(mfmas(A1, B1), advance() + reads(A0, B0))
    a(f"s_branch {loop}")
    a.lines.append(f"{ldone}:")
    for x in mfmas(A1, B1): a(x)
    stamp(a, 8)
    a(f"""
    s_lshl_b32 s61, s{S_WAVE}, 13
    s_add_u32 s61, s61, {EX_BASE}
    v_lshlrev_b32 v2, 4, v1
    v_add_u32 v3, s61, v2
    v_and_b32 v4, 15, v1
    v_lshrrev_b32 v5, 4, v1
    v_lshlrev_b32 v6, 5, v4
    v_lshl_add_u32 v6, v5, 3, v6
    s_lshl_b32 s63, s{S_WAVE}, 10
    s_sub_u32 s63, {CV_BASE + UB + 2*2044 - 512}, s63
    v_sub_u32 v7, s63, v6
    ds_read_b64 v[40:41], v7 offset:512
    ds_read_b64 v[42:43], v7
    ds_read_b64 v[44:45], v7 offset:{512+CHSZ}
    ds_read_b64 v[46:47], v7 offset:{CHSZ}
    s_nop 4
    """)
    for q in range(8):
        a(f"ds_write_b128 v3, v[{ACC+4*q}:{ACC+4*q+3}] offset:{1024*q}")
    a(f"""
    s_lshl_b32 s61, s{S_WAVE}, 11
    s_add_u32 s61, s61, {EX_BASE}
    v_add_u32 v3, s61, v2
    s_waitcnt lgkmcnt(0)
    s_barrier                                      ; B1
    """)
    Y = 48
    for w in range(4):
        for qq in range(2):
            a(f"ds_read_b128 v[{Y+8*w+4*qq}:{Y+8*w+4*qq+3}], v3 offset:{8192*w+1024*qq}")
    a(f"""
    s_lshl_b32 s56, s59, 16
    s_and_b32 s57, s59, 0xffff0000
    v_lshlrev_b32 v6, 6, v4
    v_lshl_add_u32 v6, v5, 4, v6
    s_lshl_b32 s61, {p}, 13
    s_lshl_b32 s53, s{S_WAVE}, 11
    s_add_u32 s61, s61, s53
    s_add_u32 s61, s61, {WS_Y2}
    s_waitcnt lgkmcnt(0)
    """)
    T = 80
    for qq in range(2):
        for ch in range(2):
            y0, y1 = Y + 8*(2*ch) + 4*qq, Y + 8*(2*ch+1) + 4*qq
            u = 40 + 2*qq + 4*ch
            sD = 56 + ch
            r = T + 8*ch
            for k in range(4):
                a(f"v_add_f32 v{r+k}, v{y0+k}, v{y1+k}")
            a(f"v_and_b32 v{r+4}, 0xffff0000, v{u+1}")
            a(f"v_lshlrev_b32 v{r+5}, 16, v{u+1}")
            a(f"v_and_b32 v{r+6}, 0xffff0000, v{u}")
            a(f"v_lshlrev_b32 v{r+7}, 16, v{u}")
            for k in range(4):
                a(f"v_fmac_f32 v{r+k}, s{sD}, v{r+4+k}")
        o = 96 + 4*qq
        for k in range(4):
            a(f"v_cvt_pk_bf16_f32 v{o+k}, v{T+k}, v{T+8+k}")
        a(f"buffer_store_dwordx4 v[{o}:{o+3}], v6, s[{SRD_WS}:{SRD_WS+3}], s61 offen offset:{1024*qq} sc1")

G_ACC = 8
FP, FQ = 24, 32
VX, VY, VST = 104, 112, 120
VA2, VW2, VOFF, VYO = 122, 123, 124, 125

def g2_read(a, dst, step):
    a(f"ds_read_b128 v[{dst}:{dst+3}], v{VA2} offset:{1024*step}")
    a(f"ds_read_b64_tr_b16 v[{dst+4}:{dst+5}], v{VW2} offset:{2048*step}")
    a(f"ds_read_b64_tr_b16 v[{dst+6}:{dst+7}], v{VW2} offset:{2048*step+1024}")
def g2_mfma(a, src):
    a(f"v_mfma_f32_32x32x16_bf16 v[{G_ACC}:{G_ACC+15}], v[{src+4}:{src+7}], v[{src}:{src+3}], v[{G_ACC}:{G_ACC+15}]")

def emit_gemm2_compute(a):
    w = f"s{S_WAVE}"
    a(f"""
    s_and_b32 s52, {w}, 1                          ; ti
    s_lshr_b32 s53, {w}, 1                         ; di
    v_and_b32 v5, 31, v1
    v_lshrrev_b32 v6, 5, v1
    s_lshl_b32 s54, s{S_TB}, 6
    s_lshl_b32 s55, s52, 5
    s_add_u32 s54, s54, s55
    v_add_u32 v2, s54, v5                          ; token
    s_lshl_b32 s54, s{S_DB}, 6
    s_lshl_b32 s55, s53, 5
    s_add_u32 s54, s54, s55
    v_lshl_add_u32 v3, v6, 4, s54
    v_lshlrev_b32 v4, 10, v2
    v_lshl_add_u32 v{VOFF}, v3, 1, v4
    buffer_load_dwordx4 v[{VX}:{VX+3}], v{VOFF}, s[{SRD_X}:{SRD_X+3}], 0 offen
    buffer_load_dwordx4 v[{VX+4}:{VX+7}], v{VOFF}, s[{SRD_X}:{SRD_X+3}], 0 offen offset:16
    v_lshlrev_b32 v4, 3, v2
    buffer_load_dwordx2 v[{VST}:{VST+1}], v4, s[{SRD_WS}:{SRD_WS+3}], 0 offen offset:{WS_STATS} sc1
    v_lshlrev_b32 v4, 12, v3
    v_lshl_add_u32 v{VYO}, v2, 2, v4
    s_lshl_b32 s54, s52, 13
    v_lshl_add_u32 v{VA2}, v1, 4, s54
    v_bfe_u32 v2, v1, 2, 2
    v_bfe_u32 v3, v1, 4, 1
    v_and_b32 v4, 1, v1
    v_lshl_add_u32 v3, v4, 1, v3
    v_lshrrev_b32 v4, 1, v2
    v_xor_b32 v4, s53, v4
    v_lshl_add_u32 v3, v4, 2, v3
    v_bfe_u32 v4, v1, 1, 1
    v_lshlrev_b32 v4, 3, v4
    v_lshl_add_u32 v3, v3, 4, v4
    v_lshl_add_u32 v2, v6, 2, v2
    v_lshl_add_u32 v3, v2, 7, v3
    v_add_u32 v{VW2}, 16384, v3
    """)
    for r in range(16):
        a(f"v_mov_b32 v{G_ACC+r}, 0")
    a(f"""
    s_mov_b32 s54, 0                               ; stage
    s_mov_b32 s55, 0
    s_mov_b32 s56, 32768
    s_mov_b32 s57, 0
    s_lshl_b32 s58, s{S_DB}, 7
    s_add_u32 s58, s58, {WS_Y2F}
    v_and_b32 v126, 31, v1
    v_lshl_add_u32 v126, v126, 2, s58
    s_barrier                                      ; S_0
    """)
    stamp(a, 9)
    g2_read(a, FP, 0)
    loop, llast, lnodrain, lnopoll, lnochk = [a.label(x) for x in ("g2_loop", "g2_last", "g2_nodrain", "g2_nopoll", "g2_nochk")]
    def y2_loads():
        a(f"s_mov_b32 s59, {WS_Y2}")
        for k in range(8):
            a(f"buffer_load_dword v{VY+k}, v{VYO}, s[{SRD_WS}:{SRD_WS+3}], s59 offen sc1")
            if k < 7: a("s_add_u32 s59, s59, 8192")
    a.lines.append(f"{loop}:")
    cur, nxt = FP, FQ
    for s in range(7):
        g2_read(a, nxt, s+1); a("s_waitcnt lgkmcnt(3)"); g2_mfma(a, cur)
        cur, nxt = nxt, cur
    a(f"""
    s_cmp_eq_u32 s54, {NST-1}
    s_cbranch_scc1 {llast}
    s_cmp_lg_u32 s54, 1
    s_cbranch_scc1 {lnodrain}
    s_waitcnt vmcnt(0)
    """)
    a.lines.append(f"{lnodrain}:")
    a(f"""
    s_cmp_lg_u32 s54, 9
    s_cbranch_scc1 {lnopoll}
    buffer_load_dword v127, v126, s[{SRD_WS}:{SRD_WS+3}], 0 offen sc1
    """)
    a.lines.append(f"{lnopoll}:")
    a(f"""
    s_cmp_lg_u32 s54, 11
    s_cbranch_scc1 {lnochk}
    s_waitcnt vmcnt(0)
    v_cmp_ne_u32 vcc, s{S_N}, v127
    s_nop 1
    s_cmp_eq_u64 vcc, 0
    s_cbranch_scc0 {lnochk}
    s_mov_b32 s57, 1
    """)
    y2_loads()
    a.lines.append(f"{lnochk}:")
    a(f"""
    s_waitcnt lgkmcnt(0)
    s_barrier                                      ; S_(s+1)
    s_add_u32 s55, s55, 32768
    s_and_b32 s55, s55, 0x1ffff
    s_cmp_eq_u32 s55, 0
    s_cselect_b32 s59, {(-98304) & 0xffffffff}, s56
    s_add_u32 s54, s54, 1
    v_add_u32 v{VA2}, s59, v{VA2}
    v_add_u32 v{VW2}, s59, v{VW2}
    """)
    g2_read(a, nxt, 0)
    g2_mfma(a, cur)
    a(f"s_branch {loop}")
    a.lines.append(f"{llast}:")
    a("s_waitcnt lgkmcnt(0)")
    g2_mfma(a, cur)
    stamp(a, 5)
    lgot = a.label("g2_got")
    a(f"""
    s_cmp_eq_u32 s57, 1
    s_cbranch_scc1 {lgot}
    """)
    spin_flags(a, "g2_y2f", 126, 127, 32)
    y2_loads()
    a.lines.append(f"{lgot}:")
    def pr(r): return f"v[{r}:{r+1}]"
    K1, KL = 40, 42
    XF, SF, E, T = 44, 60, 24, 76
    a(f"""
    v_mov_b32 v{K1}, 1.0
    v_mov_b32 v{K1+1}, 1.0
    v_mov_b32 v{KL}, {hex(LOG2E | 0x80000000)}
    v_mov_b32 v{KL+1}, {hex(LOG2E | 0x80000000)}
    """)
    for k in range(8):
        a(f"v_pk_mul_f32 {pr(E+2*k)}, {pr(G_ACC+2*k)}, {pr(KL)}")
    for k in range(16):
        a(f"v_exp_f32 v{E+k}, v{E+k}")
    for k in range(8):
        a(f"v_pk_add_f32 {pr(E+2*k)}, {pr(E+2*k)}, {pr(K1)}")
    for k in range(16):
        a(f"v_rcp_f32 v{E+k}, v{E+k}")
    for k in range(8):
        a(f"v_pk_mul_f32 {pr(E+2*k)}, {pr(E+2*k)}, {pr(G_ACC+2*k)}")
    a("s_waitcnt vmcnt(0)")
    for k in range(8):
        a(f"v_lshlrev_b32 v{XF+2*k}, 16, v{VX+k}")
        a(f"v_and_b32 v{XF+2*k+1}, 0xffff0000, v{VX+k}")
    for k in range(8):
        a(f"v_pk_add_f32 {pr(SF+2*k)}, {pr(XF+2*k)}, {pr(VST)} op_sel_hi:[1,0] neg_lo:[0,1] neg_hi:[0,1]")
    for k in range(8):
        a(f"v_pk_mul_f32 {pr(SF+2*k)}, {pr(SF+2*k)}, {pr(VST)} op_sel:[0,1] op_sel_hi:[1,1]")
    for k in range(8):
        a(f"v_lshlrev_b32 v{T+2*k}, 16, v{VY+k}")
        a(f"v_and_b32 v{T+2*k+1}, 0xffff0000, v{VY+k}")
    for k in range(8):
        a(f"v_pk_mul_f32 {pr(SF+2*k)}, {pr(SF+2*k)}, {pr(T+2*k)}")
    for k in range(8):
        a(f"v_pk_fma_f32 {pr(E+2*k)}, {pr(E+2*k)}, {pr(SF+2*k)}, {pr(XF+2*k)}")
    for k in range(8):
        a(f"v_cvt_pk_bf16_f32 v{VX+k}, v{E+2*k}, v{E+2*k+1}")
    a(f"buffer_store_dwordx4 v[{VX}:{VX+3}], v{VOFF}, s[{SRD_OUT}:{SRD_OUT+3}], 0 offen")
    a(f"buffer_store_dwordx4 v[{VX+4}:{VX+7}], v{VOFF}, s[{SRD_OUT}:{SRD_OUT+3}], 0 offen offset:16")

def emit_back(a):
    emit_entry(a)
    lload, lend = a.label("bk_loader"), a.label("bk_end")
    a(f"""
    s_cmp_ge_u32 s{S_WAVE}, 4
    s_cbranch_scc1 {lload}
    """)
    emit_conv_compute(a)
    emit_gemm2_compute(a)
    a(f"s_branch {lend}")
    a.lines.append(f"{lload}:")
    emit_loader(a)
    a.lines.append(f"{lend}:")
```

```python
from common import *
import common
from gemm1 import emit_wgmap_gemm1

RING = 0
KT   = 131072
VT   = KT + 72*128
TR   = VT + 64*128
OPS  = 157184
CRED = OPS + 2048
NW   = CRED + 2048
FRONT_LDS = NW + 256
MERGED = False
HOOK_PREFETCH = None

ROTMASK = 7
DIAG_NODMA = False
DIAG_NOMFMA = False
DIAG_NODS = False
DIST = 3
TOUCH = True
S_WAVE, S_ROLE, S_N = 18, 19, 62
SRD_X, SRD_W1, SRD_WS, SRD_DBG = 20, 24, 28, 56
VN = 151

def nonce_publish(a):
    l = a.label("nonce")
    a(f"""
    s_lshl_b32 s52, s2, 3
    s_add_u32 s52, s52, s{S_WAVE}
    s_cmp_lg_u32 s52, 1
    s_cbranch_scc1 {l}
    s_memrealtime s[52:53]
    s_waitcnt lgkmcnt(0)
    s_or_b32 s52, s52, 1
    v_mov_b32 v2, s52
    v_mov_b32 v3, 0
    s_mov_b64 exec, 1
    buffer_store_dword v2, v3, s[{SRD_DBG}:{SRD_DBG+3}], 0 offen sc1
    s_mov_b64 exec, -1
    """)
    a.lines.append(f"{l}:")

def nonce_load(a):
    a(f"v_mov_b32 v2, 0")
    a(f"buffer_load_dword v{VN}, v2, s[{SRD_DBG}:{SRD_DBG+3}], 0 offen sc1")

def nonce_get(a):
    lspin, ldone = a.label("nonce_spin"), a.label("nonce_done")
    a(f"s_mov_b32 s54, 0")
    a.lines.append(f"{lspin}:")
    a(f"""
    v_readfirstlane_b32 s{S_N}, v{VN}
    s_add_u32 s54, s54, 1
    s_cmp_lg_u32 s{S_N}, 0
    s_cbranch_scc1 {ldone}
    s_cmp_ge_u32 s54, 0x40000
    s_cbranch_scc1 {ldone}
    s_sleep 1
    """)
    nonce_load(a)
    a(f"""
    s_waitcnt vmcnt(0)
    s_branch {lspin}
    """)
    a.lines.append(f"{ldone}:")
    if MERGED:
        a(f"""
        v_mov_b32 v2, {NW}
        v_mov_b32 v3, s{S_N}
        ds_write_b32 v2, v3
        s_waitcnt lgkmcnt(0)
        """)

def post_kv_flag(a):
    a(f"""
    s_and_b32 s52, s2, 7
    s_lshl_b32 s52, s52, 12
    s_lshr_b32 s53, s2, 3
    s_lshl_b32 s53, s53, 7
    s_add_u32 s52, s52, s53
    s_add_u32 s52, s52, {WS_KVF}
    """)
    flag_post(a, "s52")

def flag_post(a, off_sreg):
    a(f"""
    v_mov_b32 v2, {off_sreg}
    v_mov_b32 v3, s{S_N}
    s_mov_b64 exec, 1
    buffer_store_dword v3, v2, s[{SRD_WS}:{SRD_WS+3}], 0 offen sc1
    s_mov_b64 exec, -1
    """)

def emit_setup(a):
    a(f"""
    s_load_dwordx4 s[4:7], s[0:1], {KA['q']}       ; q, k
    s_load_dwordx4 s[8:11], s[0:1], {KA['v']}      ; v, shift
    s_load_dwordx4 s[12:15], s[0:1], {KA['w1']}    ; w1, b1
    s_load_dwordx4 s[48:51], s[0:1], {KA['dbg']}
    v_and_b32 v1, 63, v0
    v_lshrrev_b32 v2, 6, v0
    s_nop 0
    v_readfirstlane_b32 s{S_WAVE}, v2
    s_lshl_b32 s52, s2, 3
    s_add_u32 s52, s52, s{S_WAVE}
    s_lshl_b32 s52, s52, 10
    v_lshl_add_u32 v5, v1, 4, s52
    s_waitcnt lgkmcnt(0)
    """)
    srd(a, SRD_X, 4, S*D*2)
    a(f"buffer_load_dwordx4 v[112:115], v5, s[{SRD_X}:{SRD_X+3}], 0 offen")
    srd(a, SRD_DBG, 48, 256)
    nonce_publish(a)
    srd(a, SRD_W1, 12, D*F*2)
    srd(a, SRD_WS, 50, WS_SIZE)
    a(f"""
    s_load_dwordx2 s[48:49], s[0:1], {KA['w2']}
    s_load_dwordx2 s[50:51], s[0:1], {KA['ssmk']}
    """)

def emit_touch(a):
    l, lx, ld = a.label("tch_skip"), a.label("tch_x"), a.label("tch_done")
    w = f"s{S_WAVE}"
    a(f"""
    s_lshr_b32 s52, s2, 3                          ; member 0..31
    s_cmp_ge_u32 s52, 28
    s_cbranch_scc1 {lx}
    s_lshl_b32 s53, s52, 6
    v_add_u32 v2, s53, v1                          ; i = 64 m + l
    s_mov_b32 s53, 0x9249250
    v_mul_hi_u32 v3, v2, s53                       ; i / 28
    v_mul_u32_u24 v4, 28, v3
    v_sub_u32 v4, v2, v4                           ; i % 28
    s_lshl_b32 s53, {w}, 6
    v_add_u32 v3, s53, v3
    v_mul_u32_u24 v3, {F*2}, v3
    v_lshl_add_u32 v3, v4, 7, v3
    buffer_load_dword v192, v3, s[{SRD_W1}:{SRD_W1+3}], 0 offen
    s_branch {ld}
    """)
    a.lines.append(f"{lx}:")
    a(f"""
    s_sub_u32 s52, s52, 28
    s_lshl_b32 s52, s52, 6
    s_and_b32 s53, s2, 7
    s_lshl_b32 s53, s53, 8
    s_add_u32 s52, s52, s53
    v_add_u32 v2, s52, v1
    v_lshlrev_b32 v2, 10, v2
    s_lshl_b32 s53, {w}, 7
    v_add_u32 v2, s53, v2
    buffer_load_dword v192, v2, s[{SRD_X}:{SRD_X+3}], 0 offen
    """)
    a.lines.append(f"{ld}:")

def emit_stats_row(a, store=True):
    A = 118
    a(f"""
    v_mov_b32 v117, 0x3f803f80
    s_nop 0
    v_dot2_f32_bf16 v{A}, v112, v117, 0
    v_dot2_f32_bf16 v{A+1}, v112, v112, 0
    v_dot2_f32_bf16 v{A+2}, v113, v117, 0
    v_dot2_f32_bf16 v{A+3}, v113, v113, 0
    v_dot2_f32_bf16 v{A}, v114, v117, v{A}
    v_dot2_f32_bf16 v{A+1}, v114, v114, v{A+1}
    v_dot2_f32_bf16 v{A+2}, v115, v117, v{A+2}
    v_dot2_f32_bf16 v{A+3}, v115, v115, v{A+3}
    s_nop 2
    v_add_f32 v{A}, v{A}, v{A+2}
    v_add_f32 v{A+1}, v{A+1}, v{A+3}
    """)
    for mod in ("quad_perm:[1,0,3,2]", "quad_perm:[2,3,0,1]", "row_half_mirror", "row_mirror"):
        a("s_nop 1")
        a(f"v_add_f32_dpp v{A}, v{A}, v{A} {mod} row_mask:0xf bank_mask:0xf")
        a(f"v_add_f32_dpp v{A+1}, v{A+1}, v{A+1} {mod} row_mask:0xf bank_mask:0xf")
    for op in ("v_permlane16_swap_b32", "v_permlane32_swap_b32"):
        a(f"v_mov_b32 v{A+2}, v{A}")
        a(f"v_mov_b32 v{A+3}, v{A+1}")
        a("s_nop 1")
        a(f"{op} v{A}, v{A+2}")
        a(f"{op} v{A+1}, v{A+3}")
        a("s_nop 1")
        a(f"v_add_f32 v{A}, v{A}, v{A+2}")
        a(f"v_add_f32 v{A+1}, v{A+1}, v{A+3}")
    a(f"""
    v_mul_f32 v{A}, 0x3b000000, v{A}               ; mean
    v_mul_f32 v{A+1}, 0x3b000000, v{A+1}
    v_fma_f32 v{A+1}, -v{A}, v{A}, v{A+1}          ; var
    v_max_f32 v{A+1}, 0, v{A+1}
    """)
    bf16_round(a, A+1, A+1)
    a(f"v_add_f32 v{A+1}, 0x3727c5ac, v{A+1}")
    bf16_round(a, A+1, A+1)
    a(f"v_sqrt_f32 v{A+1}, v{A+1}")
    a("s_nop 0")
    bf16_round(a, A+1, A+1)
    a(f"v_rcp_f32 v{A+3}, v{A+1}")
    bf16_round(a, A+2, A)
    if store: emit_stats_store(a)

def emit_stats_store(a):
    A = 118
    a(f"""
    s_lshl_b32 s52, s2, 3
    s_add_u32 s52, s52, s{S_WAVE}
    s_lshl_b32 s52, s52, 3
    v_mov_b32 v2, s52
    s_mov_b64 exec, 1
    buffer_store_dwordx2 v[{A+2}:{A+3}], v2, s[{SRD_WS}:{SRD_WS+3}], 0 offen offset:{WS_STATS} sc1
    s_mov_b64 exec, -1
    """)

def post_stats_flag(a):
    a(f"""
    s_lshr_b32 s52, s2, 4
    s_lshl_b32 s52, s52, 7
    s_and_b32 s53, s2, 15
    s_lshl_b32 s53, s53, 2
    s_add_u32 s52, s52, s53
    s_add_u32 s52, s52, {WS_STF}
    """)
    flag_post(a, "s52")

def emit_kv_loads(a):
    a(f"""
    s_lshr_b32 s52, s2, 3                          ; tb64
    s_and_b32 s53, s2, 7                           ; cb64
    v_lshrrev_b32 v3, 3, v1
    v_and_b32 v4, 7, v1
    s_lshl_b32 s54, s52, 6
    s_lshl_b32 s55, s{S_WAVE}, 3
    s_add_u32 s54, s54, s55
    v_add_u32 v5, s54, v3
    v_lshlrev_b32 v5, 10, v5
    v_lshl_add_u32 v5, v4, 4, v5
    s_lshl_b32 s55, s53, 7
    v_add_u32 v5, s55, v5
    v_subrev_u32 v6, 8192, v5
    v_and_b32 v7, 31, v0
    v_lshlrev_b32 v7, 4, v7
    s_lshl_b32 s54, s53, 9
    v_add_u32 v7, s54, v7
    s_mov_b32 s60, s6
    s_mov_b32 s61, s7
    """)
    a(f"""
    s_mov_b32 s4, s60
    s_mov_b32 s5, s61
    s_mov_b32 s6, {S*D*2}
    s_mov_b32 s7, 0x00020000
    s_lshl_b32 s54, s{S_WAVE}, 10
    s_add_u32 m0, s54, {KT}
    s_cmp_lg_u32 s{S_WAVE}, 7
    buffer_load_dwordx4 v6, s[4:7], 0 offen lds
    """)
    l = a.label("kv_no9")
    a(f"""
    s_cbranch_scc1 {l}
    s_mov_b32 m0, {KT + 8192}
    s_nop 0
    buffer_load_dwordx4 v5, s[4:7], 0 offen lds
    """)
    a.lines.append(f"{l}:")
    a(f"""
    s_mov_b32 s4, s8
    s_mov_b32 s5, s9
    s_add_u32 m0, s54, {VT}
    s_nop 0
    buffer_load_dwordx4 v5, s[4:7], 0 offen lds
    s_mov_b32 s4, s10
    s_mov_b32 s5, s11
    s_mov_b32 s6, {D*4*2}
    buffer_load_dwordx4 v[124:127], v7, s[4:7], 0 offen
    """)

def emit_kv_compute(a, B):
    K, V, SS, KV, RK, RV, O = B, B+14, B+22, B+30, B+38, B+46, B+50
    def pr(r): return f"v[{r}:{r+1}]"
    a(f"""
    v_and_b32 v2, 31, v0
    v_lshrrev_b32 v3, 5, v0
    v_lshlrev_b32 v4, 9, v3
    v_lshl_add_u32 v4, v2, 2, v4
    v_add_u32 v5, {KT + 5*128}, v4
    v_add_u32 v6, {VT}, v4
    """)
    for i in range(7):
        a(f"ds_read_b32 v{RK+i}, v5 offset:{128*i}")
    for i in range(4):
        a(f"ds_read_b32 v{RV+i}, v6 offset:{128*i}")
    a(f"""
    v_lshlrev_b32 v{SS+0}, 16, v124
    v_lshlrev_b32 v{SS+1}, 16, v126
    v_and_b32 v{SS+2}, 0xffff0000, v124
    v_and_b32 v{SS+3}, 0xffff0000, v126
    v_lshlrev_b32 v{SS+4}, 16, v125
    v_lshlrev_b32 v{SS+5}, 16, v127
    v_and_b32 v{SS+6}, 0xffff0000, v125
    v_and_b32 v{SS+7}, 0xffff0000, v127
    v_sub_u32 v3, 15, v3
    v_lshrrev_b32 v4, 1, v3
    v_and_b32 v5, 7, v2
    v_xor_b32 v4, v4, v5
    v_lshlrev_b32 v4, 4, v4
    v_and_b32 v3, 1, v3
    v_lshl_add_u32 v4, v3, 3, v4
    v_lshl_add_u32 v4, v2, 8, v4
    v_add_u32 v4, {TR}, v4
    s_waitcnt lgkmcnt(4)
    """)
    for i in range(7):
        a(f"v_lshlrev_b32 v{K+2*i}, 16, v{RK+i}")
        a(f"v_and_b32 v{K+2*i+1}, 0xffff0000, v{RK+i}")
    for tt in range(4):
        a(f"v_pk_mul_f32 {pr(KV+2*tt)}, {pr(K+2*tt)}, {pr(SS+6)}")
    a("s_waitcnt lgkmcnt(0)")
    for i in range(4):
        a(f"v_lshlrev_b32 v{V+2*i}, 16, v{RV+i}")
        a(f"v_and_b32 v{V+2*i+1}, 0xffff0000, v{RV+i}")
    for n, off in ((4, 1), (2, 2), (0, 3)):
        for tt in range(4):
            a(f"v_pk_fma_f32 {pr(KV+2*tt)}, {pr(K+2*(tt+off))}, {pr(SS+n)}, {pr(KV+2*tt)}")
    for tt in range(4):
        a(f"v_pk_mul_f32 {pr(KV+2*tt)}, {pr(KV+2*tt)}, {pr(V+2*tt)}")
    for ch in range(2):
        a(f"v_cvt_pk_bf16_f32 v{O+2*ch}, v{KV+6+ch}, v{KV+4+ch}")
        a(f"v_cvt_pk_bf16_f32 v{O+1+2*ch}, v{KV+2+ch}, v{KV+ch}")
        a(f"ds_write_b64 v4, v[{O+2*ch}:{O+1+2*ch}] offset:{128*ch}")
    a("s_waitcnt lgkmcnt(0)")
    a("s_barrier")
    a(f"""
    v_lshrrev_b32 v2, 3, v1
    s_lshl_b32 s54, s{S_WAVE}, 3
    v_add_u32 v2, s54, v2
    v_lshrrev_b32 v3, 1, v2
    v_and_b32 v3, 7, v3
    v_and_b32 v4, 7, v1
    v_xor_b32 v3, v3, v4
    v_lshlrev_b32 v3, 4, v3
    v_lshl_add_u32 v3, v2, 7, v3
    v_add_u32 v3, {TR}, v3
    ds_read_b128 v[{K}:{K+3}], v3
    s_lshr_b32 s52, s2, 3
    s_and_b32 s53, s2, 7
    s_lshl_b32 s53, s53, 6
    v_add_u32 v2, s53, v2
    v_lshlrev_b32 v2, 12, v2
    v_lshl_add_u32 v2, v4, 4, v2
    s_lshl_b32 s52, s52, 7
    s_sub_u32 s52, {WS_KVT + 2*1984}, s52
    s_waitcnt lgkmcnt(0)
    buffer_store_dwordx4 v[{K}:{K+3}], v2, s[{SRD_WS}:{SRD_WS+3}], s52 offen sc1
    """)

def emit_prep_role(a, j):
    w = f"s{S_WAVE}"
    a(f"""
    s_cmp_lt_u32 {j}, 28
    s_cselect_b32 s63, s{SRD_W1+2}, 0
    v_lshrrev_b32 v3, 3, v1
    v_and_b32 v4, 7, v1
    s_lshl_b32 s53, {w}, 6
    v_add_u32 v7, s53, v3
    v_mul_u32_u24 v7, {F*2}, v7
    v_bfe_u32 v2, v1, 4, 1
    v_lshlrev_b32 v2, 2, v2
    v_xor_b32 v2, v2, v4
    v_lshl_add_u32 v7, v2, 4, v7
    s_lshl_b32 s53, {j}, 7
    s_lshl_b32 s54, {w}, 13
    s_mov_b32 s36, s{SRD_W1}
    s_mov_b32 s37, s{SRD_W1+1}
    s_mov_b32 s38, s63
    s_mov_b32 s39, 0x00020000
    """)
    for it in range(8):
        a(f"s_add_u32 m0, s54, {RING + 1024*it}")
        a(f"s_add_u32 s55, s53, {8*F*2*it}")
        a(f"buffer_load_dwordx4 v7, s[36:39], s55 offen lds")
    srd(a, 40, 14, F*2)
    a(f"""
    s_lshl_b32 s53, {j}, 6
    v_add_lshl_u32 v104, v1, s53, 1
    buffer_load_ushort v105, v104, s[40:43], 0 offen
    s_waitcnt vmcnt(9)
    """)
    emit_stats_row(a)
    stamp(a, 0)
    a(f"""
    v_mov_b32 v60, 0x3f803f80
    v_bfe_u32 v2, v1, 2, 2
    v_bfe_u32 v3, v1, 4, 1
    v_lshrrev_b32 v5, 5, v1
    v_bfe_u32 v6, v1, 1, 1
    v_lshl_add_u32 v6, v3, 1, v6
    v_lshrrev_b32 v7, 1, v2
    v_lshl_add_u32 v2, v5, 2, v2
    v_lshlrev_b32 v2, 7, v2
    v_and_b32 v3, 1, v1
    v_lshl_add_u32 v2, v3, 3, v2
    s_lshl_b32 s53, {w}, 13
    v_add_u32 v2, s53, v2
    v_lshl_add_u32 v3, v7, 2, v6
    v_lshl_add_u32 v8, v3, 4, v2
    v_xor_b32 v3, 4, v3
    v_lshl_add_u32 v9, v3, 4, v2
    v_mov_b32 v61, v60
    v_mov_b32 v62, v60
    v_mov_b32 v63, v60
    s_waitcnt vmcnt(2)
    """)
    stamp(a, 1)
    FR = 10
    for s in range(4):
        for di in range(2):
            r = FR + 8*s + 4*di
            a(f"ds_read_b64_tr_b16 v[{r}:{r+1}], v{8+di} offset:{RING + 2048*s}")
            a(f"ds_read_b64_tr_b16 v[{r+2}:{r+3}], v{8+di} offset:{RING + 2048*s+1024}")
        if s == 1: a("s_waitcnt lgkmcnt(4)")
    C0 = 164
    a("s_waitcnt lgkmcnt(0)")
    for s in range(4):
        for di in range(2):
            r = FR + 8*s + 4*di
            src = "0" if s == 0 else f"v[{C0+16*di}:{C0+16*di+15}]"
            a(f"v_mfma_f32_32x32x16_bf16 v[{C0+16*di}:{C0+16*di+15}], v[{r}:{r+3}], v[60:63], {src}")
    a(f"""
    s_lshl_b32 s53, {w}, 8
    s_add_u32 s53, s53, {CRED}
    v_lshl_add_u32 v3, v5, 4, s53
    s_mov_b32 s60, 1
    s_mov_b32 s61, 1
    s_nop 7
    s_nop 3
    s_mov_b64 exec, s[60:61]
    """)
    for di in range(2):
        for a4 in range(4):
            r = C0 + 16*di + 4*a4
            a(f"ds_write_b128 v3, v[{r}:{r+3}] offset:{128*di + 32*a4}")
    a(f"""
    s_mov_b64 exec, -1
    s_waitcnt lgkmcnt(0)
    s_barrier
    """)
    stamp(a, 2)
    lskip = a.label("pp_nocs")
    a(f"""
    s_cmp_lg_u32 {w}, 0
    s_cbranch_scc1 {lskip}
    v_lshlrev_b32 v2, 2, v1
    v_add_u32 v2, {CRED}, v2
    """)
    nonce_load(a)
    a(f"v_lshlrev_b32 v2, 2, v1")
    a(f"v_add_u32 v2, {CRED}, v2")
    for ww in range(8):
        a(f"ds_read_b32 v{8+ww}, v2 offset:{256*ww}")
    a(f"""
    v_lshlrev_b32 v16, 16, v105
    v_mul_f32 v16, {hex(LOG2E)}, v16
    v_lshlrev_b32 v5, 1, v104
    s_mov_b32 s36, s{SRD_WS}
    s_mov_b32 s37, s{SRD_WS+1}
    s_cmp_lt_u32 {j}, 28
    s_cselect_b32 s38, s{SRD_WS+2}, 0
    s_mov_b32 s39, 0x00020000
    s_mov_b32 s53, {WS_BL}
    buffer_store_dword v16, v5, s[36:39], s53 offen sc1
    s_waitcnt lgkmcnt(0)
    v_add_f32 v8, v8, v9
    v_add_f32 v10, v10, v11
    v_add_f32 v12, v12, v13
    v_add_f32 v14, v14, v15
    v_add_f32 v8, v8, v10
    v_add_f32 v12, v12, v14
    v_add_f32 v8, v8, v12
    s_mov_b32 s53, {WS_CS}
    buffer_store_dword v8, v5, s[36:39], s53 offen sc1
    s_waitcnt vmcnt(2)
    """)
    nonce_get(a)
    a(f"""
    s_lshl_b32 s52, {j}, 2
    s_add_u32 s52, s52, {WS_CSF}
    s_waitcnt vmcnt(0)
    """)
    flag_post(a, "s52")
    a.lines.append(f"{lskip}:")
    stamp(a, 3)
    emit_kv_loads(a)
    a("s_waitcnt vmcnt(0)")
    a("s_barrier")
    lns = a.label("pp_nostf")
    a(f"""
    s_cmp_lg_u32 {w}, 0
    s_cbranch_scc1 {lns}
    """)
    post_stats_flag(a)
    a.lines.append(f"{lns}:")
    emit_kv_compute(a, 8)
    if MERGED:
        lk = a.label("pp_nokvf")
        a(f"""
        s_waitcnt vmcnt(0)
        s_barrier
        s_cmp_lg_u32 {w}, 0
        s_cbranch_scc1 {lk}
        """)
        post_kv_flag(a)
        a.lines.append(f"{lk}:")
        HOOK_PREFETCH(a)
    if TOUCH: emit_warm_touch(a)

ACC = 8
FS = (40, 52, 168, 180)
VC, VB = 64, 96
VXA, VWA = 128, 132
VXH, VWH = 194, 198
VX0, VX1, VW = 134, 135, 136
VST = 138
VK = 140
VOPS, VFL, VFO = 148, 149, 150

def g1_piece(a, k, inloop=False):
    if inloop and DIAG_NODMA: return
    if k == 0:
        a(f"s_mov_b32 m0, s40")
        a(f"s_add_u32 s44, s42, {4*F*2}")
        a(f"buffer_load_dwordx4 v{VX0}, s[{SRD_X}:{SRD_X+3}], s41 offen lds")
    elif k == 1:
        a(f"s_add_u32 m0, s40, 1024")
        a(f"s_nop 0")
        a(f"buffer_load_dwordx4 v{VX1}, s[{SRD_X}:{SRD_X+3}], s41 offen lds")
    elif k == 2:
        a(f"s_add_u32 m0, s40, 16384")
        a(f"s_add_u32 s41, s41, 128")
        a(f"buffer_load_dwordx4 v{VW}, s[{SRD_W1}:{SRD_W1+3}], s42 offen lds")
    else:
        a(f"s_add_u32 m0, s40, 17408")
        a(f"s_add_u32 s42, s42, {64*F*2}")
        a(f"buffer_load_dwordx4 v{VW}, s[{SRD_W1}:{SRD_W1+3}], s44 offen lds")
        a(f"s_add_u32 s40, s40, 32768")
        a(f"s_and_b32 s40, s40, 0x1ffff")
        a(f"s_and_b32 s41, s41, 1023")
        a(f"s_cselect_b32 s42, s42, 0")

def g1_read(a, step):
    if DIAG_NODS: return
    dst = FS[step]
    a(f"ds_read_b128 v[{dst}:{dst+3}], v{VXA+step}")
    for n in range(2):
        for j in range(2):
            r = dst + 4 + 4*n + 2*j
            a(f"ds_read_b64_tr_b16 v[{r}:{r+1}], v{VWA+n} offset:{4096*step + 1024*j}")

def g1_mfma(a, step, n):
    if DIAG_NOMFMA: return
    src = FS[step]
    a(f"v_mfma_f32_32x32x16_bf16 v[{ACC+16*n}:{ACC+16*n+15}], v[{src+4+4*n}:{src+7+4*n}], v[{src}:{src+3}], v[{ACC+16*n}:{ACC+16*n+15}]")

def g1_pair(a, step, dma):
    g1_mfma(a, step, 0)
    if dma: g1_piece(a, step, True)
    g1_mfma(a, step, 1)

def g1_operand_dma(a):
    a(f"""
    s_mov_b32 m0, {OPS}
    s_lshl_b32 s52, s32, 10
    s_add_u32 s52, s52, {WS_STATS}
    v_lshlrev_b32 v2, 4, v1
    buffer_load_dwordx4 v2, s[{SRD_WS}:{SRD_WS+3}], s52 offen sc1 lds
    s_mov_b32 m0, {OPS + 1024}
    s_nop 0
    buffer_load_dwordx4 v{VOPS}, s[{SRD_WS}:{SRD_WS+3}], 0 offen sc1 lds
    """)

def g1_poll(a):
    a(f"buffer_load_dword v{VFL}, v{VFO}, s[{SRD_WS}:{SRD_WS+3}], 0 offen sc1")

def g1_check(a, lnot):
    a(f"""
    v_cmp_ne_u32 vcc, s{S_N}, v{VFL}
    s_nop 1
    s_cmp_eq_u64 vcc, 0
    s_cbranch_scc0 {lnot}
    """)

def emit_warm_touch(a):
    l0 = a.label("wt_w0")
    w = f"s{S_WAVE}"
    a(f"""
    s_mov_b32 s4, s50
    s_mov_b32 s5, s51
    s_mov_b32 s6, {D*S*2}
    s_mov_b32 s7, 0x00020000
    s_lshl_b32 s52, s2, 3
    s_add_u32 s52, s52, {w}
    s_lshl_b32 s52, s52, 13
    v_lshl_add_u32 v2, v1, 7, s52
    buffer_load_dword v192, v2, s[4:7], 0 offen
    s_cmp_eq_u32 {w}, 0
    s_cbranch_scc1 {l0}
    s_mov_b32 s4, s48
    s_mov_b32 s5, s49
    s_mov_b32 s6, {F*D*2}
    s_mul_i32 s52, s2, 7
    s_add_u32 s52, s52, {w}
    s_sub_u32 s52, s52, 1
    s_lshl_b32 s52, s52, 13
    v_lshl_add_u32 v2, v1, 7, s52
    buffer_load_dword v193, v2, s[4:7], 0 offen
    """)
    a.lines.append(f"{l0}:")

def emit_gemm1_role(a, wid, mapping, touch=True):
    emit_wgmap_gemm1(a, wid, mapping)
    w = f"s{S_WAVE}"
    a(f"""
    v_lshrrev_b32 v2, 3, v1
    v_lshrrev_b32 v3, 4, v1
    v_and_b32 v4, 7, v1
    s_lshl_b32 s38, s32, 7
    s_lshl_b32 s39, {w}, 4
    s_add_u32 s38, s38, s39
    v_add_u32 v5, s38, v2
    v_lshlrev_b32 v5, 10, v5
    v_xor_b32 v6, v4, v3
    v_lshl_add_u32 v{VX0}, v6, 4, v5
    v_xor_b32 v6, 4, v6
    v_lshl_add_u32 v{VX1}, v6, 4, v5
    v_add_u32 v{VX1}, 8192, v{VX1}
    s_lshl_b32 s39, {w}, 3
    v_add_u32 v5, s39, v3
    v_mul_u32_u24 v5, {F*2}, v5
    v_and_b32 v6, 15, v1
    v_lshlrev_b32 v7, 2, v3
    v_xor_b32 v6, v6, v7
    v_lshl_add_u32 v5, v6, 4, v5
    s_lshl_b32 s39, s33, 8
    v_add_u32 v{VW}, s39, v5
    s_lshl_b32 s40, {w}, 11
    s_and_b32 s41, s32, 1
    s_lshl_b32 s41, s41, 2
    s_add_u32 s41, s41, s33
    s_and_b32 s41, s41, {ROTMASK}
    s_mul_i32 s42, s41, {64*F*2}
    s_lshl_b32 s41, s41, 7
    """)
    for k in range(4): g1_piece(a, k)
    stamp(a, 0)
    a("s_barrier")
    for k in range(4): g1_piece(a, k)
    stamp(a, 8)
    a(f"""
    s_and_b32 s36, {w}, 3                          ; tg
    s_lshr_b32 s37, {w}, 2                         ; fh
    v_and_b32 v5, 31, v1
    v_lshrrev_b32 v6, 5, v1                        ; h
    s_lshl_b32 s38, s33, 9
    v_lshl_add_u32 v2, v5, 4, s38
    v_mul_u32_u24 v3, {WS_BL - WS_CS}, v6
    v_add3_u32 v{VOPS}, v2, v3, 0
    v_add_u32 v{VOPS}, {WS_CS}, v{VOPS}
    s_lshl_b32 s38, s32, 7
    s_add_u32 s38, s38, {WS_STF}
    v_and_b32 v2, 15, v1
    v_lshl_add_u32 v2, v2, 2, s38
    s_lshl_b32 s38, s33, 3
    s_add_u32 s38, s38, {WS_CSF}
    v_and_b32 v3, 1, v1
    v_lshl_add_u32 v3, v3, 2, s38
    v_cmp_gt_u32 vcc, 16, v1
    v_lshrrev_b32 v4, 1, v5
    v_and_b32 v4, 7, v4
    v_cndmask_b32 v{VFO}, v3, v2, vcc
    v_xor_b32 v2, v4, v6
    s_lshl_b32 s38, s36, 12
    v_lshl_add_u32 v3, v5, 7, s38
    """)
    for s in range(4):
        a(f"v_xor_b32 v4, {2*s}, v2")
        a(f"v_lshl_add_u32 v{VXA+s}, v4, 4, v3")
    a(f"""
    v_bfe_u32 v2, v1, 2, 2
    v_bfe_u32 v3, v1, 4, 1
    v_and_b32 v4, 3, v1
    v_lshrrev_b32 v7, 1, v4
    v_lshl_add_u32 v7, v3, 1, v7
    v_and_b32 v4, 1, v4
    v_lshlrev_b32 v4, 3, v4
    v_lshl_add_u32 v3, v6, 3, v2
    v_lshl_add_u32 v4, v3, 8, v4
    v_add_u32 v4, 16384, v4
    s_lshl_b32 s38, s37, 1
    """)
    for n in range(2):
        a(f"s_add_u32 s39, s38, {n}")
        a(f"v_xor_b32 v3, s39, v2")
        a(f"v_lshl_add_u32 v3, v3, 2, v7")
        a(f"v_lshl_add_u32 v{VWA+n}, v3, 4, v4")
    for r in range(4): a(f"v_add_u32 v{VXH+r}, 65536, v{VXA+r}")
    for r in range(2): a(f"v_add_u32 v{VWH+r}, 65536, v{VWA+r}")
    for r in range(32):
        a(f"v_mov_b32 v{ACC+r}, 0")
    a(f"""
    s_mov_b32 s63, 0
    s_waitcnt vmcnt(8) lgkmcnt(0)
    """)
    stamp(a, 7)
    emit_stats_row(a, store=False)
    stamp(a, 6)
    if DIST == 3:
        for k in range(4): g1_piece(a, k)
    a(f"""
    s_waitcnt vmcnt({4*(DIST-1)})
    s_barrier
    """)
    stamp(a, 1)
    L = {x: a.label("g1_" + x) for x in ("got", "spin", "again", "spun", "wait", "w0")}
    tail = []
    def reads_of(stage, step):
        if DIAG_NODS: return []
        slot = stage % 4
        hi, off = slot >> 1, 32768 * (slot & 1)
        dst = FS[step]
        r = [f"ds_read_b128 v[{dst}:{dst+3}], v{(VXH if hi else VXA)+step} offset:{off}"]
        for n in range(2):
            for j in range(2):
                q = dst + 4 + 4*n + 2*j
                r.append(f"ds_read_b64_tr_b16 v[{q}:{q+1}], v{(VWH if hi else VWA)+n} offset:{off + 4096*step + 1024*j}")
        return r
    def step(stage, k):
        nst = stage + (k >= 2)
        r = reads_of(nst, (k + 2) % 4) if nst < 8 else []
        a("s_waitcnt lgkmcnt(0)" if (stage == 7 and k == 3) else "s_waitcnt lgkmcnt(5)")
        g1_mfma(a, k, 0)
        for x in r[:3]: a(x)
        if stage + DIST < 8: g1_piece(a, k, True)
        g1_mfma(a, k, 1)
        for x in r[3:]: a(x)
    def wave0_only(name, body):
        lo, lb = a.label(name + "_out"), a.label(name + "_back")
        a(f"s_cmp_eq_u32 {w}, 0")
        a(f"s_cbranch_scc1 {lo}")
        a.lines.append(f"{lb}:")
        b = Asm(); b.nlabel = a.nlabel + 1000 * (len(tail) + 1)
        b.lines.append(f"{lo}:")
        body(b)
        b(f"s_branch {lb}")
        tail.append(b)
    for x in reads_of(0, 0) + reads_of(0, 1): a(x)
    VM = {3: [6, 7, 7, 6, 6, 7, 3], 2: [2, 3, 2, 2, 2, 2, 3]}[DIST]
    for st in range(8):
        if st == (5 if DIST == 3 else 6):
            emit_kv_loads(a)
        if st == 6:
            wave0_only("g1_poll1", lambda b: g1_poll(b))
        if st == 7:
            def req(b):
                ln, le = b.label("g1_n1"), b.label("g1_e1")
                b("s_waitcnt vmcnt(0)")
                g1_check(b, ln)
                b("s_mov_b32 s63, 1")
                g1_operand_dma(b)
                b(f"s_branch {le}")
                b.lines.append(f"{ln}:")
                g1_poll(b)
                b.lines.append(f"{le}:")
            wave0_only("g1_req", req)

        step(st, 0); step(st, 1)
        if st < 7:
            a(f"s_waitcnt vmcnt({VM[st]})")
            a("s_barrier")
        step(st, 2); step(st, 3)
        if st == 0:
            wave0_only("g1_nld", lambda b: nonce_load(b))
            emit_stats_store(a)
        if st == 3:
            def post(b):
                nonce_get(b)
                post_stats_flag(b)
            wave0_only("g1_post", post)
    stamp(a, 2)
    def req2(b):
        ln, le = b.label("g1_n2"), b.label("g1_e2")
        b(f"""
        s_cmp_eq_u32 s63, 1
        s_cbranch_scc1 {le}
        s_waitcnt vmcnt(0)
        """)
        g1_check(b, ln)
        b("s_mov_b32 s63, 2")
        g1_operand_dma(b)
        b(f"s_branch {le}")
        b.lines.append(f"{ln}:")
        g1_poll(b)
        b.lines.append(f"{le}:")
    lo, lb = a.label("g1_req2_out"), a.label("g1_req2_back")
    a(f"s_cmp_eq_u32 {w}, 0")
    a(f"s_cbranch_scc1 {lo}")
    a("s_waitcnt vmcnt(0)")
    a.lines.append(f"{lb}:")
    b = Asm(); b.nlabel = a.nlabel + 50000
    b.lines.append(f"{lo}:"); req2(b); b(f"s_branch {lb}"); tail.append(b)
    a("s_barrier")
    emit_kv_compute(a, 64)
    stamp(a, 3)
    def fin(b):
        l1, l2, lspin, lagain, lspun, le = [b.label("g1_f" + x) for x in ("1", "2", "spin", "again", "spun", "e")]
        b(f"""
        s_cmp_eq_u32 s63, 1
        s_cbranch_scc1 {l1}
        s_cmp_eq_u32 s63, 2
        s_cbranch_scc1 {l2}
        s_mov_b32 s54, 0
        s_waitcnt vmcnt(1)
        """)
        b.lines.append(f"{lspin}:")
        g1_check(b, lagain)
        b(f"s_branch {lspun}")
        b.lines.append(f"{lagain}:")
        b("s_sleep 1")
        g1_poll(b)
        b(f"""
        s_add_u32 s54, s54, 1
        s_waitcnt vmcnt(0)
        s_cmp_lt_u32 s54, 0x40000
        s_cbranch_scc1 {lspin}
        """)
        b.lines.append(f"{lspun}:")
        g1_operand_dma(b)
        b("s_waitcnt vmcnt(0)")
        b(f"s_branch {le}")
        b.lines.append(f"{l1}:")
        b("s_waitcnt vmcnt(1)")
        b(f"s_branch {le}")
        b.lines.append(f"{l2}:")
        b("s_waitcnt vmcnt(1)")
        b.lines.append(f"{le}:")
        if common.INSTR:
            b("s_waitcnt lgkmcnt(0)")
            b("s_lshl_b32 s86, s63, 16")
            b("s_add_u32 s86, s86, s54")
            b("s_add_u32 s86, s86, 1")
            b("s_add_u32 s86, s86, s66")
    wave0_only("g1_fin", fin)
    R = VK + 6
    a(f"""
    v_mov_b32 v{VK}, 1.0
    v_mov_b32 v{VK+1}, 1.0
    v_mov_b32 v{VK+2}, {hex(LN2)}
    v_mov_b32 v{VK+3}, {hex(LN2)}
    v_mov_b32 v{VK+4}, {hex(NEG2LN2)}
    v_mov_b32 v{VK+5}, {hex(NEG2LN2)}
    s_lshl_b32 s38, s32, 2
    s_add_u32 s38, s38, s36
    s_mul_i32 s38, s38, 112
    s_lshl_b32 s39, s33, 3
    s_add_u32 s38, s38, s39
    s_lshl_b32 s39, s37, 2
    s_add_u32 s38, s38, s39
    s_lshl_b32 s38, s38, 10
    s_add_u32 s38, s38, {WS_ACT}
    v_and_b32 v5, 31, v1
    s_lshl_b32 s39, s36, 8
    v_lshl_add_u32 v3, v5, 3, s39
    v_add_u32 v3, {OPS}, v3
    v_lshrrev_b32 v4, 5, v1
    s_lshl_b32 s39, s37, 8
    v_lshl_add_u32 v4, v4, 4, s39
    v_add_u32 v4, {OPS + 1024}, v4
    v_lshlrev_b32 v182, 4, v1
    s_barrier
    ds_read_b64 v[{VST}:{VST+1}], v3
    """)
    for g in range(7):
        a(f"ds_read_b128 v[{VC+4*g}:{VC+4*g+3}], v4 offset:{32*g}")
        a(f"ds_read_b128 v[{VB+4*g}:{VB+4*g+3}], v4 offset:{512+32*g}")
    a("s_waitcnt lgkmcnt(14)")
    a(f"v_mul_f32 v{R}, {hex(LOG2E)}, v{VST+1}")
    a(f"ds_read_b128 v[{VC+28}:{VC+31}], v4 offset:{32*7}")
    a(f"ds_read_b128 v[{VB+28}:{VB+31}], v4 offset:{512+32*7}")
    stamp(a, 4)
    if MERGED: HOOK_PREFETCH(a)
    def pr(r): return f"v[{r}:{r+1}]"
    T = 40
    OUT = 152
    for fr in range(4):
        prs = [(ACC + 8*fr + 2*p, VC + 8*fr + 2*p, VB + 8*fr + 2*p) for p in range(4)]
        Z = [T + 2*p for p in range(4)]
        E = [T + 8 + 2*p for p in range(4)]
        a(f"s_waitcnt lgkmcnt({12 - 4*fr})")
        for p, (ac, c, b) in enumerate(prs):
            a(f"v_pk_fma_f32 {pr(Z[p])}, {pr(VST)}, {pr(c)}, {pr(ac)} op_sel_hi:[0,1,1] neg_lo:[1,0,0] neg_hi:[1,0,0]")
        for p, (ac, c, b) in enumerate(prs):
            a(f"v_pk_fma_f32 {pr(Z[p])}, {pr(R)}, {pr(Z[p])}, {pr(b)} op_sel_hi:[0,1,1]")
        for p in range(4):
            a(f"v_exp_f32 v{E[p]}, v{Z[p]}")
            a(f"v_exp_f32 v{E[p]+1}, v{Z[p]+1}")
        for p in range(4):
            a(f"v_pk_add_f32 {pr(E[p])}, {pr(E[p])}, {pr(VK)}")
        for p in range(4):
            a(f"v_pk_fma_f32 {pr(E[p])}, {pr(E[p])}, {pr(E[p])}, {pr(VK)}")
        for p in range(4):
            a(f"v_rcp_f32 v{E[p]}, v{E[p]}")
            a(f"v_rcp_f32 v{E[p]+1}, v{E[p]+1}")
        for p in range(4):
            a(f"v_pk_fma_f32 {pr(E[p])}, {pr(E[p])}, {pr(VK+4)}, {pr(VK+2)}")
        for p in range(4):
            a(f"v_pk_mul_f32 {pr(Z[p])}, {pr(Z[p])}, {pr(E[p])}")
        o = OUT + 4*fr
        for p in range(4):
            a(f"v_cvt_pk_bf16_f32 v{o+p}, v{Z[p]}, v{Z[p]+1}")
        a(f"buffer_store_dwordx4 v[{o}:{o+3}], v182, s[{SRD_WS}:{SRD_WS+3}], s38 offen offset:{1024*fr}" + (" sc1" if MERGED else ""))
        if MERGED and fr == 1:
            a("s_waitcnt vmcnt(10)")
            a("s_barrier")
            wave0_only("g1_kvf", lambda b: post_kv_flag(b))
    stamp(a, 5)
    lend = a.label("g1_end")
    a(f"s_branch {lend}")
    for b in tail: a.lines += b.lines
    a.lines.append(f"{lend}:")

def emit_front(a, mapping=0, touch=True):
    emit_setup(a)
    lg, lfin = a.label("fr_gemm"), a.label("fr_fin")
    a(f"""
    s_cmp_ge_u32 s2, 32
    s_cbranch_scc1 {lg}
    s_mov_b32 s3, s2
    """)
    emit_prep_role(a, "s3")
    a(f"s_branch {lfin}")
    a.lines.append(f"{lg}:")
    a("s_sub_u32 s3, s2, 32")
    emit_gemm1_role(a, "s3", mapping, touch)
    a.lines.append(f"{lfin}:")

def front3_kernel(mapping=0, touch=True):
    a = Asm()
    kernel_begin(a, "front_kernel")
    a("""
    s_cmp_ge_u32 s2, 256
    s_cbranch_scc1 L_front_end
    """)
    stamp_begin(a)
    emit_front(a, mapping, touch)
    stamp_end(a, 0)
    a.lines.append("L_front_end:")
    a("s_endpgm")
    return a.text(), kernel_desc("front_kernel", 200, nsgpr(64))
```

```python
from common import *
import common, front5, back2

NAME = "recurrent_scan__ssm_conv_h3__dense_activation_mish__prompt_kernel"

def merged_kernel(mapping=1, name=NAME):
    front5.MERGED = True
    front5.HOOK_PREFETCH = back2.emit_prefetch
    back2.NW = front5.NW
    a = Asm()
    kernel_begin(a, name)
    a("""
    s_cmp_ge_u32 s2, 256
    s_cbranch_scc1 L_all_end
    """)
    stamp_begin(a)
    front5.emit_setup(a)
    lg, lb = a.label("fr_gemm"), a.label("fr_back")
    a(f"""
    s_cmp_ge_u32 s2, 32
    s_cbranch_scc1 {lg}
    s_mov_b32 s3, s2
    """)
    front5.emit_prep_role(a, "s3")
    a(f"s_mov_b32 s{back2.S_ACTF}, -1")
    a(f"s_branch {lb}")
    a.lines.append(f"{lg}:")
    a("s_sub_u32 s3, s2, 32")
    front5.emit_gemm1_role(a, "s3", mapping, True)
    a(f"""
    s_lshl_b32 s{back2.S_ACTF}, s32, 7
    s_lshl_b32 s52, s33, 2
    s_add_u32 s{back2.S_ACTF}, s{back2.S_ACTF}, s52
    s_add_u32 s{back2.S_ACTF}, s{back2.S_ACTF}, {WS_ACTF}
    """)
    a.lines.append(f"{lb}:")
    back2.emit_back(a)
    stamp_end(a, 0)
    a.lines.append("L_all_end:")
    a("s_endpgm")
    return a.text(), kernel_desc(name, 200, nsgpr(64)), front5.FRONT_LDS
```

```python
import sys
from common import *
import prep, gemm1, conv, gemm2
HDR = open("recurrent_scan__ssm_conv_h3__dense_activation_mish__prompt.s.ref").read().split("; Override launch geometry")[0]
def build_v1(mapping=0):
    ks = [("prep_kernel", prep.prep_kernel(), (32, 512, 67584)),
          ("gemm1_kernel", gemm1.gemm1_kernel(mapping), (224, 512, 131072)),
          ("conv_kernel", conv.conv_kernel(), (256, 256, 2*conv.CHSZ + 32768)),
          ("gemm2_kernel", gemm2.gemm2_kernel(), (256, 256, 131072))]
    s = HDR
    for n, _, (g, b, l) in ks:
        s += f"; @launch kernel={n} grid=({g},1,1) block=({b},1,1) lds={l}\n"
    s += '.amdgcn_target "amdgcn-amd-amdhsa--gfx950"\n.text\n'
    for n, (t, d), _ in ks: s += t
    s += '.section .rodata,"a"\n'
    for n, (t, d), _ in ks: s += d
    return s
def assemble_list(ks):
    s = HDR
    for n, _, (g, b, l) in ks:
        s += f"; @launch kernel={n} grid=({g},1,1) block=({b},1,1) lds={l}\n"
    s += '.amdgcn_target "amdgcn-amd-amdhsa--gfx950"\n.text\n'
    for n, (t, d), _ in ks: s += t
    s += '.section .rodata,"a"\n'
    for n, (t, d), _ in ks: s += d
    return s
def build_v2(mapping=0):
    import back
    return assemble_list([("prep_kernel", prep.prep_kernel(), (32, 512, 67584)),
          ("gemm1_kernel", gemm1.gemm1_kernel(mapping), (224, 512, 131072)),
          ("back_kernel", back.back_kernel(), (256, 512, 131072 + 2*conv.CHSZ))])
def build_v3(mapping=0):
    import back, front
    return assemble_list([("front_kernel", front.front_kernel(mapping), (256, 512, 131072 + 4096)),
          ("back_kernel", back.back_kernel(), (256, 512, 131072 + 2*conv.CHSZ))])
def build_v4(mapping=0):
    import back, front2
    return assemble_list([("front_kernel", front2.front2_kernel(mapping), (256, 512, front2.FRONT_LDS)),
          ("back_kernel", back.back_kernel(), (256, 512, 131072 + 2*conv.CHSZ))])
def build_v5(mapping=0, touch=True):
    import back, front3
    return assemble_list([("front_kernel", front3.front3_kernel(mapping, touch), (256, 512, front3.FRONT_LDS)),
          ("back_kernel", back.back_kernel(), (256, 512, 131072 + 2*conv.CHSZ))])
def build_v5nt(): return build_v5(0, False)
def _diag(**kw):
    import front3
    for k, v in kw.items(): setattr(front3, k, v)
    return build_v5(0, False)
def build_v5nodma(): return _diag(DIAG_NODMA=True)
def build_v5nomfma(): return _diag(DIAG_NOMFMA=True)
def build_v5nomfmads(): return _diag(DIAG_NOMFMA=True, DIAG_NODS=True)
def build_v5m1(): return build_v5(1, False)
def build_v5norot():
    import front3
    front3.ROTMASK = 0
    return build_v5(0, False)
def build_v6(mapping=0, touch=True, **kw):
    import back, front4
    for k, v in kw.items(): setattr(front4, k, v)
    return assemble_list([("front_kernel", front4.front3_kernel(mapping, touch), (256, 512, front4.FRONT_LDS)),
          ("back_kernel", back.back_kernel(), (256, 512, 131072 + 2*conv.CHSZ))])
def build_v6nt(): return build_v6(0, False)
def build_v6m1(): return build_v6(1, True)
def build_v6nodma(): return build_v6(0, True, DIAG_NODMA=True)
def build_v6norot(): return build_v6(0, True, ROTMASK=0)
def build_v7(mapping=0, touch=True, **kw):
    import back, front5
    for k, v in kw.items(): setattr(front5, k, v)
    return assemble_list([("front_kernel", front5.front3_kernel(mapping, touch), (256, 512, front5.FRONT_LDS)),
          ("back_kernel", back.back_kernel(), (256, 512, 131072 + 2*conv.CHSZ))])
def build_v7m1(): return build_v7(1, True)
def build_v7m1nt2():
    import back
    back.TOUCH2 = False
    return build_v7(1, True)
def build_v7nodma(): return build_v7(0, True, DIAG_NODMA=True)
def build_v7d2(): return build_v7(0, True, DIST=2)
def build_v7norot(): return build_v7(0, True, ROTMASK=0)
def build_s1(mapping=1):
    import merged
    t, d, lds = merged.merged_kernel(mapping)
    s = HDR + f"; @launch grid=(256,1,1) block=(512,1,1) lds={lds}\n"
    s += '.amdgcn_target "amdgcn-amd-amdhsa--gfx950"\n.text\n' + t + '.section .rodata,"a"\n' + d
    return s
def build_s1m0(): return build_s1(0)
if __name__ == "__main__":
    out = sys.argv[1]
    import common
    common.INSTR = len(sys.argv) > 2 and sys.argv[2] in ("instr", "dbg")
    common.DBGMODE = len(sys.argv) > 2 and sys.argv[2] == "dbg"
    ver = sys.argv[3] if len(sys.argv) > 3 else "v1"
    open(out, "w").write(globals()["build_" + ver]())
```

```python
from common import *
import common
from conv import OB, UB, CHSZ

CV_BASE = 131072
EX_BASE = 98304
NST = 14
AF = None
NW = None
TOUCH2 = True
W2_PRE = False
SPIN_SLEEP = 4
NOSTAMP = False

S_WAVE, S_DB, S_TB, S_ACTF, S_N = 18, 34, 35, 19, 62
SRD_X, SRD_W2, SRD_WS, SRD_OUT, SRD_K = 20, 24, 28, 40, 44

def emit_prefetch(a):
    w = f"s{S_WAVE}"
    a(f"""
    s_and_b32 s52, s2, 7
    s_lshr_b32 s53, s2, 3
    s_lshr_b32 s{S_TB}, s53, 3
    s_lshl_b32 s52, s52, 2
    s_add_u32 s{S_TB}, s{S_TB}, s52
    s_and_b32 s{S_DB}, s53, 7
    s_mov_b32 s{SRD_K}, s50
    s_mov_b32 s{SRD_K+1}, s51
    s_mov_b32 s{SRD_K+2}, {D*S*2}
    s_mov_b32 s{SRD_K+3}, 0x00020000
    s_mov_b32 s{SRD_W2}, s48
    s_mov_b32 s{SRD_W2+1}, s49
    s_mov_b32 s{SRD_W2+2}, {F*D*2}
    s_mov_b32 s{SRD_W2+3}, 0x00020000
    s_lshr_b32 s52, {w}, 2                         ; ch
    s_bfe_u32 s53, {w}, 0x10001                    ; copy
    s_and_b32 s54, {w}, 1
    s_lshl_b32 s54, s54, 11                        ; 2048*half
    s_lshl_b32 s55, s53, 1
    v_lshl_add_u32 v183, v1, 4, s55                ; 16 l + 2 copy
    s_mul_i32 s53, s53, {OB}
    s_mul_i32 s55, s52, {CHSZ}
    s_add_u32 s53, s53, s55
    s_add_u32 s53, s53, s54
    s_add_u32 m0, s53, {CV_BASE + 32}
    s_lshl_b32 s53, s2, 1
    s_add_u32 s53, s53, s52
    s_lshl_b32 s53, s53, 12
    s_add_u32 s53, s53, s54
    buffer_load_dwordx4 v183, s[{SRD_K}:{SRD_K+3}], s53 offen lds
    buffer_load_dwordx4 v183, s[{SRD_K}:{SRD_K+3}], s53 offen offset:1024 lds
    v_lshrrev_b32 v183, 3, v1
    v_lshlrev_b32 v183, 10, v183
    v_bfe_u32 v184, v1, 4, 1
    v_lshlrev_b32 v184, 2, v184
    v_xor_b32 v184, v184, v1
    v_and_b32 v184, 7, v184
    v_lshl_add_u32 v183, v184, 4, v183
    s_lshl_b32 s52, {w}, 14
    s_lshl_b32 s53, s{S_DB}, 7
    s_add_u32 s52, s52, s53
    s_lshl_b32 s53, {w}, 11
    s_add_u32 s53, s53, 16384
    """)
    for st in range(3):
        a(f"""
        s_add_u32 m0, s53, {32768*st}
        s_add_u32 s54, s52, {131072*st}
        s_add_u32 s55, s52, {131072*st + 8192 - 1024}
        buffer_load_dwordx4 v183, s[{SRD_W2}:{SRD_W2+3}], s54 offen lds
        buffer_load_dwordx4 v183, s[{SRD_W2}:{SRD_W2+3}], s55 offen offset:1024 lds
        """)

def spin_flags(a, name, voff, vdst, nlanes, on_ready_first=None):
    lsp, ldn = a.label(name + "_spin"), a.label(name + "_done")
    a(f"s_mov_b32 s63, 0")
    a.lines.append(f"{lsp}:")
    a(f"""
    buffer_load_dword v{vdst}, v{voff}, s[{SRD_WS}:{SRD_WS+3}], 0 offen sc1
    s_add_u32 s63, s63, 1
    s_waitcnt vmcnt(0)
    v_cmp_ne_u32 vcc, s{S_N}, v{vdst}
    s_nop 1
    s_cmp_eq_u64 vcc, 0
    s_cbranch_scc1 {ldn}
    s_cmp_ge_u32 s63, 0x40000
    s_cbranch_scc1 {ldn}
    s_sleep {SPIN_SLEEP}
    s_branch {lsp}
    """)
    a.lines.append(f"{ldn}:")

def emit_entry(a):
    a(f"""
    s_load_dwordx2 s[4:5], s[0:1], {KA['out']}
    v_mov_b32 v2, {NW}
    ds_read_b32 v2, v2
    s_and_b32 s52, s2, 7
    s_lshr_b32 s53, s2, 3
    s_lshr_b32 s{S_TB}, s53, 3
    s_lshl_b32 s52, s52, 2
    s_add_u32 s{S_TB}, s{S_TB}, s52
    s_and_b32 s{S_DB}, s53, 7
    s_mov_b32 s{SRD_W2}, s48
    s_mov_b32 s{SRD_W2+1}, s49
    s_mov_b32 s{SRD_W2+2}, {F*D*2}
    s_mov_b32 s{SRD_W2+3}, 0x00020000
    s_waitcnt lgkmcnt(0)
    v_readfirstlane_b32 s{S_N}, v2
    """)
    srd(a, SRD_OUT, 4, S*D*2)

VSA, VSW = 60, 61
def act_pieces(a):
    a(f"""
    s_add_u32 m0, s54, s57
    s_nop 0
    buffer_load_dwordx4 v{VSA}, s[{SRD_WS}:{SRD_WS+3}], s55 offen sc1 lds
    buffer_load_dwordx4 v{VSA}, s[{SRD_WS}:{SRD_WS+3}], s55 offen offset:1024 sc1 lds
    buffer_load_dwordx4 v{VSA}, s[{SRD_WS}:{SRD_WS+3}], s55 offen offset:2048 sc1 lds
    buffer_load_dwordx4 v{VSA}, s[{SRD_WS}:{SRD_WS+3}], s55 offen offset:3072 sc1 lds
    s_add_u32 s55, s55, 8192
    """)
def w2_pieces(a):
    a(f"""
    s_add_u32 m0, s54, s58
    s_add_u32 s59, s56, {8192-1024}
    s_add_u32 s60, s56, {2*(8192-1024)}
    buffer_load_dwordx4 v{VSW}, s[{SRD_W2}:{SRD_W2+3}], s56 offen lds
    buffer_load_dwordx4 v{VSW}, s[{SRD_W2}:{SRD_W2+3}], s59 offen offset:1024 lds
    s_add_u32 s59, s56, {3*(8192-1024)}
    buffer_load_dwordx4 v{VSW}, s[{SRD_W2}:{SRD_W2+3}], s60 offen offset:2048 lds
    buffer_load_dwordx4 v{VSW}, s[{SRD_W2}:{SRD_W2+3}], s59 offen offset:3072 lds
    s_add_u32 s56, s56, {128*1024}
    """)
def next_slot(a):
    a("s_add_u32 s54, s54, 32768")
    a("s_and_b32 s54, s54, 0x1ffff")

def emit_loader(a):
    lw = "s52"
    a(f"""
    s_sub_u32 {lw}, s{S_WAVE}, 4
    v_lshlrev_b32 v{VSA}, 4, v1
    s_lshl_b32 s53, s{S_TB}, 1
    s_lshr_b32 s54, {lw}, 1
    s_add_u32 s53, s53, s54
    s_mul_i32 s53, s53, 112
    s_and_b32 s54, {lw}, 1
    s_lshl_b32 s54, s54, 2
    s_add_u32 s53, s53, s54
    s_lshl_b32 s55, s53, 10
    s_add_u32 s55, s55, {WS_ACT}
    s_lshl_b32 s57, {lw}, 12
    s_add_u32 s58, s57, 16384
    v_lshrrev_b32 v2, 3, v1
    v_lshlrev_b32 v2, 10, v2
    v_bfe_u32 v3, v1, 4, 1
    v_lshlrev_b32 v3, 2, v3
    v_and_b32 v4, 7, v1
    v_xor_b32 v3, v3, v4
    v_lshl_add_u32 v{VSW}, v3, 4, v2
    s_lshl_b32 s56, {lw}, 15
    s_lshl_b32 s53, s{S_DB}, 7
    s_add_u32 s56, s56, s53
    s_mov_b32 s54, 0
    """)
    if W2_PRE:
        a(f"s_add_u32 s56, s56, {3*131072}")
        a("s_waitcnt vmcnt(0)")
    else:
        for st in range(3):
            w2_pieces(a); next_slot(a)
        a("s_waitcnt vmcnt(12)")
    a("""
    s_mov_b32 s54, 0
    s_barrier
    """)
    (NOSTAMP or stamp(a, 6))
    lna = a.label("ld_noactf")
    a(f"""
    s_cmp_lg_u32 s{S_WAVE}, 4
    s_cbranch_scc1 {lna}
    s_cmp_eq_u32 s{S_ACTF}, -1
    s_cbranch_scc1 {lna}
    v_mov_b32 v2, s{S_ACTF}
    v_mov_b32 v3, s{S_N}
    s_mov_b64 exec, 1
    buffer_store_dword v3, v2, s[{SRD_WS}:{SRD_WS+3}], 0 offen sc1
    s_mov_b64 exec, -1
    """)
    a.lines.append(f"{lna}:")
    lother, lready = a.label("ld_other"), a.label("ld_ready")
    a(f"""
    s_cmp_lg_u32 s{S_WAVE}, 4
    s_cbranch_scc1 {lother}
    s_lshr_b32 s53, s{S_TB}, 1
    s_lshl_b32 s53, s53, 11
    s_add_u32 s53, s53, {WS_ACTF}
    v_min_u32 v2, 13, v1
    v_lshl_add_u32 v2, v2, 7, s53
    """)
    spin_flags(a, "ld_actf", 2, 3, 14)
    a(f"""
    v_mov_b32 v2, {AF}
    v_mov_b32 v3, 1
    ds_write_b32 v2, v3
    s_branch {lready}
    """)
    a.lines.append(f"{lother}:")
    lsp = a.label("ld_lspin")
    a(f"""
    v_mov_b32 v2, {AF}
    s_mov_b32 s63, 0
    """)
    a.lines.append(f"{lsp}:")
    a(f"""
    ds_read_b32 v3, v2
    s_add_u32 s63, s63, 1
    s_waitcnt lgkmcnt(0)
    v_readfirstlane_b32 s59, v3
    s_cmp_lg_u32 s59, 0
    s_cbranch_scc1 {lready}
    s_cmp_ge_u32 s63, 0x400000
    s_cbranch_scc1 {lready}
    s_sleep 1
    s_branch {lsp}
    """)
    a.lines.append(f"{lready}:")
    (NOSTAMP or stamp(a, 7))
    for st in range(3):
        act_pieces(a); next_slot(a)
    if TOUCH2:
        a(f"""
        s_lshr_b32 s59, s2, 3
        s_lshl_b32 s59, s59, 12
        v_and_b32 v2, 31, v1
        v_lshlrev_b32 v2, 7, v2
        v_lshrrev_b32 v3, 5, v1
        s_lshl_b32 s60, {lw}, 1
        v_add_u32 v3, s60, v3
        v_add_u32 v3, 3, v3
        v_lshlrev_b32 v3, 17, v3
        v_add3_u32 v2, v2, v3, s59
        buffer_load_dword v8, v2, s[{SRD_W2}:{SRD_W2+3}], 0 offen
        s_mov_b32 s60, {8 << 17}
        s_cmp_ge_u32 {lw}, 2
        s_cselect_b32 s60, 0x7fffffff, s60
        v_add_u32 v2, s60, v2
        buffer_load_dword v9, v2, s[{SRD_W2}:{SRD_W2+3}], 0 offen
        """)
    nt = 2 if TOUCH2 else 0
    (NOSTAMP or stamp(a, 8))
    a("s_barrier")
    (NOSTAMP or stamp(a, 9))
    def stage(vm, issue):
        a(f"s_waitcnt vmcnt({vm})")
        a("s_barrier")
        if issue:
            act_pieces(a); w2_pieces(a); next_slot(a)
    stage(8, True)
    (NOSTAMP or stamp(a, 5))
    stage(12, True)
    stage(16, True)
    lns = a.label("ld_nosig")
    a(f"""
    s_cmp_lg_u32 s{S_WAVE}, 4
    s_cbranch_scc1 {lns}
    s_lshl_b32 s53, s2, 7
    s_add_u32 s53, s53, {WS_Y2F}
    v_mov_b32 v2, s53
    v_mov_b32 v3, s{S_N}
    s_mov_b64 exec, 1
    buffer_store_dword v3, v2, s[{SRD_WS}:{SRD_WS+3}], 0 offen sc1
    s_mov_b64 exec, -1
    """)
    a.lines.append(f"{lns}:")
    loop = a.label("ld_loop")
    a("s_mov_b32 s61, 3")
    a.lines.append(f"{loop}:")
    stage(16, True)
    a(f"""
    s_add_u32 s61, s61, 1
    s_cmp_lt_u32 s61, {NST-3}
    s_cbranch_scc1 {loop}
    """)
    stage(16, False)
    stage(8, False)
    stage(0, False)

def emit_conv_compute(a):
    ACC = 8
    A0, B0, A1, B1 = 40, 72, 104, 136
    VA, VB = 168, 172
    p = "s2"
    a(f"""
    s_lshr_b32 s52, s{S_WAVE}, 1                   ; ch
    s_and_b32 s53, s{S_WAVE}, 1                    ; half
    s_mul_i32 s60, s52, {CHSZ}
    s_add_u32 s60, s60, {CV_BASE}
    v_and_b32 v2, 15, v1
    v_lshrrev_b32 v3, 4, v1
    v_lshlrev_b32 v4, 3, v3
    v_sub_u32 v4, v2, v4
    v_add_u32 v4, 9, v4
    v_lshlrev_b32 v4, 1, v4
    v_and_b32 v5, 1, v2
    v_cmp_eq_u32 vcc, 0, v5
    v_mov_b32 v6, {OB-2}
    s_lshl_b32 s61, s53, 8
    v_cndmask_b32 v6, 0, v6, vcc
    s_add_u32 s63, s60, 32
    s_add_u32 s63, s63, s61
    v_add3_u32 v{VA}, v4, v6, s63
    v_add_u32 v{VA+1}, 1024, v{VA}
    v_add_u32 v{VA+2}, 2048, v{VA}
    v_add_u32 v{VA+3}, 3072, v{VA}
    v_lshlrev_b32 v4, 5, v2
    v_lshl_add_u32 v4, v3, 4, v4
    s_add_u32 s63, s60, {UB + 4112 - 3584}
    s_add_u32 s63, s63, s61
    v_sub_u32 v{VB}, s63, v4
    """)
    def reads(A, B):
        ins = []
        for mu in range(8):
            base = VA + (mu >> 1); o = 128*(mu & 1)
            ins.append(f"ds_read_b128 v[{B+4*mu}:{B+4*mu+3}], v{VB} offset:{512*(7-mu)}")
            ins.append(f"ds_read2_b32 v[{A+4*mu}:{A+4*mu+1}], v{base} offset0:{o} offset1:{o+1}")
            ins.append(f"ds_read2_b32 v[{A+4*mu+2}:{A+4*mu+3}], v{base} offset0:{o+2} offset1:{o+3}")
        return ins
    def advance():
        return [f"v_add_u32 v{r}, 64, v{r}" for r in (VA, VA+1, VA+2, VA+3, VB)]
    def mfmas(A, B):
        ins = []
        for q in range(8):
            for mu in range(q+1):
                n = q - mu
                ins.append(f"v_mfma_f32_16x16x32_bf16 v[{ACC+4*q}:{ACC+4*q+3}], v[{A+4*mu}:{A+4*mu+3}], v[{B+4*n}:{B+4*n+3}], v[{ACC+4*q}:{ACC+4*q+3}]")
        return ins
    def interleave(m, rd):
        k = 0
        for x in m:
            a(x)
            if k < len(rd):
                a(rd[k]); k += 1
        assert k == len(rd)
    for x in reads(A0, B0): a(x)
    for r in range(32):
        a(f"v_mov_b32 v{ACC+r}, 0")
    (NOSTAMP or stamp(a, 7))
    loop, ldone = a.label("cv_loop"), a.label("cv_done")
    a("s_mov_b32 s61, 0")
    a.lines.append(f"{loop}:")
    a("s_waitcnt lgkmcnt(0)")
    interleave(mfmas(A0, B0), advance() + reads(A1, B1))
    a("s_waitcnt lgkmcnt(0)")
    a(f"""
    s_cmp_eq_u32 s61, 1
    s_cbranch_scc1 {ldone}
    s_mov_b32 s61, 1
    s_waitcnt vmcnt(0)
    s_barrier                                      ; Y
    """)
    interleave(mfmas(A1, B1), advance() + reads(A0, B0))
    a(f"s_branch {loop}")
    a.lines.append(f"{ldone}:")
    for x in mfmas(A1, B1): a(x)
    (NOSTAMP or stamp(a, 8))
    a(f"""
    s_lshl_b32 s61, s{S_WAVE}, 13
    s_add_u32 s61, s61, {EX_BASE}
    v_lshlrev_b32 v2, 4, v1
    v_add_u32 v3, s61, v2
    v_and_b32 v4, 15, v1
    v_lshrrev_b32 v5, 4, v1
    v_lshlrev_b32 v6, 5, v4
    v_lshl_add_u32 v6, v5, 3, v6
    s_lshl_b32 s63, s{S_WAVE}, 10
    s_sub_u32 s63, {CV_BASE + UB + 2*2044 - 512}, s63
    v_sub_u32 v7, s63, v6
    ds_read_b64 v[40:41], v7 offset:512
    ds_read_b64 v[42:43], v7
    ds_read_b64 v[44:45], v7 offset:{512+CHSZ}
    ds_read_b64 v[46:47], v7 offset:{CHSZ}
    s_nop 4
    """)
    for q in range(8):
        a(f"ds_write_b128 v3, v[{ACC+4*q}:{ACC+4*q+3}] offset:{1024*q}")
    a(f"""
    s_lshl_b32 s61, s{S_WAVE}, 11
    s_add_u32 s61, s61, {EX_BASE}
    v_add_u32 v3, s61, v2
    s_waitcnt lgkmcnt(0)
    s_barrier                                      ; B1
    """)
    Y = 48
    for w in range(4):
        for qq in range(2):
            a(f"ds_read_b128 v[{Y+8*w+4*qq}:{Y+8*w+4*qq+3}], v3 offset:{8192*w+1024*qq}")
    a(f"""
    s_lshl_b32 s56, s17, 16
    s_and_b32 s57, s17, 0xffff0000
    v_lshlrev_b32 v6, 6, v4
    v_lshl_add_u32 v6, v5, 4, v6
    s_lshl_b32 s61, {p}, 13
    s_lshl_b32 s53, s{S_WAVE}, 11
    s_add_u32 s61, s61, s53
    s_add_u32 s61, s61, {WS_Y2}
    s_waitcnt lgkmcnt(0)
    """)
    T = 80
    for qq in range(2):
        for ch in range(2):
            y0, y1 = Y + 8*(2*ch) + 4*qq, Y + 8*(2*ch+1) + 4*qq
            u = 40 + 2*qq + 4*ch
            sD = 56 + ch
            r = T + 8*ch
            for k in range(4):
                a(f"v_add_f32 v{r+k}, v{y0+k}, v{y1+k}")
            a(f"v_and_b32 v{r+4}, 0xffff0000, v{u+1}")
            a(f"v_lshlrev_b32 v{r+5}, 16, v{u+1}")
            a(f"v_and_b32 v{r+6}, 0xffff0000, v{u}")
            a(f"v_lshlrev_b32 v{r+7}, 16, v{u}")
            for k in range(4):
                a(f"v_fmac_f32 v{r+k}, s{sD}, v{r+4+k}")
        o = 96 + 4*qq
        for k in range(4):
            a(f"v_cvt_pk_bf16_f32 v{o+k}, v{T+k}, v{T+8+k}")
        a(f"buffer_store_dwordx4 v[{o}:{o+3}], v6, s[{SRD_WS}:{SRD_WS+3}], s61 offen offset:{1024*qq} sc1")

G_ACC = 8
FP, FQ = 24, 32
VX, VY, VST = 104, 112, 120
VA2, VW2, VOFF, VYO = 122, 123, 124, 125

def g2_read(a, dst, step):
    a(f"ds_read_b128 v[{dst}:{dst+3}], v{VA2} offset:{1024*step}")
    a(f"ds_read_b64_tr_b16 v[{dst+4}:{dst+5}], v{VW2} offset:{2048*step}")
    a(f"ds_read_b64_tr_b16 v[{dst+6}:{dst+7}], v{VW2} offset:{2048*step+1024}")
def g2_mfma(a, src):
    a(f"v_mfma_f32_32x32x16_bf16 v[{G_ACC}:{G_ACC+15}], v[{src+4}:{src+7}], v[{src}:{src+3}], v[{G_ACC}:{G_ACC+15}]")

def emit_gemm2_compute(a):
    w = f"s{S_WAVE}"
    a(f"""
    s_and_b32 s52, {w}, 1                          ; ti
    s_lshr_b32 s53, {w}, 1                         ; di
    v_and_b32 v5, 31, v1
    v_lshrrev_b32 v6, 5, v1
    s_lshl_b32 s54, s{S_TB}, 6
    s_lshl_b32 s55, s52, 5
    s_add_u32 s54, s54, s55
    v_add_u32 v2, s54, v5                          ; token
    s_lshl_b32 s54, s{S_DB}, 6
    s_lshl_b32 s55, s53, 5
    s_add_u32 s54, s54, s55
    v_lshl_add_u32 v3, v6, 4, s54
    v_lshlrev_b32 v4, 10, v2
    v_lshl_add_u32 v{VOFF}, v3, 1, v4
    buffer_load_dwordx4 v[{VX}:{VX+3}], v{VOFF}, s[{SRD_X}:{SRD_X+3}], 0 offen
    buffer_load_dwordx4 v[{VX+4}:{VX+7}], v{VOFF}, s[{SRD_X}:{SRD_X+3}], 0 offen offset:16
    v_lshlrev_b32 v4, 3, v2
    buffer_load_dwordx2 v[{VST}:{VST+1}], v4, s[{SRD_WS}:{SRD_WS+3}], 0 offen offset:{WS_STATS} sc1
    v_lshlrev_b32 v4, 12, v3
    v_lshl_add_u32 v{VYO}, v2, 2, v4
    s_lshl_b32 s54, s52, 13
    v_lshl_add_u32 v{VA2}, v1, 4, s54
    v_bfe_u32 v2, v1, 2, 2
    v_bfe_u32 v3, v1, 4, 1
    v_and_b32 v4, 1, v1
    v_lshl_add_u32 v3, v4, 1, v3
    v_lshrrev_b32 v4, 1, v2
    v_xor_b32 v4, s53, v4
    v_lshl_add_u32 v3, v4, 2, v3
    v_bfe_u32 v4, v1, 1, 1
    v_lshlrev_b32 v4, 3, v4
    v_lshl_add_u32 v3, v3, 4, v4
    v_lshl_add_u32 v2, v6, 2, v2
    v_lshl_add_u32 v3, v2, 7, v3
    v_add_u32 v{VW2}, 16384, v3
    """)
    for r in range(16):
        a(f"v_mov_b32 v{G_ACC+r}, 0")
    a(f"""
    s_mov_b32 s54, 0                               ; stage
    s_mov_b32 s55, 0
    s_mov_b32 s56, 32768
    s_mov_b32 s57, 0
    s_lshl_b32 s58, s{S_DB}, 12
    s_add_u32 s58, s58, {WS_Y2F}
    v_and_b32 v126, 31, v1
    v_lshl_add_u32 v126, v126, 7, s58
    s_barrier                                      ; S_0
    """)
    (NOSTAMP or stamp(a, 9))
    g2_read(a, FP, 0)
    loop, llast, lnodrain, lnopoll, lnochk = [a.label(x) for x in ("g2_loop", "g2_last", "g2_nodrain", "g2_nopoll", "g2_nochk")]
    def y2_loads():
        a(f"s_mov_b32 s59, {WS_Y2}")
        for k in range(8):
            a(f"buffer_load_dword v{VY+k}, v{VYO}, s[{SRD_WS}:{SRD_WS+3}], s59 offen sc1")
            if k < 7: a("s_add_u32 s59, s59, 8192")
    a.lines.append(f"{loop}:")
    cur, nxt = FP, FQ
    for s in range(7):
        g2_read(a, nxt, s+1); a("s_waitcnt lgkmcnt(3)"); g2_mfma(a, cur)
        cur, nxt = nxt, cur
    a(f"""
    s_cmp_eq_u32 s54, {NST-1}
    s_cbranch_scc1 {llast}
    s_cmp_lg_u32 s54, 1
    s_cbranch_scc1 {lnodrain}
    s_waitcnt vmcnt(0)
    """)
    a.lines.append(f"{lnodrain}:")
    a(f"""
    s_cmp_lg_u32 s54, 9
    s_cbranch_scc1 {lnopoll}
    buffer_load_dword v127, v126, s[{SRD_WS}:{SRD_WS+3}], 0 offen sc1
    """)
    a.lines.append(f"{lnopoll}:")
    a(f"""
    s_cmp_lg_u32 s54, 11
    s_cbranch_scc1 {lnochk}
    s_waitcnt vmcnt(0)
    v_cmp_ne_u32 vcc, s{S_N}, v127
    s_nop 1
    s_cmp_eq_u64 vcc, 0
    s_cbranch_scc0 {lnochk}
    s_mov_b32 s57, 1
    """)
    y2_loads()
    a.lines.append(f"{lnochk}:")
    a(f"""
    s_waitcnt lgkmcnt(0)
    s_barrier                                      ; S_(s+1)
    s_add_u32 s55, s55, 32768
    s_and_b32 s55, s55, 0x1ffff
    s_cmp_eq_u32 s55, 0
    s_cselect_b32 s59, {(-98304) & 0xffffffff}, s56
    s_add_u32 s54, s54, 1
    v_add_u32 v{VA2}, s59, v{VA2}
    v_add_u32 v{VW2}, s59, v{VW2}
    """)
    g2_read(a, nxt, 0)
    g2_mfma(a, cur)
    a(f"s_branch {loop}")
    a.lines.append(f"{llast}:")
    a("s_waitcnt lgkmcnt(0)")
    g2_mfma(a, cur)
    (NOSTAMP or stamp(a, 5))
    lgot = a.label("g2_got")
    a(f"""
    s_cmp_eq_u32 s57, 1
    s_cbranch_scc1 {lgot}
    """)
    spin_flags(a, "g2_y2f", 126, 127, 32)
    y2_loads()
    a.lines.append(f"{lgot}:")
    def pr(r): return f"v[{r}:{r+1}]"
    K1, KL = 40, 42
    XF, SF, E, T = 44, 60, 24, 76
    a(f"""
    v_mov_b32 v{K1}, 1.0
    v_mov_b32 v{K1+1}, 1.0
    v_mov_b32 v{KL}, {hex(LOG2E | 0x80000000)}
    v_mov_b32 v{KL+1}, {hex(LOG2E | 0x80000000)}
    """)
    for k in range(8):
        a(f"v_pk_mul_f32 {pr(E+2*k)}, {pr(G_ACC+2*k)}, {pr(KL)}")
    for k in range(16):
        a(f"v_exp_f32 v{E+k}, v{E+k}")
    for k in range(8):
        a(f"v_pk_add_f32 {pr(E+2*k)}, {pr(E+2*k)}, {pr(K1)}")
    for k in range(16):
        a(f"v_rcp_f32 v{E+k}, v{E+k}")
    for k in range(8):
        a(f"v_pk_mul_f32 {pr(E+2*k)}, {pr(E+2*k)}, {pr(G_ACC+2*k)}")
    a("s_waitcnt vmcnt(0)")
    for k in range(8):
        a(f"v_lshlrev_b32 v{XF+2*k}, 16, v{VX+k}")
        a(f"v_and_b32 v{XF+2*k+1}, 0xffff0000, v{VX+k}")
    for k in range(8):
        a(f"v_pk_add_f32 {pr(SF+2*k)}, {pr(XF+2*k)}, {pr(VST)} op_sel_hi:[1,0] neg_lo:[0,1] neg_hi:[0,1]")
    for k in range(8):
        a(f"v_pk_mul_f32 {pr(SF+2*k)}, {pr(SF+2*k)}, {pr(VST)} op_sel:[0,1] op_sel_hi:[1,1]")
    for k in range(8):
        a(f"v_lshlrev_b32 v{T+2*k}, 16, v{VY+k}")
        a(f"v_and_b32 v{T+2*k+1}, 0xffff0000, v{VY+k}")
    for k in range(8):
        a(f"v_pk_mul_f32 {pr(SF+2*k)}, {pr(SF+2*k)}, {pr(T+2*k)}")
    for k in range(8):
        a(f"v_pk_fma_f32 {pr(E+2*k)}, {pr(E+2*k)}, {pr(SF+2*k)}, {pr(XF+2*k)}")
    for k in range(8):
        a(f"v_cvt_pk_bf16_f32 v{VX+k}, v{E+2*k}, v{E+2*k+1}")
    a(f"buffer_store_dwordx4 v[{VX}:{VX+3}], v{VOFF}, s[{SRD_OUT}:{SRD_OUT+3}], 0 offen")
    a(f"buffer_store_dwordx4 v[{VX+4}:{VX+7}], v{VOFF}, s[{SRD_OUT}:{SRD_OUT+3}], 0 offen offset:16")

def emit_back(a):
    emit_entry(a)
    lload, lend = a.label("bk_loader"), a.label("bk_end")
    a(f"""
    s_cmp_ge_u32 s{S_WAVE}, 4
    s_cbranch_scc1 {lload}
    """)
    emit_conv_compute(a)
    emit_gemm2_compute(a)
    a(f"s_branch {lend}")
    a.lines.append(f"{lload}:")
    emit_loader(a)
    a.lines.append(f"{lend}:")
```

```python
class Asm:
    def __init__(self):
        self.lines = []
        self.nlabel = 0
    def __call__(self, s):
        for l in s.strip("\n").split("\n"):
            self.lines.append("    " + l.strip() if not l.strip().endswith(":") else l.strip())
    def label(self, base):
        self.nlabel += 1
        return f"L_{base}_{self.nlabel}"
    def text(self):
        return "\n".join(self.lines) + "\n"

KA = dict(q=0, k=8, v=16, shift=24, ssmk=32, ssmD=40, bx=48, w1=56, b1=64, w2=72, out=80, dbg=88, ws=96)

S, D, F = 2048, 512, 1792
WS_STATS = 0x0
WS_CS    = 0x8000
WS_BL    = 0xA000
WS_KVT   = 0x100000
WS_ACT   = 0x400000
WS_Y2    = 0xC00000
WS_STF   = 0x20000
WS_CSF   = 0x28000
WS_KVF   = 0x30000
WS_ACTF  = 0x38000
WS_Y2F   = 0x40000
WS_SIZE  = 0x10000000

LOG2E = 0x3FB8AA3B
LN2   = 0x3F317218
NEG2LN2 = 0xBFB17218

def srd(a, dst, base, nbytes):
    a(f"s_mov_b32 s{dst}, s{base}")
    a(f"s_mov_b32 s{dst+1}, s{base+1}")
    a(f"s_mov_b32 s{dst+2}, {nbytes}")
    a(f"s_mov_b32 s{dst+3}, 0x00020000")

def srd_off(a, dst, base, off, nbytes):
    a(f"s_add_u32 s{dst}, s{base}, {off}")
    a(f"s_addc_u32 s{dst+1}, s{base+1}, 0")
    a(f"s_mov_b32 s{dst+2}, {nbytes}")
    a(f"s_mov_b32 s{dst+3}, 0x00020000")

def kernel_begin(a, name):
    a.lines.append(f".globl {name}")
    a.lines.append(".p2align 8")
    a.lines.append(f".type {name},@function")
    a.lines.append(f"{name}:")

def kernel_desc(name, vgpr, sgpr, accum=None):
    if accum is None:
        accum = (vgpr + 3) // 4 * 4
    return f""".p2align 6
.amdhsa_kernel {name}
  .amdhsa_next_free_vgpr {vgpr}
  .amdhsa_next_free_sgpr {sgpr}
  .amdhsa_accum_offset {accum}
  .amdhsa_group_segment_fixed_size 0
  .amdhsa_kernarg_size 104
  .amdhsa_user_sgpr_count 2
  .amdhsa_user_sgpr_kernarg_segment_ptr 1
  .amdhsa_system_sgpr_workgroup_id_x 1
  .amdhsa_float_denorm_mode_32 3
.end_amdhsa_kernel
"""

def bf16_round(a, dst, src, tmp=None):
    a(f"v_cvt_pk_bf16_f32 v{dst}, v{src}, v{src}")
    a(f"v_and_b32 v{dst}, 0xffff0000, v{dst}")


WS_TIM = 0xF000000
INSTR = False
STAMP_TID = 0
def stamp_begin(a):
    if not INSTR: return
    a("s_memrealtime s[64:65]")
    a("s_memtime s[66:67]")
def stamp(a, i):
    if not INSTR: return
    a(f"s_memtime s[{68+2*i}:{69+2*i}]")
def stamp_end(a, kidx, wg="s2"):
    if not INSTR: return
    a(f"""
    s_waitcnt vmcnt(0) lgkmcnt(0)
    s_memrealtime s[88:89]
    s_memtime s[90:91]
    s_load_dwordx2 s[92:93], s[0:1], {KA['ws']}
    s_waitcnt lgkmcnt(0)
    s_mov_b32 s94, {WS_SIZE}
    s_mov_b32 s95, 0x00020000
    v_mov_b32 v2, s64
    v_mov_b32 v3, s88
    s_sub_u32 s90, s90, s66
    v_mov_b32 v4, s90
    v_mov_b32 v5, 0
    """)
    for i in range(10):
        a(f"s_sub_u32 s{68+2*i}, s{68+2*i}, s66")
        a(f"v_mov_b32 v{6+i}, s{68+2*i}")
    a(f"""
    s_lshl_b32 s96, {wg}, 6
    s_add_u32 s96, s96, {WS_TIM + kidx*0x8000}
    v_mov_b32 v16, s96
    v_cmp_eq_u32 vcc, {hex(STAMP_TID)}, v0
    s_and_saveexec_b64 s[98:99], vcc
    s_cbranch_execz L_tim_skip_{kidx}
    buffer_store_dwordx4 v[2:5], v16, s[92:95], 0 offen
    buffer_store_dwordx4 v[6:9], v16, s[92:95], 0 offen offset:16
    buffer_store_dwordx4 v[10:13], v16, s[92:95], 0 offen offset:32
    buffer_store_dwordx2 v[14:15], v16, s[92:95], 0 offen offset:48
    s_waitcnt vmcnt(0)
    """)
    a.lines.append(f"L_tim_skip_{kidx}:")
def nsgpr(n):
    return 102 if INSTR else n

def stamp_end_dbg(a, kidx, wg_sel=0):
    if not INSTR: return
    a(f"""
    s_waitcnt vmcnt(0) lgkmcnt(0)
    s_memrealtime s[88:89]
    s_memtime s[90:91]
    s_load_dwordx2 s[92:93], s[0:1], {KA['dbg']}
    s_waitcnt lgkmcnt(0)
    s_cmp_lg_u32 s2, {wg_sel}
    s_cbranch_scc1 L_timd_skip_{kidx}
    s_mov_b32 s94, 256
    s_mov_b32 s95, 0x00020000
    v_mov_b32 v2, s64
    v_mov_b32 v3, s88
    s_sub_u32 s90, s90, s66
    v_mov_b32 v4, s90
    v_mov_b32 v5, {kidx+1}
    """)
    for i in range(10):
        a(f"s_sub_u32 s{68+2*i}, s{68+2*i}, s66")
        a(f"v_mov_b32 v{6+i}, s{68+2*i}")
    a(f"""
    v_mov_b32 v16, 0
    v_cmp_eq_u32 vcc, 0, v0
    s_and_saveexec_b64 s[98:99], vcc
    s_cbranch_execz L_timd_skip_{kidx}
    buffer_store_dwordx4 v[2:5], v16, s[92:95], 0 offen
    buffer_store_dwordx4 v[6:9], v16, s[92:95], 0 offen offset:16
    buffer_store_dwordx4 v[10:13], v16, s[92:95], 0 offen offset:32
    buffer_store_dwordx2 v[14:15], v16, s[92:95], 0 offen offset:48
    s_waitcnt vmcnt(0)
    """)
    a.lines.append(f"L_timd_skip_{kidx}:")
DBGMODE = False
_stamp_end_ws = stamp_end
def stamp_end(a, kidx, wg="s2"):
    if DBGMODE: stamp_end_dbg(a, kidx)
    else: _stamp_end_ws(a, kidx, wg)
```

```python
from common import *
import common
import front5 as f5
import back2 as b2
from gemm1 import emit_wgmap_gemm1
from conv import OB, UB, CHSZ

NAME = "recurrent_scan__ssm_conv_h3__dense_activation_mish__prompt_kernel"
S_WAVE, S_N = 18, 62
SRD_X, SRD_W1, SRD_WS, SRD_DBG, SRD_K, SRD_W2 = 20, 24, 28, 56, 44, 24
CV_BASE = b2.CV_BASE
OPS, CRED, NW, RING = f5.OPS, f5.CRED, f5.NW, f5.RING
W = f"s{S_WAVE}"
MAPPING = 1
PSTAMP = False

def setup(a):
    a(f"""
    s_load_dwordx4 s[4:7], s[0:1], {KA['q']}       ; q, k
    s_load_dwordx4 s[8:11], s[0:1], {KA['v']}      ; v, shift
    s_load_dwordx4 s[12:15], s[0:1], {KA['w1']}    ; w1, b1
    s_load_dwordx4 s[48:51], s[0:1], {KA['dbg']}
    v_and_b32 v1, 63, v0
    v_lshrrev_b32 v2, 6, v0
    s_nop 0
    v_readfirstlane_b32 s{S_WAVE}, v2
    s_lshl_b32 s52, s2, 3
    s_add_u32 s52, s52, {W}
    s_lshl_b32 s52, s52, 10
    v_lshl_add_u32 v5, v1, 4, s52
    s_waitcnt lgkmcnt(0)
    """)
    srd(a, SRD_X, 4, S*D*2)
    a(f"buffer_load_dwordx4 v[112:115], v5, s[{SRD_X}:{SRD_X+3}], 0 offen")
    f5.emit_kv_loads(a)
    srd(a, SRD_DBG, 48, 256)
    srd(a, SRD_WS, 50, WS_SIZE)
    srd(a, SRD_W1, 12, D*F*2)
    a(f"""
    s_load_dwordx2 s[48:49], s[0:1], {KA['w2']}
    s_load_dwordx4 s[52:55], s[0:1], {KA['ssmk']}
    """)

def conv_words(a):
    a(f"""
    s_waitcnt lgkmcnt(0)
    s_mov_b32 s50, s52
    s_mov_b32 s51, s53
    s_bfe_u32 s60, {W}, 0x10001
    s_lshl_b32 s61, s2, 1
    s_add_u32 s61, s61, s60
    s_lshl_b32 s61, s61, 12
    s_add_u32 s52, s52, s61
    s_addc_u32 s53, s53, 0
    s_load_dword s16, s[52:53], 0                  ; (K[0], K[1])
    s_lshl_b32 s61, s2, 2
    s_add_u32 s54, s54, s61
    s_addc_u32 s55, s55, 0
    s_load_dword s17, s[54:55], 0                  ; (D[d0], D[d0+1])
    """)

def k_images(a):
    a(f"""
    s_mov_b32 s{SRD_K}, s50
    s_mov_b32 s{SRD_K+1}, s51
    s_mov_b32 s{SRD_K+2}, {D*S*2}
    s_mov_b32 s{SRD_K+3}, 0x00020000
    s_lshr_b32 s52, {W}, 2                         ; ch
    s_bfe_u32 s53, {W}, 0x10001                    ; copy
    s_and_b32 s54, {W}, 1
    s_lshl_b32 s54, s54, 11
    s_lshl_b32 s55, s53, 1
    v_lshl_add_u32 v2, v1, 4, s55
    s_mul_i32 s53, s53, {OB}
    s_mul_i32 s55, s52, {CHSZ}
    s_add_u32 s53, s53, s55
    s_add_u32 s53, s53, s54
    s_add_u32 m0, s53, {CV_BASE + 32}
    s_lshl_b32 s53, s2, 1
    s_add_u32 s53, s53, s52
    s_lshl_b32 s53, s53, 12
    s_add_u32 s53, s53, s54
    buffer_load_dwordx4 v2, s[{SRD_K}:{SRD_K+3}], s53 offen lds
    buffer_load_dwordx4 v2, s[{SRD_K}:{SRD_K+3}], s53 offen offset:1024 lds
    """)

def conv_pads(b):
    lodd, lpad = b.label("cv_odd"), b.label("cv_pad")
    b(f"""
    s_lshr_b32 s52, {W}, 1
    s_and_b32 s53, {W}, 1
    s_mul_i32 s54, s52, {CHSZ}
    s_add_u32 s54, s54, {CV_BASE}
    v_lshl_add_u32 v3, v1, 4, s54
    v_mov_b32 v4, 0
    v_mov_b32 v5, 0
    v_mov_b32 v6, 0
    v_mov_b32 v7, 0
    s_cmp_eq_u32 s53, 1
    s_cbranch_scc1 {lodd}
    s_mov_b64 exec, 3
    ds_write_b128 v3, v[4:7]
    s_mov_b64 exec, 0x3fffffff
    ds_write_b128 v3, v[4:7] offset:{UB+4096}
    s_mov_b64 exec, -1
    s_branch {lpad}
    """)
    b.lines.append(f"{lodd}:")
    b(f"""
    s_lshl_b32 s52, s16, 16
    v_cmp_eq_u32 vcc, 1, v1
    v_mov_b32 v7, s52
    s_nop 0
    v_cndmask_b32 v7, 0, v7, vcc
    s_mov_b64 exec, 3
    ds_write_b128 v3, v[4:7] offset:{OB}
    s_mov_b64 exec, -1
    """)
    b.lines.append(f"{lpad}:")

def u_images(b):
    b(f"""
    s_lshl_b32 s52, s2, 13
    s_add_u32 s52, s52, {WS_KVT}
    v_lshlrev_b32 v2, 4, v1
    """)
    for ch in range(2):
        b(f"s_mov_b32 m0, {CV_BASE + ch*CHSZ + UB}")
        b(f"s_add_u32 s53, s52, {4096*ch}")
        for i in range(4):
            b(f"buffer_load_dwordx4 v2, s[{SRD_WS}:{SRD_WS+3}], s53 offen offset:{1024*i} sc1 lds")

def kv_flag_offsets(a, vdst, vtmp):
    a(f"""
    s_lshr_b32 s52, s2, 5
    s_lshl_b32 s52, s52, 12
    s_add_u32 s52, s52, {WS_KVF}
    v_and_b32 v{vtmp}, 31, v1
    v_lshl_add_u32 v{vdst}, v{vtmp}, 7, s52
    """)

def prep_role(a, j):
    a(f"""
    s_cmp_lt_u32 {j}, 28
    s_cselect_b32 s63, s{SRD_W1+2}, 0
    v_lshrrev_b32 v3, 3, v1
    v_and_b32 v4, 7, v1
    s_lshl_b32 s60, {W}, 6
    v_add_u32 v7, s60, v3
    v_mul_u32_u24 v7, {F*2}, v7
    v_bfe_u32 v2, v1, 4, 1
    v_lshlrev_b32 v2, 2, v2
    v_xor_b32 v2, v2, v4
    v_lshl_add_u32 v7, v2, 4, v7
    s_lshl_b32 s60, {j}, 7
    s_lshl_b32 s61, {W}, 13
    s_mov_b32 s36, s{SRD_W1}
    s_mov_b32 s37, s{SRD_W1+1}
    s_mov_b32 s38, s63
    s_mov_b32 s39, 0x00020000
    """)
    for it in range(8):
        a(f"s_add_u32 m0, s61, {RING + 1024*it}")
        a(f"s_add_u32 s32, s60, {8*F*2*it}")
        a(f"buffer_load_dwordx4 v7, s[36:39], s32 offen lds")
    srd(a, 40, 14, F*2)
    a(f"""
    s_lshl_b32 s60, {j}, 6
    v_add_lshl_u32 v104, v1, s60, 1
    buffer_load_ushort v105, v104, s[40:43], 0 offen
    """)
    conv_words(a)
    f5.nonce_publish(a)
    a("""
    s_waitcnt vmcnt(9)
    s_barrier
    """)
    stamp(a, 0)
    f5.emit_stats_row(a)
    f5.emit_kv_compute(a, 8)
    stamp(a, 1)
    a(f"""
    v_mov_b32 v60, 0x3f803f80
    v_bfe_u32 v2, v1, 2, 2
    v_bfe_u32 v3, v1, 4, 1
    v_lshrrev_b32 v5, 5, v1
    v_bfe_u32 v6, v1, 1, 1
    v_lshl_add_u32 v6, v3, 1, v6
    v_lshrrev_b32 v7, 1, v2
    v_lshl_add_u32 v2, v5, 2, v2
    v_lshlrev_b32 v2, 7, v2
    v_and_b32 v3, 1, v1
    v_lshl_add_u32 v2, v3, 3, v2
    s_lshl_b32 s53, {W}, 13
    v_add_u32 v2, s53, v2
    v_lshl_add_u32 v3, v7, 2, v6
    v_lshl_add_u32 v8, v3, 4, v2
    v_xor_b32 v3, 4, v3
    v_lshl_add_u32 v9, v3, 4, v2
    v_mov_b32 v61, v60
    v_mov_b32 v62, v60
    v_mov_b32 v63, v60
    s_waitcnt vmcnt(2)
    """)
    FR = 10
    for s in range(4):
        for di in range(2):
            r = FR + 8*s + 4*di
            a(f"ds_read_b64_tr_b16 v[{r}:{r+1}], v{8+di} offset:{RING + 2048*s}")
            a(f"ds_read_b64_tr_b16 v[{r+2}:{r+3}], v{8+di} offset:{RING + 2048*s+1024}")
        if s == 1: a("s_waitcnt lgkmcnt(4)")
    C0 = 164
    a("s_waitcnt lgkmcnt(0)")
    for s in range(4):
        for di in range(2):
            r = FR + 8*s + 4*di
            src = "0" if s == 0 else f"v[{C0+16*di}:{C0+16*di+15}]"
            a(f"v_mfma_f32_32x32x16_bf16 v[{C0+16*di}:{C0+16*di+15}], v[{r}:{r+3}], v[60:63], {src}")
    a(f"""
    s_lshl_b32 s53, {W}, 8
    s_add_u32 s53, s53, {CRED}
    v_lshl_add_u32 v3, v5, 4, s53
    s_mov_b32 s60, 1
    s_mov_b32 s61, 1
    s_nop 7
    s_nop 3
    s_mov_b64 exec, s[60:61]
    """)
    for di in range(2):
        for a4 in range(4):
            r = C0 + 16*di + 4*a4
            a(f"ds_write_b128 v3, v[{r}:{r+3}] offset:{128*di + 32*a4}")
    a(f"""
    s_mov_b64 exec, -1
    s_waitcnt vmcnt(0) lgkmcnt(0)
    s_barrier
    """)
    stamp(a, 2)
    lskip = a.label("pp_nocs")
    a(f"""
    s_cmp_lg_u32 {W}, 0
    s_cbranch_scc1 {lskip}
    """)
    f5.nonce_load(a)
    a(f"v_lshlrev_b32 v2, 2, v1")
    a(f"v_add_u32 v2, {CRED}, v2")
    for ww in range(8):
        a(f"ds_read_b32 v{8+ww}, v2 offset:{256*ww}")
    a(f"""
    v_lshlrev_b32 v16, 16, v105
    v_mul_f32 v16, {hex(LOG2E)}, v16
    v_lshlrev_b32 v5, 1, v104
    s_mov_b32 s36, s{SRD_WS}
    s_mov_b32 s37, s{SRD_WS+1}
    s_cmp_lt_u32 {j}, 28
    s_cselect_b32 s38, s{SRD_WS+2}, 0
    s_mov_b32 s39, 0x00020000
    s_mov_b32 s53, {WS_BL}
    buffer_store_dword v16, v5, s[36:39], s53 offen sc1
    s_waitcnt lgkmcnt(0)
    v_add_f32 v8, v8, v9
    v_add_f32 v10, v10, v11
    v_add_f32 v12, v12, v13
    v_add_f32 v14, v14, v15
    v_add_f32 v8, v8, v10
    v_add_f32 v12, v12, v14
    v_add_f32 v8, v8, v12
    s_mov_b32 s53, {WS_CS}
    buffer_store_dword v8, v5, s[36:39], s53 offen sc1
    s_waitcnt vmcnt(2)
    """)
    f5.nonce_get(a)
    f5.post_stats_flag(a)
    f5.post_kv_flag(a)
    a(f"""
    s_lshl_b32 s52, {j}, 2
    s_add_u32 s52, s52, {WS_CSF}
    s_waitcnt vmcnt(2)
    """)
    f5.flag_post(a, "s52")
    a.lines.append(f"{lskip}:")
    stamp(a, 3)
    k_images(a)
    l = a.label("pp_nopad")
    a(f"""
    s_cmp_ge_u32 {W}, 4
    s_cbranch_scc1 {l}
    """)
    conv_pads(a)
    a.lines.append(f"{l}:")
    f5.emit_warm_touch(a)
    l = a.label("pp_nou")
    a(f"""
    s_cmp_lg_u32 {W}, 0
    s_cbranch_scc1 {l}
    """)
    kv_flag_offsets(a, 2, 3)
    b2.spin_flags(a, "pp_kvf", 2, 3, 32)
    u_images(a)
    a.lines.append(f"{l}:")
    a("""
    s_waitcnt vmcnt(0) lgkmcnt(0)
    s_barrier
    """)
    a(f"s_mov_b32 s{b2.S_ACTF}, -1")

ACC, FS, VC, VB = f5.ACC, f5.FS, f5.VC, f5.VB
VXA, VWA, VXH, VWH = f5.VXA, f5.VWA, f5.VXH, f5.VWH
VX0, VX1, VW, VST, VK = f5.VX0, f5.VX1, f5.VW, f5.VST, f5.VK
VOPS, VFL, VFO = f5.VOPS, f5.VFL, f5.VFO

def gemm_role(a, wid):
    emit_wgmap_gemm1(a, wid, MAPPING)
    a(f"""
    v_lshrrev_b32 v2, 3, v1
    v_lshrrev_b32 v3, 4, v1
    v_and_b32 v4, 7, v1
    s_lshl_b32 s38, s32, 7
    s_lshl_b32 s39, {W}, 4
    s_add_u32 s38, s38, s39
    v_add_u32 v5, s38, v2
    v_lshlrev_b32 v5, 10, v5
    v_xor_b32 v6, v4, v3
    v_lshl_add_u32 v{VX0}, v6, 4, v5
    v_xor_b32 v6, 4, v6
    v_lshl_add_u32 v{VX1}, v6, 4, v5
    v_add_u32 v{VX1}, 8192, v{VX1}
    s_lshl_b32 s39, {W}, 3
    v_add_u32 v5, s39, v3
    v_mul_u32_u24 v5, {F*2}, v5
    v_and_b32 v6, 15, v1
    v_lshlrev_b32 v7, 2, v3
    v_xor_b32 v6, v6, v7
    v_lshl_add_u32 v5, v6, 4, v5
    s_lshl_b32 s39, s33, 8
    v_add_u32 v{VW}, s39, v5
    s_lshl_b32 s40, {W}, 11
    s_and_b32 s41, s32, 1
    s_lshl_b32 s41, s41, 2
    s_add_u32 s41, s41, s33
    s_and_b32 s41, s41, {f5.ROTMASK}
    s_mul_i32 s42, s41, {64*F*2}
    s_lshl_b32 s41, s41, 7
    """)
    for k in range(4): f5.g1_piece(a, k)
    conv_words(a)
    stamp(a, 0)
    a("""
    s_waitcnt vmcnt(4)
    """)
    if PSTAMP: stamp(a, 2)
    a("s_barrier")
    if PSTAMP: stamp(a, 3)
    for k in range(4): f5.g1_piece(a, k)
    if PSTAMP: stamp(a, 4)
    f5.emit_stats_row(a, store=False)
    if PSTAMP: stamp(a, 5)
    f5.emit_kv_compute(a, 64)
    if PSTAMP: stamp(a, 6)
    for k in range(4): f5.g1_piece(a, k)
    if PSTAMP: stamp(a, 7)
    a(f"""
    s_and_b32 s36, {W}, 3                          ; tg
    s_lshr_b32 s37, {W}, 2                         ; fh
    v_and_b32 v5, 31, v1
    v_lshrrev_b32 v6, 5, v1                        ; h
    s_lshl_b32 s38, s33, 9
    v_lshl_add_u32 v2, v5, 4, s38
    v_mul_u32_u24 v3, {WS_BL - WS_CS}, v6
    v_add3_u32 v{VOPS}, v2, v3, 0
    v_add_u32 v{VOPS}, {WS_CS}, v{VOPS}
    s_lshl_b32 s38, s32, 7
    s_add_u32 s38, s38, {WS_STF}
    v_and_b32 v2, 15, v1
    v_lshl_add_u32 v2, v2, 2, s38
    s_lshl_b32 s38, s33, 3
    s_add_u32 s38, s38, {WS_CSF}
    v_and_b32 v3, 1, v1
    v_lshl_add_u32 v3, v3, 2, s38
    v_cmp_gt_u32 vcc, 16, v1
    s_lshr_b32 s38, s2, 5
    s_lshl_b32 s38, s38, 7
    v_cndmask_b32 v{VFO}, v3, v2, vcc
    s_add_u32 s38, s38, {WS_KVF}
    v_lshl_add_u32 v3, v5, 2, s38
    v_cmp_gt_u32 vcc, 32, v1
    v_lshrrev_b32 v4, 1, v5
    v_and_b32 v4, 7, v4
    v_cndmask_b32 v{VFO}, v3, v{VFO}, vcc
    v_xor_b32 v2, v4, v6
    s_lshl_b32 s38, s36, 12
    v_lshl_add_u32 v3, v5, 7, s38
    """)
    for s in range(4):
        a(f"v_xor_b32 v4, {2*s}, v2")
        a(f"v_lshl_add_u32 v{VXA+s}, v4, 4, v3")
    a(f"""
    v_bfe_u32 v2, v1, 2, 2
    v_bfe_u32 v3, v1, 4, 1
    v_and_b32 v4, 3, v1
    v_lshrrev_b32 v7, 1, v4
    v_lshl_add_u32 v7, v3, 1, v7
    v_and_b32 v4, 1, v4
    v_lshlrev_b32 v4, 3, v4
    v_lshl_add_u32 v3, v6, 3, v2
    v_lshl_add_u32 v4, v3, 8, v4
    v_add_u32 v4, 16384, v4
    s_lshl_b32 s38, s37, 1
    """)
    for n in range(2):
        a(f"s_add_u32 s39, s38, {n}")
        a(f"v_xor_b32 v3, s39, v2")
        a(f"v_lshl_add_u32 v3, v3, 2, v7")
        a(f"v_lshl_add_u32 v{VWA+n}, v3, 4, v4")
    for r in range(4): a(f"v_add_u32 v{VXH+r}, 65536, v{VXA+r}")
    for r in range(2): a(f"v_add_u32 v{VWH+r}, 65536, v{VWA+r}")
    for r in range(32):
        a(f"v_mov_b32 v{ACC+r}, 0")
    a(f"""
    s_mov_b32 s63, 0
    """)
    if PSTAMP: stamp(a, 8)
    a(f"""
    s_waitcnt vmcnt(9)
    s_barrier
    """)
    stamp(a, 1)
    tail = []
    def reads_of(stage, step):
        slot = stage % 4
        hi, off = slot >> 1, 32768 * (slot & 1)
        dst = FS[step]
        r = [f"ds_read_b128 v[{dst}:{dst+3}], v{(VXH if hi else VXA)+step} offset:{off}"]
        for n in range(2):
            for j in range(2):
                q = dst + 4 + 4*n + 2*j
                r.append(f"ds_read_b64_tr_b16 v[{q}:{q+1}], v{(VWH if hi else VWA)+n} offset:{off + 4096*step + 1024*j}")
        return r
    def step(stage, k):
        nst = stage + (k >= 2)
        r = reads_of(nst, (k + 2) % 4) if nst < 8 else []
        a("s_waitcnt lgkmcnt(0)" if (stage == 7 and k == 3) else "s_waitcnt lgkmcnt(5)")
        f5.g1_mfma(a, k, 0)
        for x in r[:3]: a(x)
        if stage + 3 < 8: f5.g1_piece(a, k, True)
        f5.g1_mfma(a, k, 1)
        for x in r[3:]: a(x)
    def out_of_line(name, cond, body):
        lo, lb = a.label(name + "_out"), a.label(name + "_back")
        a(cond)
        a(f"s_cbranch_scc1 {lo}")
        a.lines.append(f"{lb}:")
        b = Asm(); b.nlabel = a.nlabel + 1000 * (len(tail) + 1)
        b.lines.append(f"{lo}:")
        body(b)
        b(f"s_branch {lb}")
        tail.append(b)
    W0 = f"s_cmp_eq_u32 {W}, 0"
    def request(b, last):
        lop, lu, le = b.label("rq_op"), b.label("rq_u"), b.label("rq_e")
        b(f"""
        v_cmp_ne_u32 vcc, s{S_N}, v{VFL}
        s_bitcmp1_b32 s63, 0
        s_cbranch_scc1 {lop}
        s_cmp_lg_u32 vcc_lo, 0
        s_cbranch_scc1 {lop}
        s_or_b32 s63, s63, 1
        """)
        f5.g1_operand_dma(b)
        b.lines.append(f"{lop}:")
        b(f"""
        s_bitcmp1_b32 s63, 1
        s_cbranch_scc1 {lu}
        s_cmp_lg_u32 vcc_hi, 0
        s_cbranch_scc1 {lu}
        s_or_b32 s63, s63, 2
        """)
        u_images(b)
        b.lines.append(f"{lu}:")
        if not last:
            b(f"""
            s_cmp_eq_u32 s63, 3
            s_cbranch_scc1 {le}
            """)
            f5.g1_poll(b)
            b.lines.append(f"{le}:")
    for x in reads_of(0, 0) + reads_of(0, 1): a(x)
    VM = [7, 7, 7, 6, 6, 6, 2]
    for st in range(8):
        if st == 5:
            k_images(a)
            out_of_line("g1_pads", f"s_cmp_lt_u32 {W}, 4", conv_pads)
        if st == 6:
            out_of_line("g1_poll1", W0, f5.g1_poll)
        if st == 7:
            def req1(b):
                b("s_waitcnt vmcnt(0)")
                request(b, False)
            out_of_line("g1_req1", W0, req1)
        step(st, 0); step(st, 1)
        if st < 7:
            a(f"s_waitcnt vmcnt({VM[st]})")
            a("s_barrier")
        step(st, 2); step(st, 3)
        if st == 0:
            out_of_line("g1_nld", W0, f5.nonce_load)
            f5.emit_stats_store(a)
        if st == 3:
            def post(b):
                f5.nonce_get(b)
                f5.post_stats_flag(b)
                f5.post_kv_flag(b)
            out_of_line("g1_post", W0, post)
    if not PSTAMP: stamp(a, 2)
    def fin(b):
        lsp, le = b.label("fin_spin"), b.label("fin_e")
        b("s_mov_b32 s54, 0")
        b.lines.append(f"{lsp}:")
        b(f"""
        s_cmp_eq_u32 s63, 3
        s_cbranch_scc1 {le}
        s_cmp_ge_u32 s54, 0x40000
        s_cbranch_scc1 {le}
        s_add_u32 s54, s54, 1
        s_waitcnt vmcnt(0)
        """)
        request(b, False)
        b(f"s_branch {lsp}")
        b.lines.append(f"{le}:")
    out_of_line("g1_fin", W0, fin)
    R = VK + 6
    a(f"""
    v_mov_b32 v{VK}, 1.0
    v_mov_b32 v{VK+1}, 1.0
    v_mov_b32 v{VK+2}, {hex(LN2)}
    v_mov_b32 v{VK+3}, {hex(LN2)}
    v_mov_b32 v{VK+4}, {hex(NEG2LN2)}
    v_mov_b32 v{VK+5}, {hex(NEG2LN2)}
    s_lshl_b32 s38, s32, 2
    s_add_u32 s38, s38, s36
    s_mul_i32 s38, s38, 112
    s_lshl_b32 s39, s33, 3
    s_add_u32 s38, s38, s39
    s_lshl_b32 s39, s37, 2
    s_add_u32 s38, s38, s39
    s_lshl_b32 s38, s38, 10
    s_add_u32 s38, s38, {WS_ACT}
    v_and_b32 v5, 31, v1
    s_lshl_b32 s39, s36, 8
    v_lshl_add_u32 v3, v5, 3, s39
    v_add_u32 v3, {OPS}, v3
    v_lshrrev_b32 v4, 5, v1
    s_lshl_b32 s39, s37, 8
    v_lshl_add_u32 v4, v4, 4, s39
    v_add_u32 v4, {OPS + 1024}, v4
    v_lshlrev_b32 v182, 4, v1
    s_waitcnt vmcnt(0) lgkmcnt(0)
    s_barrier
    ds_read_b64 v[{VST}:{VST+1}], v3
    """)
    for g in range(7):
        a(f"ds_read_b128 v[{VC+4*g}:{VC+4*g+3}], v4 offset:{32*g}")
        a(f"ds_read_b128 v[{VB+4*g}:{VB+4*g+3}], v4 offset:{512+32*g}")
    a("s_waitcnt lgkmcnt(14)")
    a(f"v_mul_f32 v{R}, {hex(LOG2E)}, v{VST+1}")
    a(f"ds_read_b128 v[{VC+28}:{VC+31}], v4 offset:{32*7}")
    a(f"ds_read_b128 v[{VB+28}:{VB+31}], v4 offset:{512+32*7}")
    if not PSTAMP: stamp(a, 3)
    def pr(r): return f"v[{r}:{r+1}]"
    T, OUT = 40, 152
    for fr in range(4):
        prs = [(ACC + 8*fr + 2*p, VC + 8*fr + 2*p, VB + 8*fr + 2*p) for p in range(4)]
        Z = [T + 2*p for p in range(4)]
        E = [T + 8 + 2*p for p in range(4)]
        a(f"s_waitcnt lgkmcnt({12 - 4*fr})")
        for p, (ac, c, b) in enumerate(prs):
            a(f"v_pk_fma_f32 {pr(Z[p])}, {pr(VST)}, {pr(c)}, {pr(ac)} op_sel_hi:[0,1,1] neg_lo:[1,0,0] neg_hi:[1,0,0]")
        for p, (ac, c, b) in enumerate(prs):
            a(f"v_pk_fma_f32 {pr(Z[p])}, {pr(R)}, {pr(Z[p])}, {pr(b)} op_sel_hi:[0,1,1]")
        for p in range(4):
            a(f"v_exp_f32 v{E[p]}, v{Z[p]}")
            a(f"v_exp_f32 v{E[p]+1}, v{Z[p]+1}")
        for p in range(4):
            a(f"v_pk_add_f32 {pr(E[p])}, {pr(E[p])}, {pr(VK)}")
        for p in range(4):
            a(f"v_pk_fma_f32 {pr(E[p])}, {pr(E[p])}, {pr(E[p])}, {pr(VK)}")
        for p in range(4):
            a(f"v_rcp_f32 v{E[p]}, v{E[p]}")
            a(f"v_rcp_f32 v{E[p]+1}, v{E[p]+1}")
        for p in range(4):
            a(f"v_pk_fma_f32 {pr(E[p])}, {pr(E[p])}, {pr(VK+4)}, {pr(VK+2)}")
        for p in range(4):
            a(f"v_pk_mul_f32 {pr(Z[p])}, {pr(Z[p])}, {pr(E[p])}")
        o = OUT + 4*fr
        for p in range(4):
            a(f"v_cvt_pk_bf16_f32 v{o+p}, v{Z[p]}, v{Z[p]+1}")
        a(f"buffer_store_dwordx4 v[{o}:{o+3}], v182, s[{SRD_WS}:{SRD_WS+3}], s38 offen offset:{1024*fr} sc1")
    if not PSTAMP: stamp(a, 4)
    a(f"""
    s_lshl_b32 s{b2.S_ACTF}, s32, 7
    s_lshl_b32 s52, s33, 2
    s_add_u32 s{b2.S_ACTF}, s{b2.S_ACTF}, s52
    s_add_u32 s{b2.S_ACTF}, s{b2.S_ACTF}, {WS_ACTF}
    """)
    lend = a.label("g1_end")
    a(f"s_branch {lend}")
    for b in tail: a.lines += b.lines
    a.lines.append(f"{lend}:")

def kernel(name=NAME):
    import back3
    f5.MERGED = True
    back3.NW = NW
    a = Asm()
    kernel_begin(a, name)
    a("""
    s_cmp_ge_u32 s2, 256
    s_cbranch_scc1 L_all_end
    """)
    stamp_begin(a)
    setup(a)
    lg, lb = a.label("fr_gemm"), a.label("fr_back")
    a(f"""
    s_cmp_ge_u32 s2, 32
    s_cbranch_scc1 {lg}
    s_mov_b32 s3, s2
    """)
    prep_role(a, "s3")
    a(f"s_branch {lb}")
    a.lines.append(f"{lg}:")
    a("s_sub_u32 s3, s2, 32")
    gemm_role(a, "s3")
    a.lines.append(f"{lb}:")
    back3.emit_back(a)
    stamp_end(a, 0)
    a.lines.append("L_all_end:")
    a("s_endpgm")
    return a.text(), kernel_desc(name, 200, nsgpr(64)), f5.FRONT_LDS
```

```python
from common import *
import common
import front5 as f5
import merged2 as m2
import back3 as b3
from gemm1 import emit_wgmap_gemm1
from conv import OB, UB, CHSZ

NAME = m2.NAME
S_WAVE, S_N = 18, 62
SRD_X, SRD_W1, SRD_WS = 20, 24, 28
OPS, NW = f5.OPS, f5.NW
AF = NW + 4
KT, VT, TR = f5.KT, f5.VT, f5.TR
W = f"s{S_WAVE}"
MAPPING = 1
ACC, FS, VC, VB = f5.ACC, f5.FS, f5.VC, f5.VB
VXA, VWA, VXH, VWH = f5.VXA, f5.VWA, f5.VXH, f5.VWH
VX0, VX1, VW, VST, VK = f5.VX0, f5.VX1, f5.VW, f5.VST, f5.VK
VOPS, VFL, VFO = f5.VOPS, f5.VFL, f5.VFO
VKO, VKF = 153, 154

def lines_of(fn, *args, **kw):
    t = Asm(); fn(t, *args, **kw)
    return [l.strip() for l in t.lines if l.strip() and not l.strip().startswith(";")]

def kv_lists(B):
    K, V, SS, KV, RK, RV, O = B, B+14, B+22, B+30, B+38, B+46, B+50
    A1, A2, A3, A4 = 122, 123, 152, 155
    def pr(r): return f"v[{r}:{r+1}]"
    addr = [f"v_and_b32 v{A1}, 31, v0", f"v_lshrrev_b32 v{A2}, 5, v0", f"v_lshlrev_b32 v{A3}, 9, v{A2}",
            f"v_lshl_add_u32 v{A3}, v{A1}, 2, v{A3}", f"v_add_u32 v{A4}, {KT + 5*128}, v{A3}", f"v_add_u32 v{A3}, {VT}, v{A3}"]
    reads = [f"ds_read_b32 v{RK+i}, v{A4} offset:{128*i}" for i in range(7)] + [f"ds_read_b32 v{RV+i}, v{A3} offset:{128*i}" for i in range(4)]
    coef = [f"v_lshlrev_b32 v{SS+0}, 16, v124", f"v_lshlrev_b32 v{SS+1}, 16, v126", f"v_and_b32 v{SS+2}, 0xffff0000, v124", f"v_and_b32 v{SS+3}, 0xffff0000, v126",
            f"v_lshlrev_b32 v{SS+4}, 16, v125", f"v_lshlrev_b32 v{SS+5}, 16, v127", f"v_and_b32 v{SS+6}, 0xffff0000, v125", f"v_and_b32 v{SS+7}, 0xffff0000, v127"]
    waddr = [f"v_sub_u32 v{A2}, 15, v{A2}", f"v_lshrrev_b32 v{RK+7}, 1, v{A2}", f"v_and_b32 v{O}, 7, v{A1}", f"v_xor_b32 v{RK+7}, v{RK+7}, v{O}",
             f"v_lshlrev_b32 v{RK+7}, 4, v{RK+7}", f"v_and_b32 v{A2}, 1, v{A2}", f"v_lshl_add_u32 v{RK+7}, v{A2}, 3, v{RK+7}",
             f"v_lshl_add_u32 v{RK+7}, v{A1}, 8, v{RK+7}", f"v_add_u32 v{A2}, {TR}, v{RK+7}"]
    arith = []
    for i in range(7):
        arith += [f"v_lshlrev_b32 v{K+2*i}, 16, v{RK+i}", f"v_and_b32 v{K+2*i+1}, 0xffff0000, v{RK+i}"]
    for i in range(4):
        arith += [f"v_lshlrev_b32 v{V+2*i}, 16, v{RV+i}", f"v_and_b32 v{V+2*i+1}, 0xffff0000, v{RV+i}"]
    for tt in range(4):
        for c in range(2): arith.append(f"v_mul_f32 v{KV+2*tt+c}, v{K+2*tt+c}, v{SS+6+c}")
    for n, off in ((4, 1), (2, 2), (0, 3)):
        for tt in range(4):
            for c in range(2): arith.append(f"v_fmac_f32 v{KV+2*tt+c}, v{K+2*(tt+off)+c}, v{SS+n+c}")
    for tt in range(4):
        for c in range(2): arith.append(f"v_mul_f32 v{KV+2*tt+c}, v{KV+2*tt+c}, v{V+2*tt+c}")
    for ch in range(2):
        arith += [f"v_cvt_pk_bf16_f32 v{O+2*ch}, v{KV+6+ch}, v{KV+4+ch}", f"v_cvt_pk_bf16_f32 v{O+1+2*ch}, v{KV+2+ch}, v{KV+ch}"]
    writes = [f"ds_write_b64 v{A2}, v[{O+2*ch}:{O+1+2*ch}] offset:{128*ch}" for ch in range(2)]
    rb_addr = [f"v_lshrrev_b32 v{A1}, 3, v1", f"s_lshl_b32 s54, {W}, 3", f"v_add_u32 v{A1}, s54, v{A1}", f"v_lshrrev_b32 v{A3}, 1, v{A1}",
               f"v_and_b32 v{A3}, 7, v{A3}", f"v_and_b32 v{A4}, 7, v1", f"v_xor_b32 v{A3}, v{A3}, v{A4}", f"v_lshlrev_b32 v{A3}, 4, v{A3}",
               f"v_lshl_add_u32 v{A3}, v{A1}, 7, v{A3}", f"v_add_u32 v{A3}, {TR}, v{A3}",
               "s_and_b32 s53, s2, 7", "s_lshl_b32 s53, s53, 6", f"v_add_u32 v{A1}, s53, v{A1}", f"v_lshlrev_b32 v{A1}, 12, v{A1}",
               f"v_lshl_add_u32 v{A1}, v{A4}, 4, v{A1}"]
    rb_read = [f"ds_read_b128 v[{K}:{K+3}], v{A3}"]
    store = ["s_lshr_b32 s52, s2, 3", "s_lshl_b32 s52, s52, 7", f"s_sub_u32 s52, {WS_KVT + 2*1984}, s52",
             f"buffer_store_dwordx4 v[{K}:{K+3}], v{A1}, s[{SRD_WS}:{SRD_WS+3}], s52 offen sc1"]
    return dict(addr=addr, reads=reads, coef=coef, waddr=waddr, arith=arith, writes=writes, rb_addr=rb_addr, rb_read=rb_read, store=store)

def gemm_role(a, wid):
    emit_wgmap_gemm1(a, wid, MAPPING)
    a(f"""
    v_lshrrev_b32 v2, 3, v1
    v_lshrrev_b32 v3, 4, v1
    v_and_b32 v4, 7, v1
    s_lshl_b32 s38, s32, 7
    s_lshl_b32 s39, {W}, 4
    s_add_u32 s38, s38, s39
    v_add_u32 v5, s38, v2
    v_lshlrev_b32 v5, 10, v5
    v_xor_b32 v6, v4, v3
    v_lshl_add_u32 v{VX0}, v6, 4, v5
    v_xor_b32 v6, 4, v6
    v_lshl_add_u32 v{VX1}, v6, 4, v5
    v_add_u32 v{VX1}, 8192, v{VX1}
    s_lshl_b32 s39, {W}, 3
    v_add_u32 v5, s39, v3
    v_mul_u32_u24 v5, {F*2}, v5
    v_and_b32 v6, 15, v1
    v_lshlrev_b32 v7, 2, v3
    v_xor_b32 v6, v6, v7
    v_lshl_add_u32 v5, v6, 4, v5
    s_lshl_b32 s39, s33, 8
    v_add_u32 v{VW}, s39, v5
    s_lshl_b32 s40, {W}, 11
    s_and_b32 s41, s32, 1
    s_lshl_b32 s41, s41, 2
    s_add_u32 s41, s41, s33
    s_and_b32 s41, s41, {f5.ROTMASK}
    s_mul_i32 s42, s41, {64*F*2}
    s_lshl_b32 s41, s41, 7
    """)
    for k in range(4): f5.g1_piece(a, k)
    stamp(a, 0)
    a(f"""
    s_and_b32 s36, {W}, 3                          ; tg
    s_lshr_b32 s37, {W}, 2                         ; fh
    v_and_b32 v5, 31, v1
    v_lshrrev_b32 v6, 5, v1                        ; h
    s_lshl_b32 s38, s33, 9
    v_lshl_add_u32 v2, v5, 4, s38
    v_mul_u32_u24 v3, {WS_BL - WS_CS}, v6
    v_add3_u32 v{VOPS}, v2, v3, 0
    v_add_u32 v{VOPS}, {WS_CS}, v{VOPS}
    s_lshl_b32 s38, s32, 7
    s_add_u32 s38, s38, {WS_STF}
    v_and_b32 v2, 15, v1
    v_lshl_add_u32 v2, v2, 2, s38
    s_lshl_b32 s38, s33, 3
    s_add_u32 s38, s38, {WS_CSF}
    v_and_b32 v3, 1, v1
    v_lshl_add_u32 v3, v3, 2, s38
    v_cmp_gt_u32 vcc, 16, v1
    v_lshrrev_b32 v4, 1, v5
    v_and_b32 v4, 7, v4
    v_cndmask_b32 v{VFO}, v3, v2, vcc
    v_xor_b32 v2, v4, v6
    s_lshl_b32 s38, s36, 12
    v_lshl_add_u32 v3, v5, 7, s38
    """)
    for s in range(4):
        a(f"v_xor_b32 v4, {2*s}, v2")
        a(f"v_lshl_add_u32 v{VXA+s}, v4, 4, v3")
    a(f"""
    v_bfe_u32 v2, v1, 2, 2
    v_bfe_u32 v3, v1, 4, 1
    v_and_b32 v4, 3, v1
    v_lshrrev_b32 v7, 1, v4
    v_lshl_add_u32 v7, v3, 1, v7
    v_and_b32 v4, 1, v4
    v_lshlrev_b32 v4, 3, v4
    v_lshl_add_u32 v3, v6, 3, v2
    v_lshl_add_u32 v4, v3, 8, v4
    v_add_u32 v4, 16384, v4
    s_lshl_b32 s38, s37, 1
    """)
    for n in range(2):
        a(f"s_add_u32 s39, s38, {n}")
        a(f"v_xor_b32 v3, s39, v2")
        a(f"v_lshl_add_u32 v3, v3, 2, v7")
        a(f"v_lshl_add_u32 v{VWA+n}, v3, 4, v4")
    for r in range(4): a(f"v_add_u32 v{VXH+r}, 65536, v{VXA+r}")
    for r in range(2): a(f"v_add_u32 v{VWH+r}, 65536, v{VWA+r}")
    for r in range(32):
        a(f"v_mov_b32 v{ACC+r}, 0")
    a(f"""
    v_mov_b32 v2, {AF}
    v_mov_b32 v3, 0
    ds_write_b32 v2, v3
    """)
    for st in range(2):
        for k in range(4): f5.g1_piece(a, k)
    m2.conv_words(a)
    a(f"""
    s_mov_b32 s63, 0
    s_waitcnt vmcnt(8) lgkmcnt(0)
    s_barrier
    """)
    stamp(a, 1)
    kv = kv_lists(64)
    stats = lines_of(f5.emit_stats_row, store=False)
    fill = {i: [] for i in range(64)}
    pre = {i: [] for i in range(32)}
    def spread(lst, s0, s1):
        n = s1 - s0
        for i in range(n):
            fill[s0 + i] += lst[len(lst)*i//n : len(lst)*(i+1)//n]
    spread(stats, 0, 12)
    spread(kv['addr'] + kv['coef'], 8, 12)
    pre[6] += kv['reads'][:4]; pre[7] += kv['reads'][4:8]; pre[8] += kv['reads'][8:]
    spread(kv['waddr'], 12, 16)
    spread(kv['arith'], 18, 27)
    pre_late = {13: kv['writes']}
    spread(kv['rb_addr'], 27, 28)
    tail = []
    def reads_of(stage, step):
        slot = stage % 4
        hi, off = slot >> 1, 32768 * (slot & 1)
        dst = FS[step]
        r = [f"ds_read_b128 v[{dst}:{dst+3}], v{(VXH if hi else VXA)+step} offset:{off}"]
        for n in range(2):
            for j in range(2):
                q = dst + 4 + 4*n + 2*j
                r.append(f"ds_read_b64_tr_b16 v[{q}:{q+1}], v{(VWH if hi else VWA)+n} offset:{off + 4096*step + 1024*j}")
        return r
    def step(stage, k):
        g = 4*stage + k
        nst = stage + (k >= 2)
        r = reads_of(nst, (k + 2) % 4) if nst < 8 else []
        a("s_waitcnt lgkmcnt(0)" if (stage == 7 and k == 3) else "s_waitcnt lgkmcnt(5)")
        for x in pre[g]: a(x)
        f5.g1_mfma(a, k, 0)
        for x in r[:3]: a(x)
        if stage + 3 < 8: f5.g1_piece(a, k, True)
        for x in fill[2*g]: a(x)
        f5.g1_mfma(a, k, 1)
        if g == 13:
            for x in fill[2*g+1]: a(x)
            for x in kv['writes']: a(x)
            for x in r[3:]: a(x)
        else:
            for x in r[3:]: a(x)
            for x in fill[2*g+1]: a(x)
    def out_of_line(name, cond, body):
        lo, lb = a.label(name + "_out"), a.label(name + "_back")
        a(cond)
        a(f"s_cbranch_scc1 {lo}")
        a.lines.append(f"{lb}:")
        b = Asm(); b.nlabel = a.nlabel + 1000 * (len(tail) + 1)
        b.lines.append(f"{lo}:")
        body(b)
        b(f"s_branch {lb}")
        tail.append(b)
    W0, W4 = f"s_cmp_eq_u32 {W}, 0", f"s_cmp_eq_u32 {W}, 4"
    def request(b):
        ln, le = b.label("rq_n"), b.label("rq_e")
        f5.g1_check(b, ln)
        b("s_mov_b32 s63, 1")
        f5.g1_operand_dma(b)
        b(f"s_branch {le}")
        b.lines.append(f"{ln}:")
        f5.g1_poll(b)
        b.lines.append(f"{le}:")
    for x in reads_of(0, 0) + reads_of(0, 1): a(x)
    VM = [6, 6, 7, 6, 7, 6, 2]
    for st in range(8):
        if st == 5:
            m2.k_images(a)
            out_of_line("g1_pads", f"s_cmp_lt_u32 {W}, 4", m2.conv_pads)
        step(st, 0); step(st, 1)
        if st < 7:
            if st == 3:
                a(f"s_waitcnt vmcnt({VM[st]}) lgkmcnt(2)")
            else:
                a(f"s_waitcnt vmcnt({VM[st]})")
            a("s_barrier")
        if st == 3:
            pre[14] += kv['rb_read']
        if st == 6:
            out_of_line("g1_req1", W0, request)
        step(st, 2); step(st, 3)
        if st == 0:
            out_of_line("g1_nld", W0, f5.nonce_load)
        if st == 1:
            f5.emit_stats_store(a)
        if st == 3:
            def post(b):
                f5.nonce_get(b)
                f5.post_stats_flag(b)
            out_of_line("g1_post", W0, post)
            for x in kv['store']: a(x)
        if st == 4:
            out_of_line("g1_poll1", W0, f5.g1_poll)
        if st == 5:
            out_of_line("g1_kvf", W0, f5.post_kv_flag)
    stamp(a, 2)
    def fin(b):
        lsp, le = b.label("fin_spin"), b.label("fin_e")
        b("s_mov_b32 s54, 0")
        b.lines.append(f"{lsp}:")
        b(f"""
        s_cmp_eq_u32 s63, 1
        s_cbranch_scc1 {le}
        s_cmp_ge_u32 s54, 0x40000
        s_cbranch_scc1 {le}
        s_add_u32 s54, s54, 1
        s_waitcnt vmcnt(0)
        """)
        request(b)
        b(f"s_branch {lsp}")
        b.lines.append(f"{le}:")
    out_of_line("g1_fin", W0, fin)
    R = VK + 6
    a(f"""
    v_mov_b32 v{VK}, 1.0
    v_mov_b32 v{VK+1}, 1.0
    v_mov_b32 v{VK+2}, {hex(LN2)}
    v_mov_b32 v{VK+3}, {hex(LN2)}
    v_mov_b32 v{VK+4}, {hex(NEG2LN2)}
    v_mov_b32 v{VK+5}, {hex(NEG2LN2)}
    s_lshl_b32 s38, s32, 2
    s_add_u32 s38, s38, s36
    s_mul_i32 s38, s38, 112
    s_lshl_b32 s39, s33, 3
    s_add_u32 s38, s38, s39
    s_lshl_b32 s39, s37, 2
    s_add_u32 s38, s38, s39
    s_lshl_b32 s38, s38, 10
    s_add_u32 s38, s38, {WS_ACT}
    v_and_b32 v5, 31, v1
    s_lshl_b32 s39, s36, 8
    v_lshl_add_u32 v3, v5, 3, s39
    v_add_u32 v3, {OPS}, v3
    v_lshrrev_b32 v4, 5, v1
    s_lshl_b32 s39, s37, 8
    v_lshl_add_u32 v4, v4, 4, s39
    v_add_u32 v4, {OPS + 1024}, v4
    v_lshlrev_b32 v182, 4, v1
    v_mov_b32 v183, {NW}
    s_waitcnt vmcnt(0) lgkmcnt(0)
    s_barrier
    ds_read_b32 v183, v183
    ds_read_b64 v[{VST}:{VST+1}], v3
    """)
    for g in range(6):
        a(f"ds_read_b128 v[{VC+4*g}:{VC+4*g+3}], v4 offset:{32*g}")
        a(f"ds_read_b128 v[{VB+4*g}:{VB+4*g+3}], v4 offset:{512+32*g}")
    a("s_waitcnt lgkmcnt(12)")
    a(f"v_mul_f32 v{R}, {hex(LOG2E)}, v{VST+1}")
    a(f"v_readfirstlane_b32 s{S_N}, v183")
    for g in (6, 7):
        a(f"ds_read_b128 v[{VC+4*g}:{VC+4*g+3}], v4 offset:{32*g}")
        a(f"ds_read_b128 v[{VB+4*g}:{VB+4*g+3}], v4 offset:{512+32*g}")
    stamp(a, 3)
    m2.kv_flag_offsets(a, VKO, VKF)
    def kvpoll(b):
        b(f"buffer_load_dword v{VKF}, v{VKO}, s[{SRD_WS}:{SRD_WS+3}], 0 offen sc1")
    out_of_line("g1_kvpoll", W4, kvpoll)
    a("s_mov_b32 s63, 0")
    def pr(r): return f"v[{r}:{r+1}]"
    T, OUT = 40, 156
    for fr in range(4):
        prs = [(ACC + 8*fr + 2*p, VC + 8*fr + 2*p, VB + 8*fr + 2*p) for p in range(4)]
        Z = [T + 2*p for p in range(4)]
        E = [T + 8 + 2*p for p in range(4)]
        a(f"s_waitcnt lgkmcnt({12 - 4*fr})")
        for p, (ac, c, b) in enumerate(prs):
            a(f"v_pk_fma_f32 {pr(Z[p])}, {pr(VST)}, {pr(c)}, {pr(ac)} op_sel_hi:[0,1,1] neg_lo:[1,0,0] neg_hi:[1,0,0]")
        for p, (ac, c, b) in enumerate(prs):
            a(f"v_pk_fma_f32 {pr(Z[p])}, {pr(R)}, {pr(Z[p])}, {pr(b)} op_sel_hi:[0,1,1]")
        for p in range(4):
            a(f"v_exp_f32 v{E[p]}, v{Z[p]}")
            a(f"v_exp_f32 v{E[p]+1}, v{Z[p]+1}")
        for p in range(4):
            a(f"v_pk_add_f32 {pr(E[p])}, {pr(E[p])}, {pr(VK)}")
        for p in range(4):
            a(f"v_pk_fma_f32 {pr(E[p])}, {pr(E[p])}, {pr(E[p])}, {pr(VK)}")
        for p in range(4):
            a(f"v_rcp_f32 v{E[p]}, v{E[p]}")
            a(f"v_rcp_f32 v{E[p]+1}, v{E[p]+1}")
        for p in range(4):
            a(f"v_pk_fma_f32 {pr(E[p])}, {pr(E[p])}, {pr(VK+4)}, {pr(VK+2)}")
        for p in range(4):
            a(f"v_pk_mul_f32 {pr(Z[p])}, {pr(Z[p])}, {pr(E[p])}")
        o = OUT + 4*fr
        for p in range(4):
            a(f"v_cvt_pk_bf16_f32 v{o+p}, v{Z[p]}, v{Z[p]+1}")
        a(f"buffer_store_dwordx4 v[{o}:{o+3}], v182, s[{SRD_WS}:{SRD_WS+3}], s38 offen offset:{1024*fr} sc1")
        if fr == 1:
            def kvreq(b):
                ln = b.label("kvreq_n")
                b(f"""
                s_waitcnt vmcnt(2)
                v_cmp_ne_u32 vcc, s{S_N}, v{VKF}
                s_nop 1
                s_cmp_eq_u64 vcc, 0
                s_cbranch_scc0 {ln}
                s_mov_b32 s63, 1
                """)
                m2.u_images(b)
                b.lines.append(f"{ln}:")
            out_of_line("g1_kvreq", W4, kvreq)
    stamp(a, 4)
    def kvfin(b):
        l1, le = b.label("kvfin_1"), b.label("kvfin_e")
        b(f"""
        s_cmp_eq_u32 s63, 1
        s_cbranch_scc1 {l1}
        """)
        b3.spin_flags(b, "kvfin", VKO, VKF, 32)
        m2.u_images(b)
        b("s_waitcnt vmcnt(0)")
        b(f"s_branch {le}")
        b.lines.append(f"{l1}:")
        b("s_waitcnt vmcnt(2)")
        b.lines.append(f"{le}:")
    out_of_line("g1_kvfin", W4, kvfin)
    a(f"""
    s_barrier
    s_lshl_b32 s{b3.S_ACTF}, s32, 7
    s_lshl_b32 s52, s33, 2
    s_add_u32 s{b3.S_ACTF}, s{b3.S_ACTF}, s52
    s_add_u32 s{b3.S_ACTF}, s{b3.S_ACTF}, {WS_ACTF}
    """)
    lend = a.label("g1_end")
    a(f"s_branch {lend}")
    for b in tail: a.lines += b.lines
    a.lines.append(f"{lend}:")

def kernel(name=NAME):
    f5.MERGED = True
    b3.NW = NW
    b3.AF = AF
    a = Asm()
    kernel_begin(a, name)
    a("""
    s_cmp_ge_u32 s2, 256
    s_cbranch_scc1 L_all_end
    """)
    stamp_begin(a)
    m2.setup(a)
    lg, lb = a.label("fr_gemm"), a.label("fr_back")
    a(f"""
    s_cmp_ge_u32 s2, 32
    s_cbranch_scc1 {lg}
    s_mov_b32 s3, s2
    v_mov_b32 v2, {AF}
    v_mov_b32 v3, 0
    ds_write_b32 v2, v3
    """)
    m2.prep_role(a, "s3")
    a(f"s_branch {lb}")
    a.lines.append(f"{lg}:")
    a("s_sub_u32 s3, s2, 32")
    gemm_role(a, "s3")
    a.lines.append(f"{lb}:")
    b3.emit_back(a)
    stamp_end(a, 0)
    a.lines.append("L_all_end:")
    a("s_endpgm")
    return a.text(), kernel_desc(name, 200, nsgpr(64)), f5.FRONT_LDS
```

```python
from common import *
import common
import front5 as f5
import merged2 as m2
import merged3 as m3
import back3 as b3
from gemm1 import emit_wgmap_gemm1
from conv import OB, UB, CHSZ

NAME = m2.NAME
S_WAVE, S_N = 18, 62
SRD_X, SRD_W1, SRD_WS = 20, 24, 28
OPS, NW = f5.OPS, f5.NW
AF = NW + 4
W = f"s{S_WAVE}"
MAPPING = 1
LSTAMP = False
ACC, FS, VC, VB = f5.ACC, f5.FS, f5.VC, f5.VB
VXA, VWA, VXH, VWH = f5.VXA, f5.VWA, f5.VXH, f5.VWH
VX0, VX1, VW, VST, VK = f5.VX0, f5.VX1, f5.VW, f5.VST, f5.VK
VOPS, VFL, VFO = f5.VOPS, f5.VFL, f5.VFO
REC = 256

def post_stats_flag(a):
    a(f"""
    s_lshl_b32 s52, s2, 7
    s_add_u32 s52, s52, {WS_STF}
    """)
    f5.flag_post(a, "s52")

def post_colsum_flag(a, j):
    a(f"""
    s_lshl_b32 s52, {j}, 7
    s_add_u32 s52, s52, {WS_CSF}
    """)
    f5.flag_post(a, "s52")

def interleave(*lists):
    out, pos = [], [0]*len(lists)
    total = sum(len(l) for l in lists)
    for i in range(total):
        best = min((p for p in range(len(lists)) if pos[p] < len(lists[p])), key=lambda p: pos[p] / len(lists[p]))
        out.append(lists[best][pos[best]]); pos[best] += 1
    return out

def kv_first_part(a, kv, stats):
    dots = stats[:10]
    assert sum('dot2' in x for x in dots) == 8
    rest = stats[10:]
    for x in kv['addr']: a(x)
    for x in dots: a(x)
    a("s_nop 1")
    for x in kv['reads']: a(x)
    for x in kv['coef'] + kv['waddr']: a(x)
    a("s_waitcnt lgkmcnt(0)")
    for x in interleave(kv['arith'], rest): a(x)
    for x in kv['writes']: a(x)

def pk_arith(B):
    K, V, SS, KV, RK, RV, O = B, B+14, B+22, B+30, B+38, B+46, B+50
    def pr(r): return f"v[{r}:{r+1}]"
    t = []
    for i in range(7):
        t += [f"v_lshlrev_b32 v{K+2*i}, 16, v{RK+i}", f"v_and_b32 v{K+2*i+1}, 0xffff0000, v{RK+i}"]
    for tt in range(4): t.append(f"v_pk_mul_f32 {pr(KV+2*tt)}, {pr(K+2*tt)}, {pr(SS+6)}")
    for i in range(4):
        t += [f"v_lshlrev_b32 v{V+2*i}, 16, v{RV+i}", f"v_and_b32 v{V+2*i+1}, 0xffff0000, v{RV+i}"]
    for n, off in ((4, 1), (2, 2), (0, 3)):
        for tt in range(4): t.append(f"v_pk_fma_f32 {pr(KV+2*tt)}, {pr(K+2*(tt+off))}, {pr(SS+n)}, {pr(KV+2*tt)}")
    for tt in range(4): t.append(f"v_pk_mul_f32 {pr(KV+2*tt)}, {pr(KV+2*tt)}, {pr(V+2*tt)}")
    for ch in range(2):
        t += [f"v_cvt_pk_bf16_f32 v{O+2*ch}, v{KV+6+ch}, v{KV+4+ch}", f"v_cvt_pk_bf16_f32 v{O+1+2*ch}, v{KV+2+ch}, v{KV+ch}"]
    return t

def gemm_role(a, wid):
    emit_wgmap_gemm1(a, wid, MAPPING)
    a(f"""
    v_lshrrev_b32 v2, 3, v1
    v_lshrrev_b32 v3, 4, v1
    v_and_b32 v4, 7, v1
    s_lshl_b32 s38, s32, 7
    s_lshl_b32 s39, {W}, 4
    s_add_u32 s38, s38, s39
    v_add_u32 v5, s38, v2
    v_lshlrev_b32 v5, 10, v5
    v_xor_b32 v6, v4, v3
    v_lshl_add_u32 v{VX0}, v6, 4, v5
    v_xor_b32 v6, 4, v6
    v_lshl_add_u32 v{VX1}, v6, 4, v5
    v_add_u32 v{VX1}, 8192, v{VX1}
    s_lshl_b32 s39, {W}, 3
    v_add_u32 v5, s39, v3
    v_mul_u32_u24 v5, {F*2}, v5
    v_and_b32 v6, 15, v1
    v_lshlrev_b32 v7, 2, v3
    v_xor_b32 v6, v6, v7
    v_lshl_add_u32 v5, v6, 4, v5
    s_lshl_b32 s39, s33, 8
    v_add_u32 v{VW}, s39, v5
    s_lshl_b32 s40, {W}, 11
    s_and_b32 s41, s32, 1
    s_lshl_b32 s41, s41, 2
    s_add_u32 s41, s41, s33
    s_and_b32 s41, s41, {f5.ROTMASK}
    s_mul_i32 s42, s41, {64*F*2}
    s_lshl_b32 s41, s41, 7
    """)
    for st in range(2):
        for k in range(4): f5.g1_piece(a, k)
    stamp(a, 0)
    a(f"""
    s_and_b32 s36, {W}, 3                          ; tg
    s_lshr_b32 s37, {W}, 2                         ; fh
    v_and_b32 v5, 31, v1
    v_lshrrev_b32 v6, 5, v1                        ; h
    s_lshl_b32 s38, s33, 9
    v_lshl_add_u32 v2, v5, 4, s38
    v_mul_u32_u24 v3, {WS_BL - WS_CS}, v6
    v_add3_u32 v{VOPS}, v2, v3, 0
    v_add_u32 v{VOPS}, {WS_CS}, v{VOPS}
    s_lshl_b32 s38, s32, 8
    s_add_u32 s38, s38, {WS_STF}
    v_and_b32 v2, 15, v1
    v_lshl_add_u32 v2, v2, 2, s38
    s_lshl_b32 s39, s33, 3
    s_add_u32 s38, s38, s39
    s_add_u32 s38, s38, 64
    v_and_b32 v3, 1, v1
    v_lshl_add_u32 v3, v3, 2, s38
    v_cmp_gt_u32 vcc, 16, v1
    s_lshr_b32 s38, s2, 5
    s_lshl_b32 s38, s38, 7
    v_cndmask_b32 v{VFO}, v3, v2, vcc
    s_add_u32 s38, s38, {WS_KVF}
    v_lshl_add_u32 v3, v5, 2, s38
    v_cmp_gt_u32 vcc, 32, v1
    v_lshrrev_b32 v4, 1, v5
    v_and_b32 v4, 7, v4
    v_cndmask_b32 v{VFO}, v3, v{VFO}, vcc
    v_xor_b32 v2, v4, v6
    s_lshl_b32 s38, s36, 12
    v_lshl_add_u32 v3, v5, 7, s38
    """)
    for s in range(4):
        a(f"v_xor_b32 v4, {2*s}, v2")
        a(f"v_lshl_add_u32 v{VXA+s}, v4, 4, v3")
    a(f"""
    v_bfe_u32 v2, v1, 2, 2
    v_bfe_u32 v3, v1, 4, 1
    v_and_b32 v4, 3, v1
    v_lshrrev_b32 v7, 1, v4
    v_lshl_add_u32 v7, v3, 1, v7
    v_and_b32 v4, 1, v4
    v_lshlrev_b32 v4, 3, v4
    v_lshl_add_u32 v3, v6, 3, v2
    v_lshl_add_u32 v4, v3, 8, v4
    v_add_u32 v4, 16384, v4
    s_lshl_b32 s38, s37, 1
    """)
    for n in range(2):
        a(f"s_add_u32 s39, s38, {n}")
        a(f"v_xor_b32 v3, s39, v2")
        a(f"v_lshl_add_u32 v3, v3, 2, v7")
        a(f"v_lshl_add_u32 v{VWA+n}, v3, 4, v4")
    for r in range(4): a(f"v_add_u32 v{VXH+r}, 65536, v{VXA+r}")
    for r in range(2): a(f"v_add_u32 v{VWH+r}, 65536, v{VWA+r}")
    for r in range(32):
        a(f"v_mov_b32 v{ACC+r}, 0")
    a(f"""
    v_mov_b32 v2, {AF}
    v_mov_b32 v3, 0
    ds_write_b32 v2, v3
    """)
    m2.conv_words(a)
    kv = m3.kv_lists(64)
    kv['arith'] = pk_arith(64)
    stats = m3.lines_of(f5.emit_stats_row, store=False)
    a(f"""
    s_mov_b32 s63, 0
    s_waitcnt vmcnt(8) lgkmcnt(0)
    s_barrier
    """)
    if not LSTAMP: stamp(a, 6)
    kv_first_part(a, kv, stats)
    for x in kv['rb_addr']: a(x)
    a("""
    s_waitcnt vmcnt(4) lgkmcnt(0)
    s_barrier
    """)
    stamp(a, 1)
    tail = []
    def reads_of(stage, step):
        slot = stage % 4
        hi, off = slot >> 1, 32768 * (slot & 1)
        dst = FS[step]
        r = [f"ds_read_b128 v[{dst}:{dst+3}], v{(VXH if hi else VXA)+step} offset:{off}"]
        for n in range(2):
            for j in range(2):
                q = dst + 4 + 4*n + 2*j
                r.append(f"ds_read_b64_tr_b16 v[{q}:{q+1}], v{(VWH if hi else VWA)+n} offset:{off + 4096*step + 1024*j}")
        return r
    def step(stage, k):
        nst = stage + (k >= 2)
        r = reads_of(nst, (k + 2) % 4) if nst < 8 else []
        a("s_waitcnt lgkmcnt(0)" if (stage == 7 and k == 3) else "s_waitcnt lgkmcnt(5)")
        f5.g1_mfma(a, k, 0)
        for x in r[:3]: a(x)
        if stage == 0:
            f5.g1_piece(a, (2*k) % 4, True)
        elif stage + 3 < 8:
            f5.g1_piece(a, k, True)
        f5.g1_mfma(a, k, 1)
        for x in r[3:]: a(x)
        if stage == 0:
            f5.g1_piece(a, (2*k + 1) % 4, True)
    def out_of_line(name, cond, body):
        lo, lb = a.label(name + "_out"), a.label(name + "_back")
        a(cond)
        a(f"s_cbranch_scc1 {lo}")
        a.lines.append(f"{lb}:")
        b = Asm(); b.nlabel = a.nlabel + 1000 * (len(tail) + 1)
        b.lines.append(f"{lo}:")
        body(b)
        b(f"s_branch {lb}")
        tail.append(b)
    W0 = f"s_cmp_eq_u32 {W}, 0"
    def request(b):
        lop, lu, le = b.label("rq_op"), b.label("rq_u"), b.label("rq_e")
        b(f"""
        v_cmp_ne_u32 vcc, s{S_N}, v{VFL}
        s_bitcmp1_b32 s63, 0
        s_cbranch_scc1 {lop}
        s_cmp_lg_u32 vcc_lo, 0
        s_cbranch_scc1 {lop}
        s_or_b32 s63, s63, 1
        """)
        f5.g1_operand_dma(b)
        b.lines.append(f"{lop}:")
        b(f"""
        s_bitcmp1_b32 s63, 1
        s_cbranch_scc1 {lu}
        s_cmp_lg_u32 vcc_hi, 0
        s_cbranch_scc1 {lu}
        s_or_b32 s63, s63, 2
        """)
        m2.u_images(b)
        b.lines.append(f"{lu}:")
        b(f"""
        s_cmp_eq_u32 s63, 3
        s_cbranch_scc1 {le}
        """)
        f5.g1_poll(b)
        b.lines.append(f"{le}:")
    for x in kv['rb_read']: a(x)
    for x in reads_of(0, 0) + reads_of(0, 1): a(x)
    VM = [6, 8, 6, 6, 6, 6, 2]
    for st in range(8):
        if st == 5:
            m2.k_images(a)
            out_of_line("g1_pads", f"s_cmp_lt_u32 {W}, 4", m2.conv_pads)
        step(st, 0); step(st, 1)
        if st == 0:
            f5.emit_stats_store(a)
            for x in kv['store']: a(x)
        if st < 7:
            a(f"s_waitcnt vmcnt({VM[st]})")
            a("s_barrier")
            if LSTAMP: stamp(a, 2 + st)
        if st == 6:
            out_of_line("g1_req1", W0, request)
        step(st, 2); step(st, 3)
        if st == 0:
            out_of_line("g1_nld", W0, f5.nonce_load)
        if st == 2:
            def post(b):
                f5.nonce_get(b)
                post_stats_flag(b)
                f5.post_kv_flag(b)
            out_of_line("g1_post", W0, post)
        if st == 4:
            out_of_line("g1_poll1", W0, f5.g1_poll)
    stamp(a, 9 if LSTAMP else 2)
    def fin(b):
        lsp, le = b.label("fin_spin"), b.label("fin_e")
        b("s_mov_b32 s54, 0")
        b.lines.append(f"{lsp}:")
        b(f"""
        s_cmp_eq_u32 s63, 3
        s_cbranch_scc1 {le}
        s_cmp_ge_u32 s54, 0x40000
        s_cbranch_scc1 {le}
        s_add_u32 s54, s54, 1
        s_waitcnt vmcnt(0)
        """)
        request(b)
        b(f"s_branch {lsp}")
        b.lines.append(f"{le}:")
    out_of_line("g1_fin", W0, fin)
    R = VK + 6
    a(f"""
    v_mov_b32 v{VK}, 1.0
    v_mov_b32 v{VK+1}, 1.0
    v_mov_b32 v{VK+2}, {hex(LN2)}
    v_mov_b32 v{VK+3}, {hex(LN2)}
    v_mov_b32 v{VK+4}, {hex(NEG2LN2)}
    v_mov_b32 v{VK+5}, {hex(NEG2LN2)}
    s_lshl_b32 s38, s32, 2
    s_add_u32 s38, s38, s36
    s_mul_i32 s38, s38, 112
    s_lshl_b32 s39, s33, 3
    s_add_u32 s38, s38, s39
    s_lshl_b32 s39, s37, 2
    s_add_u32 s38, s38, s39
    s_lshl_b32 s38, s38, 10
    s_add_u32 s38, s38, {WS_ACT}
    v_and_b32 v5, 31, v1
    s_lshl_b32 s39, s36, 8
    v_lshl_add_u32 v3, v5, 3, s39
    v_add_u32 v3, {OPS}, v3
    v_lshrrev_b32 v4, 5, v1
    s_lshl_b32 s39, s37, 8
    v_lshl_add_u32 v4, v4, 4, s39
    v_add_u32 v4, {OPS + 1024}, v4
    v_lshlrev_b32 v182, 4, v1
    s_waitcnt vmcnt(0) lgkmcnt(0)
    s_barrier
    ds_read_b64 v[{VST}:{VST+1}], v3
    """)
    for g in range(7):
        a(f"ds_read_b128 v[{VC+4*g}:{VC+4*g+3}], v4 offset:{32*g}")
        a(f"ds_read_b128 v[{VB+4*g}:{VB+4*g+3}], v4 offset:{512+32*g}")
    a("s_waitcnt lgkmcnt(14)")
    a(f"v_mul_f32 v{R}, {hex(LOG2E)}, v{VST+1}")
    a(f"ds_read_b128 v[{VC+28}:{VC+31}], v4 offset:{32*7}")
    a(f"ds_read_b128 v[{VB+28}:{VB+31}], v4 offset:{512+32*7}")
    if not LSTAMP: stamp(a, 3)
    def pr(r): return f"v[{r}:{r+1}]"
    T, OUT = 40, 152
    for fr in range(4):
        prs = [(ACC + 8*fr + 2*p, VC + 8*fr + 2*p, VB + 8*fr + 2*p) for p in range(4)]
        Z = [T + 2*p for p in range(4)]
        E = [T + 8 + 2*p for p in range(4)]
        a(f"s_waitcnt lgkmcnt({12 - 4*fr})")
        for p, (ac, c, b) in enumerate(prs):
            a(f"v_pk_fma_f32 {pr(Z[p])}, {pr(VST)}, {pr(c)}, {pr(ac)} op_sel_hi:[0,1,1] neg_lo:[1,0,0] neg_hi:[1,0,0]")
        for p, (ac, c, b) in enumerate(prs):
            a(f"v_pk_fma_f32 {pr(Z[p])}, {pr(R)}, {pr(Z[p])}, {pr(b)} op_sel_hi:[0,1,1]")
        for p in range(4):
            a(f"v_exp_f32 v{E[p]}, v{Z[p]}")
            a(f"v_exp_f32 v{E[p]+1}, v{Z[p]+1}")
        for p in range(4):
            a(f"v_pk_add_f32 {pr(E[p])}, {pr(E[p])}, {pr(VK)}")
        for p in range(4):
            a(f"v_pk_fma_f32 {pr(E[p])}, {pr(E[p])}, {pr(E[p])}, {pr(VK)}")
        for p in range(4):
            a(f"v_rcp_f32 v{E[p]}, v{E[p]}")
            a(f"v_rcp_f32 v{E[p]+1}, v{E[p]+1}")
        for p in range(4):
            a(f"v_pk_fma_f32 {pr(E[p])}, {pr(E[p])}, {pr(VK+4)}, {pr(VK+2)}")
        for p in range(4):
            a(f"v_pk_mul_f32 {pr(Z[p])}, {pr(Z[p])}, {pr(E[p])}")
        o = OUT + 4*fr
        for p in range(4):
            a(f"v_cvt_pk_bf16_f32 v{o+p}, v{Z[p]}, v{Z[p]+1}")
        a(f"buffer_store_dwordx4 v[{o}:{o+3}], v182, s[{SRD_WS}:{SRD_WS+3}], s38 offen offset:{1024*fr} sc1")
    if not LSTAMP: stamp(a, 4)
    a(f"""
    s_lshl_b32 s{b3.S_ACTF}, s32, 7
    s_lshl_b32 s52, s33, 2
    s_add_u32 s{b3.S_ACTF}, s{b3.S_ACTF}, s52
    s_add_u32 s{b3.S_ACTF}, s{b3.S_ACTF}, {WS_ACTF}
    """)
    lend = a.label("g1_end")
    a(f"s_branch {lend}")
    for b in tail: a.lines += b.lines
    a.lines.append(f"{lend}:")

def prep_role(a, j):
    t = Asm(); t.nlabel = a.nlabel + 200000
    old_post = f5.post_stats_flag
    f5.post_stats_flag = post_stats_flag
    m2.prep_role(t, j)
    f5.post_stats_flag = old_post
    txt = "\n".join(t.lines)
    u = Asm();
    u(f"""
    s_lshl_b32 s52, {j}, 2
    s_add_u32 s52, s52, {WS_CSF}
    s_waitcnt vmcnt(2)
    """)
    f5.flag_post(u, "s52")
    old = "\n".join(u.lines)
    assert txt.count(old) == 1
    v = Asm(); v("s_waitcnt vmcnt(2)")
    post_colsum_flag(v, j)
    txt = txt.replace(old, "\n".join(v.lines))
    a.lines += txt.split("\n")

def kernel(name=NAME):
    f5.MERGED = True
    b3.NW = NW
    b3.AF = AF
    a = Asm()
    kernel_begin(a, name)
    a("""
    s_cmp_ge_u32 s2, 256
    s_cbranch_scc1 L_all_end
    """)
    stamp_begin(a)
    m2.setup(a)
    lg, lb = a.label("fr_gemm"), a.label("fr_back")
    a(f"""
    s_cmp_ge_u32 s2, 32
    s_cbranch_scc1 {lg}
    s_mov_b32 s3, s2
    v_mov_b32 v2, {AF}
    v_mov_b32 v3, 0
    ds_write_b32 v2, v3
    """)
    prep_role(a, "s3")
    a(f"s_branch {lb}")
    a.lines.append(f"{lg}:")
    a("s_sub_u32 s3, s2, 32")
    gemm_role(a, "s3")
    a.lines.append(f"{lb}:")
    b3.emit_back(a)
    stamp_end(a, 0)
    a.lines.append("L_all_end:")
    a("s_endpgm")
    return a.text(), kernel_desc(name, 200, nsgpr(64)), f5.FRONT_LDS
```

```python
from common import *
import common
import front5 as f5
import merged2 as m2
import merged4 as m4
import back3 as b3
from gemm1 import emit_wgmap_gemm1
from conv import OB, UB, CHSZ

NAME = m2.NAME
S_WAVE, S_N = 18, 62
SRD_X, SRD_W1, SRD_WS, SRD_DBG, SRD_W2 = 20, 24, 28, 56, 24
OPS, NW = f5.OPS, f5.NW
AF = NW + 4
KT, VT, TR = f5.KT, f5.VT, f5.TR
W = f"s{S_WAVE}"
MAPPING = 1
LSTAMP = False
ACC, FS, VC, VB = f5.ACC, f5.FS, f5.VC, f5.VB
VXA, VWA, VXH, VWH = f5.VXA, f5.VWA, f5.VXH, f5.VWH
VX0, VX1, VW, VST, VK = f5.VX0, f5.VX1, f5.VW, f5.VST, f5.VK
VOPS, VFL, VFO = f5.VOPS, f5.VFL, f5.VFO
VROW = 64

def setup(a):
    a(f"""
    s_load_dwordx4 s[4:7], s[0:1], {KA['q']}       ; q, k
    s_load_dwordx4 s[8:11], s[0:1], {KA['v']}      ; v, shift
    s_load_dwordx4 s[12:15], s[0:1], {KA['w1']}    ; w1, b1
    s_load_dwordx4 s[48:51], s[0:1], {KA['dbg']}
    v_and_b32 v1, 63, v0
    v_lshrrev_b32 v2, 6, v0
    s_nop 0
    v_readfirstlane_b32 s{S_WAVE}, v2
    s_lshl_b32 s52, s2, 3
    s_add_u32 s53, s52, {W}
    s_lshl_b32 s53, s53, 10
    v_lshl_add_u32 v5, v1, 4, s53
    v_lshrrev_b32 v3, 3, v1
    v_add_u32 v3, s52, v3
    v_lshlrev_b32 v3, 10, v3
    v_and_b32 v4, 7, v1
    v_lshl_add_u32 v3, v4, 4, v3
    s_waitcnt lgkmcnt(0)
    """)
    srd(a, SRD_X, 4, S*D*2)
    lg, ld = a.label("su_g"), a.label("su_d")
    a(f"""
    s_cmp_ge_u32 s2, 32
    s_cbranch_scc1 {lg}
    buffer_load_dwordx4 v[112:115], v5, s[{SRD_X}:{SRD_X+3}], 0 offen
    s_branch {ld}
    """)
    a.lines.append(f"{lg}:")
    a(f"""
    s_cmp_lg_u32 {W}, 4
    s_cbranch_scc1 {ld}
    """)
    for it in range(8):
        a(f"buffer_load_dwordx4 v[{VROW+4*it}:{VROW+4*it+3}], v3, s[{SRD_X}:{SRD_X+3}], 0 offen offset:{128*it}")
    a.lines.append(f"{ld}:")
    f5.emit_kv_loads(a)
    srd(a, SRD_DBG, 48, 256)
    srd(a, SRD_WS, 50, WS_SIZE)
    srd(a, SRD_W1, 12, D*F*2)
    a(f"""
    s_load_dwordx2 s[48:49], s[0:1], {KA['w2']}
    s_load_dwordx4 s[52:55], s[0:1], {KA['ssmk']}
    """)

def stats8(a):
    A = 96
    a(f"v_mov_b32 v104, 0x3f803f80")
    a("s_nop 0")
    for q in range(4):
        a(f"v_dot2_f32_bf16 v{A+q}, v{VROW+q}, v104, 0")
        a(f"v_dot2_f32_bf16 v{A+4+q}, v{VROW+q}, v{VROW+q}, 0")
    for i in range(4, 32):
        a(f"v_dot2_f32_bf16 v{A+i%4}, v{VROW+i}, v104, v{A+i%4}")
        a(f"v_dot2_f32_bf16 v{A+4+i%4}, v{VROW+i}, v{VROW+i}, v{A+4+i%4}")
    a("s_nop 2")
    a(f"""
    v_add_f32 v{A}, v{A}, v{A+1}
    v_add_f32 v{A+2}, v{A+2}, v{A+3}
    v_add_f32 v{A+4}, v{A+4}, v{A+5}
    v_add_f32 v{A+6}, v{A+6}, v{A+7}
    v_add_f32 v{A}, v{A}, v{A+2}
    v_add_f32 v{A+4}, v{A+4}, v{A+6}
    """)
    for mod in ("quad_perm:[1,0,3,2]", "quad_perm:[2,3,0,1]", "row_half_mirror"):
        a("s_nop 1")
        a(f"v_add_f32_dpp v{A}, v{A}, v{A} {mod} row_mask:0xf bank_mask:0xf")
        a(f"v_add_f32_dpp v{A+4}, v{A+4}, v{A+4} {mod} row_mask:0xf bank_mask:0xf")
    a(f"""
    v_mul_f32 v{A+1}, 0x3b000000, v{A}
    v_mul_f32 v{A+4}, 0x3b000000, v{A+4}
    v_fma_f32 v{A+4}, -v{A+1}, v{A+1}, v{A+4}
    v_max_f32 v{A+4}, 0, v{A+4}
    """)
    bf16_round(a, A+4, A+4)
    a(f"v_add_f32 v{A+4}, 0x3727c5ac, v{A+4}")
    bf16_round(a, A+4, A+4)
    a(f"v_sqrt_f32 v{A+4}, v{A+4}")
    a("s_nop 0")
    bf16_round(a, A+4, A+4)
    a(f"v_rcp_f32 v{A+3}, v{A+4}")
    bf16_round(a, A+2, A+1)
    a(f"""
    v_lshrrev_b32 v3, 3, v1
    s_lshl_b32 s52, s2, 3
    v_add_lshl_u32 v3, v3, s52, 3
    v_and_b32 v4, 7, v1
    v_cmp_eq_u32 vcc, 0, v4
    s_and_saveexec_b64 s[60:61], vcc
    buffer_store_dwordx2 v[{A+2}:{A+3}], v3, s[{SRD_WS}:{SRD_WS+3}], 0 offen offset:{WS_STATS} sc1
    s_mov_b64 exec, s[60:61]
    """)

def kv8(a):
    RK, RV, K, V, SS, KV, O = 40, 51, 64, 86, 102, 8, 24
    def pr(r): return f"v[{r}:{r+1}]"
    a(f"""
    v_and_b32 v2, 31, v1
    v_lshrrev_b32 v3, 5, v1
    s_lshl_b32 s52, {W}, 1
    v_add_u32 v3, s52, v3                          ; g
    v_lshlrev_b32 v4, 10, v3
    v_lshl_add_u32 v4, v2, 2, v4
    v_add_u32 v5, {KT + 5*128}, v4
    v_add_u32 v6, {VT}, v4
    """)
    for i in range(11): a(f"ds_read_b32 v{RK+i}, v5 offset:{128*i}")
    a(f"""
    v_lshlrev_b32 v{SS+0}, 16, v124
    v_lshlrev_b32 v{SS+1}, 16, v126
    v_and_b32 v{SS+2}, 0xffff0000, v124
    v_and_b32 v{SS+3}, 0xffff0000, v126
    v_lshlrev_b32 v{SS+4}, 16, v125
    v_lshlrev_b32 v{SS+5}, 16, v127
    v_and_b32 v{SS+6}, 0xffff0000, v125
    v_and_b32 v{SS+7}, 0xffff0000, v127
    v_sub_u32 v3, 7, v3
    v_and_b32 v7, 7, v2
    v_xor_b32 v3, v3, v7
    v_lshlrev_b32 v3, 4, v3
    v_lshl_add_u32 v3, v2, 8, v3
    v_add_u32 v3, {TR}, v3
    s_waitcnt lgkmcnt(4)
    """)
    for i in range(8): a(f"ds_read_b32 v{RV+i}, v6 offset:{128*i}")
    for i in range(7):
        a(f"v_lshlrev_b32 v{K+2*i}, 16, v{RK+i}")
        a(f"v_and_b32 v{K+2*i+1}, 0xffff0000, v{RK+i}")
    a("s_waitcnt lgkmcnt(8)")
    for i in range(7, 11):
        a(f"v_lshlrev_b32 v{K+2*i}, 16, v{RK+i}")
        a(f"v_and_b32 v{K+2*i+1}, 0xffff0000, v{RK+i}")
    for tt in range(8):
        a(f"v_pk_mul_f32 {pr(KV+2*tt)}, {pr(K+2*tt)}, {pr(SS+6)}")
    for n, off in ((4, 1), (2, 2), (0, 3)):
        for tt in range(8):
            a(f"v_pk_fma_f32 {pr(KV+2*tt)}, {pr(K+2*(tt+off))}, {pr(SS+n)}, {pr(KV+2*tt)}")
    a("s_waitcnt lgkmcnt(0)")
    for i in range(8):
        a(f"v_lshlrev_b32 v{V+2*i}, 16, v{RV+i}")
        a(f"v_and_b32 v{V+2*i+1}, 0xffff0000, v{RV+i}")
    for tt in range(8):
        a(f"v_pk_mul_f32 {pr(KV+2*tt)}, {pr(KV+2*tt)}, {pr(V+2*tt)}")
    for ch in range(2):
        for q in range(4):
            a(f"v_cvt_pk_bf16_f32 v{O+4*ch+q}, v{KV+2*(7-2*q)+ch}, v{KV+2*(6-2*q)+ch}")
        a(f"ds_write_b128 v3, v[{O+4*ch}:{O+4*ch+3}] offset:{128*ch}")

def w2_part(a, st):
    a(f"""
    s_add_u32 m0, s61, {32768*st}
    s_add_u32 s54, s60, {131072*st}
    s_add_u32 s55, s60, {131072*st + 8192 - 1024}
    buffer_load_dwordx4 v183, s[{SRD_W2}:{SRD_W2+3}], s54 offen lds
    buffer_load_dwordx4 v183, s[{SRD_W2}:{SRD_W2+3}], s55 offen offset:1024 lds
    """)
def w2_prep(a):
    a(f"""
    s_mov_b32 s{SRD_W2}, s48
    s_mov_b32 s{SRD_W2+1}, s49
    s_mov_b32 s{SRD_W2+2}, {F*D*2}
    s_mov_b32 s{SRD_W2+3}, 0x00020000
    v_lshrrev_b32 v183, 3, v1
    v_lshlrev_b32 v183, 10, v183
    v_bfe_u32 v184, v1, 4, 1
    v_lshlrev_b32 v184, 2, v184
    v_xor_b32 v184, v184, v1
    v_and_b32 v184, 7, v184
    v_lshl_add_u32 v183, v184, 4, v183
    s_lshl_b32 s60, {W}, 14
    s_lshr_b32 s61, s2, 3
    s_and_b32 s61, s61, 7                          ; db
    s_lshl_b32 s61, s61, 7
    s_add_u32 s60, s60, s61
    s_lshl_b32 s61, {W}, 11
    s_add_u32 s61, s61, 16384
    """)

def gemm_role(a, wid):
    emit_wgmap_gemm1(a, wid, MAPPING)
    a(f"""
    v_lshrrev_b32 v2, 3, v1
    v_lshrrev_b32 v3, 4, v1
    v_and_b32 v4, 7, v1
    s_lshl_b32 s38, s32, 7
    s_lshl_b32 s39, {W}, 4
    s_add_u32 s38, s38, s39
    v_add_u32 v5, s38, v2
    v_lshlrev_b32 v5, 10, v5
    v_xor_b32 v6, v4, v3
    v_lshl_add_u32 v{VX0}, v6, 4, v5
    v_xor_b32 v6, 4, v6
    v_lshl_add_u32 v{VX1}, v6, 4, v5
    v_add_u32 v{VX1}, 8192, v{VX1}
    s_lshl_b32 s39, {W}, 3
    v_add_u32 v5, s39, v3
    v_mul_u32_u24 v5, {F*2}, v5
    v_and_b32 v6, 15, v1
    v_lshlrev_b32 v7, 2, v3
    v_xor_b32 v6, v6, v7
    v_lshl_add_u32 v5, v6, 4, v5
    s_lshl_b32 s39, s33, 8
    v_add_u32 v{VW}, s39, v5
    s_lshl_b32 s40, {W}, 11
    s_and_b32 s41, s32, 1
    s_lshl_b32 s41, s41, 2
    s_add_u32 s41, s41, s33
    s_and_b32 s41, s41, {f5.ROTMASK}
    s_mul_i32 s42, s41, {64*F*2}
    s_lshl_b32 s41, s41, 7
    """)
    for st in range(2):
        for k in range(4): f5.g1_piece(a, k)
    stamp(a, 0)
    a(f"""
    s_and_b32 s36, {W}, 3                          ; tg
    s_lshr_b32 s37, {W}, 2                         ; fh
    v_and_b32 v5, 31, v1
    v_lshrrev_b32 v6, 5, v1                        ; h
    s_lshl_b32 s38, s33, 9
    v_lshl_add_u32 v2, v5, 4, s38
    v_mul_u32_u24 v3, {WS_BL - WS_CS}, v6
    v_add3_u32 v{VOPS}, v2, v3, 0
    v_add_u32 v{VOPS}, {WS_CS}, v{VOPS}
    s_lshl_b32 s38, s32, 11
    s_add_u32 s38, s38, {WS_STF}
    v_and_b32 v2, 15, v1
    v_lshl_add_u32 v2, v2, 7, s38
    s_lshl_b32 s38, s33, 8
    s_add_u32 s38, s38, {WS_CSF}
    v_and_b32 v3, 1, v1
    v_lshl_add_u32 v3, v3, 7, s38
    v_cmp_gt_u32 vcc, 16, v1
    s_lshr_b32 s38, s2, 5
    s_lshl_b32 s38, s38, 12
    v_cndmask_b32 v{VFO}, v3, v2, vcc
    s_add_u32 s38, s38, {WS_KVF}
    v_lshl_add_u32 v3, v5, 7, s38
    v_cmp_gt_u32 vcc, 32, v1
    v_lshrrev_b32 v4, 1, v5
    v_and_b32 v4, 7, v4
    v_cndmask_b32 v{VFO}, v3, v{VFO}, vcc
    v_xor_b32 v2, v4, v6
    s_lshl_b32 s38, s36, 12
    v_lshl_add_u32 v3, v5, 7, s38
    """)
    for s in range(4):
        a(f"v_xor_b32 v4, {2*s}, v2")
        a(f"v_lshl_add_u32 v{VXA+s}, v4, 4, v3")
    a(f"""
    v_bfe_u32 v2, v1, 2, 2
    v_bfe_u32 v3, v1, 4, 1
    v_and_b32 v4, 3, v1
    v_lshrrev_b32 v7, 1, v4
    v_lshl_add_u32 v7, v3, 1, v7
    v_and_b32 v4, 1, v4
    v_lshlrev_b32 v4, 3, v4
    v_lshl_add_u32 v3, v6, 3, v2
    v_lshl_add_u32 v4, v3, 8, v4
    v_add_u32 v4, 16384, v4
    s_lshl_b32 s38, s37, 1
    """)
    for n in range(2):
        a(f"s_add_u32 s39, s38, {n}")
        a(f"v_xor_b32 v3, s39, v2")
        a(f"v_lshl_add_u32 v3, v3, 2, v7")
        a(f"v_lshl_add_u32 v{VWA+n}, v3, 4, v4")
    for r in range(4): a(f"v_add_u32 v{VXH+r}, 65536, v{VXA+r}")
    for r in range(2): a(f"v_add_u32 v{VWH+r}, 65536, v{VWA+r}")
    a(f"""
    v_mov_b32 v2, {AF}
    v_mov_b32 v3, 0
    ds_write_b32 v2, v3
    v_lshrrev_b32 v122, 3, v1
    s_lshl_b32 s38, {W}, 3
    v_add_u32 v122, s38, v122
    v_lshrrev_b32 v152, 1, v122
    v_and_b32 v152, 7, v152
    v_and_b32 v155, 7, v1
    v_xor_b32 v152, v152, v155
    v_lshlrev_b32 v152, 4, v152
    v_lshl_add_u32 v152, v122, 7, v152
    v_add_u32 v152, {TR}, v152
    s_and_b32 s38, s2, 7
    s_lshl_b32 s38, s38, 6
    v_add_u32 v122, s38, v122
    v_lshlrev_b32 v122, 12, v122
    v_lshl_add_u32 v122, v155, 4, v122
    """)
    m2.conv_words(a)
    a(f"""
    s_mov_b32 s63, 0
    s_waitcnt vmcnt(8) lgkmcnt(0)
    s_barrier
    """)
    if not LSTAMP: stamp(a, 6)
    for k in range(4): f5.g1_piece(a, k)
    lst, lnone = a.label("g1_stats"), a.label("g1_pro")
    a(f"""
    s_cmp_ge_u32 {W}, 4
    s_cbranch_scc1 {lst}
    """)
    kv8(a)
    a(f"s_branch {lnone}")
    a.lines.append(f"{lst}:")
    a(f"""
    s_cmp_lg_u32 {W}, 4
    s_cbranch_scc1 {lnone}
    """)
    stats8(a)
    a.lines.append(f"{lnone}:")
    for r in range(32):
        a(f"v_mov_b32 v{ACC+r}, 0")
    a("""
    s_waitcnt vmcnt(8) lgkmcnt(0)
    s_barrier
    """)
    stamp(a, 1)
    tail = []
    def reads_of(stage, step):
        slot = stage % 4
        hi, off = slot >> 1, 32768 * (slot & 1)
        dst = FS[step]
        r = [f"ds_read_b128 v[{dst}:{dst+3}], v{(VXH if hi else VXA)+step} offset:{off}"]
        for n in range(2):
            for j in range(2):
                q = dst + 4 + 4*n + 2*j
                r.append(f"ds_read_b64_tr_b16 v[{q}:{q+1}], v{(VWH if hi else VWA)+n} offset:{off + 4096*step + 1024*j}")
        return r
    def step(stage, k):
        nst = stage + (k >= 2)
        r = reads_of(nst, (k + 2) % 4) if nst < 8 else []
        a("s_waitcnt lgkmcnt(0)" if (stage == 7 and k == 3) else "s_waitcnt lgkmcnt(5)")
        f5.g1_mfma(a, k, 0)
        for x in r[:3]: a(x)
        if stage + 3 < 8: f5.g1_piece(a, k, True)
        f5.g1_mfma(a, k, 1)
        for x in r[3:]: a(x)
    def out_of_line(name, cond, body):
        lo, lb = a.label(name + "_out"), a.label(name + "_back")
        a(cond)
        a(f"s_cbranch_scc1 {lo}")
        a.lines.append(f"{lb}:")
        b = Asm(); b.nlabel = a.nlabel + 1000 * (len(tail) + 1)
        b.lines.append(f"{lo}:")
        body(b)
        b(f"s_branch {lb}")
        tail.append(b)
    W0 = f"s_cmp_eq_u32 {W}, 0"
    def request(b):
        lop, lu, le = b.label("rq_op"), b.label("rq_u"), b.label("rq_e")
        b(f"""
        v_cmp_ne_u32 vcc, s{S_N}, v{VFL}
        s_bitcmp1_b32 s63, 0
        s_cbranch_scc1 {lop}
        s_cmp_lg_u32 vcc_lo, 0
        s_cbranch_scc1 {lop}
        s_or_b32 s63, s63, 1
        """)
        f5.g1_operand_dma(b)
        b.lines.append(f"{lop}:")
        b(f"""
        s_bitcmp1_b32 s63, 1
        s_cbranch_scc1 {lu}
        s_cmp_lg_u32 vcc_hi, 0
        s_cbranch_scc1 {lu}
        s_or_b32 s63, s63, 2
        """)
        m2.u_images(b)
        b.lines.append(f"{lu}:")
        b(f"""
        s_cmp_eq_u32 s63, 3
        s_cbranch_scc1 {le}
        """)
        f5.g1_poll(b)
        b.lines.append(f"{le}:")
    a("ds_read_b128 v[64:67], v152")
    for x in reads_of(0, 0) + reads_of(0, 1): a(x)
    VM = [7, 7, 6, 6, 6, 6, 2]
    for st in range(8):
        if st == 5:
            m2.k_images(a)
            out_of_line("g1_pads", f"s_cmp_lt_u32 {W}, 4", m2.conv_pads)
        step(st, 0); step(st, 1)
        if st == 0:
            a(f"""
            s_lshr_b32 s52, s2, 3
            s_lshl_b32 s52, s52, 7
            s_sub_u32 s52, {WS_KVT + 2*1984}, s52
            buffer_store_dwordx4 v[64:67], v122, s[{SRD_WS}:{SRD_WS+3}], s52 offen sc1
            """)
        if st < 7:
            a(f"s_waitcnt vmcnt({VM[st]})")
            a("s_barrier")
            if LSTAMP: stamp(a, 2 + st)
        if st == 6:
            out_of_line("g1_req1", W0, request)
        step(st, 2); step(st, 3)
        if st == 0:
            out_of_line("g1_nld", W0, f5.nonce_load)
        if st == 2:
            def post(b):
                f5.nonce_get(b)
                m4.post_stats_flag(b)
                f5.post_kv_flag(b)
            out_of_line("g1_post", W0, post)
        if st == 4:
            out_of_line("g1_poll1", W0, f5.g1_poll)
    stamp(a, 9 if LSTAMP else 2)
    def fin(b):
        lsp, le = b.label("fin_spin"), b.label("fin_e")
        b("s_mov_b32 s54, 0")
        b.lines.append(f"{lsp}:")
        b(f"""
        s_cmp_eq_u32 s63, 3
        s_cbranch_scc1 {le}
        s_cmp_ge_u32 s54, 0x40000
        s_cbranch_scc1 {le}
        s_add_u32 s54, s54, 1
        s_waitcnt vmcnt(0)
        """)
        request(b)
        b(f"s_branch {lsp}")
        b.lines.append(f"{le}:")
    out_of_line("g1_fin", W0, fin)
    R = VK + 6
    a(f"""
    v_mov_b32 v{VK}, 1.0
    v_mov_b32 v{VK+1}, 1.0
    v_mov_b32 v{VK+2}, {hex(LN2)}
    v_mov_b32 v{VK+3}, {hex(LN2)}
    v_mov_b32 v{VK+4}, {hex(NEG2LN2)}
    v_mov_b32 v{VK+5}, {hex(NEG2LN2)}
    s_lshl_b32 s38, s32, 2
    s_add_u32 s38, s38, s36
    s_mul_i32 s38, s38, 112
    s_lshl_b32 s39, s33, 3
    s_add_u32 s38, s38, s39
    s_lshl_b32 s39, s37, 2
    s_add_u32 s38, s38, s39
    s_lshl_b32 s38, s38, 10
    s_add_u32 s38, s38, {WS_ACT}
    v_and_b32 v5, 31, v1
    s_lshl_b32 s39, s36, 8
    v_lshl_add_u32 v3, v5, 3, s39
    v_add_u32 v3, {OPS}, v3
    v_lshrrev_b32 v4, 5, v1
    s_lshl_b32 s39, s37, 8
    v_lshl_add_u32 v4, v4, 4, s39
    v_add_u32 v4, {OPS + 1024}, v4
    v_lshlrev_b32 v182, 4, v1
    """)
    w2_prep(a)
    a(f"""
    s_waitcnt vmcnt(0) lgkmcnt(0)
    s_barrier
    ds_read_b64 v[{VST}:{VST+1}], v3
    """)
    for g in range(7):
        a(f"ds_read_b128 v[{VC+4*g}:{VC+4*g+3}], v4 offset:{32*g}")
        a(f"ds_read_b128 v[{VB+4*g}:{VB+4*g+3}], v4 offset:{512+32*g}")
    a("s_waitcnt lgkmcnt(14)")
    a(f"v_mul_f32 v{R}, {hex(LOG2E)}, v{VST+1}")
    a(f"ds_read_b128 v[{VC+28}:{VC+31}], v4 offset:{32*7}")
    a(f"ds_read_b128 v[{VB+28}:{VB+31}], v4 offset:{512+32*7}")
    if not LSTAMP: stamp(a, 3)
    def pr(r): return f"v[{r}:{r+1}]"
    T, OUT = 40, 152
    for fr in range(4):
        prs = [(ACC + 8*fr + 2*p, VC + 8*fr + 2*p, VB + 8*fr + 2*p) for p in range(4)]
        Z = [T + 2*p for p in range(4)]
        E = [T + 8 + 2*p for p in range(4)]
        if fr < 3: w2_part(a, fr)
        a(f"s_waitcnt lgkmcnt({12 - 4*fr})")
        for p, (ac, c, b) in enumerate(prs):
            a(f"v_pk_fma_f32 {pr(Z[p])}, {pr(VST)}, {pr(c)}, {pr(ac)} op_sel_hi:[0,1,1] neg_lo:[1,0,0] neg_hi:[1,0,0]")
        for p, (ac, c, b) in enumerate(prs):
            a(f"v_pk_fma_f32 {pr(Z[p])}, {pr(R)}, {pr(Z[p])}, {pr(b)} op_sel_hi:[0,1,1]")
        for p in range(4):
            a(f"v_exp_f32 v{E[p]}, v{Z[p]}")
            a(f"v_exp_f32 v{E[p]+1}, v{Z[p]+1}")
        for p in range(4):
            a(f"v_pk_add_f32 {pr(E[p])}, {pr(E[p])}, {pr(VK)}")
        for p in range(4):
            a(f"v_pk_fma_f32 {pr(E[p])}, {pr(E[p])}, {pr(E[p])}, {pr(VK)}")
        for p in range(4):
            a(f"v_rcp_f32 v{E[p]}, v{E[p]}")
            a(f"v_rcp_f32 v{E[p]+1}, v{E[p]+1}")
        for p in range(4):
            a(f"v_pk_fma_f32 {pr(E[p])}, {pr(E[p])}, {pr(VK+4)}, {pr(VK+2)}")
        for p in range(4):
            a(f"v_pk_mul_f32 {pr(Z[p])}, {pr(Z[p])}, {pr(E[p])}")
        o = OUT + 4*fr
        for p in range(4):
            a(f"v_cvt_pk_bf16_f32 v{o+p}, v{Z[p]}, v{Z[p]+1}")
        a(f"buffer_store_dwordx4 v[{o}:{o+3}], v182, s[{SRD_WS}:{SRD_WS+3}], s38 offen offset:{1024*fr} sc1")
    if not LSTAMP: stamp(a, 4)
    a(f"""
    s_lshl_b32 s{b3.S_ACTF}, s32, 11
    s_lshl_b32 s52, s33, 7
    s_add_u32 s{b3.S_ACTF}, s{b3.S_ACTF}, s52
    s_add_u32 s{b3.S_ACTF}, s{b3.S_ACTF}, {WS_ACTF}
    """)
    lend = a.label("g1_end")
    a(f"s_branch {lend}")
    for b in tail: a.lines += b.lines
    a.lines.append(f"{lend}:")

def prep_role(a, j):
    m4.prep_role(a, j)
    w2_prep(a)
    for st in range(3): w2_part(a, st)

def kernel(name=NAME):
    f5.MERGED = True
    b3.NW = NW
    b3.AF = AF
    b3.W2_PRE = True
    a = Asm()
    kernel_begin(a, name)
    a("""
    s_cmp_ge_u32 s2, 256
    s_cbranch_scc1 L_all_end
    """)
    stamp_begin(a)
    setup(a)
    lg, lb = a.label("fr_gemm"), a.label("fr_back")
    a(f"""
    s_cmp_ge_u32 s2, 32
    s_cbranch_scc1 {lg}
    s_mov_b32 s3, s2
    v_mov_b32 v2, {AF}
    v_mov_b32 v3, 0
    ds_write_b32 v2, v3
    """)
    prep_role(a, "s3")
    a(f"s_branch {lb}")
    a.lines.append(f"{lg}:")
    a("s_sub_u32 s3, s2, 32")
    gemm_role(a, "s3")
    a.lines.append(f"{lb}:")
    b3.emit_back(a)
    stamp_end(a, 0)
    a.lines.append("L_all_end:")
    a("s_endpgm")
    return a.text(), kernel_desc(name, 200, nsgpr(64)), f5.FRONT_LDS
```

```python
import sys
from common import *
import prep, gemm1, conv, gemm2
HDR = open("recurrent_scan__ssm_conv_h3__dense_activation_mish__prompt.s.ref").read().split("; Override launch geometry")[0]
def build_v1(mapping=0):
    ks = [("prep_kernel", prep.prep_kernel(), (32, 512, 67584)),
          ("gemm1_kernel", gemm1.gemm1_kernel(mapping), (224, 512, 131072)),
          ("conv_kernel", conv.conv_kernel(), (256, 256, 2*conv.CHSZ + 32768)),
          ("gemm2_kernel", gemm2.gemm2_kernel(), (256, 256, 131072))]
    s = HDR
    for n, _, (g, b, l) in ks:
        s += f"; @launch kernel={n} grid=({g},1,1) block=({b},1,1) lds={l}\n"
    s += '.amdgcn_target "amdgcn-amd-amdhsa--gfx950"\n.text\n'
    for n, (t, d), _ in ks: s += t
    s += '.section .rodata,"a"\n'
    for n, (t, d), _ in ks: s += d
    return s
def assemble_list(ks):
    s = HDR
    for n, _, (g, b, l) in ks:
        s += f"; @launch kernel={n} grid=({g},1,1) block=({b},1,1) lds={l}\n"
    s += '.amdgcn_target "amdgcn-amd-amdhsa--gfx950"\n.text\n'
    for n, (t, d), _ in ks: s += t
    s += '.section .rodata,"a"\n'
    for n, (t, d), _ in ks: s += d
    return s
def build_v2(mapping=0):
    import back
    return assemble_list([("prep_kernel", prep.prep_kernel(), (32, 512, 67584)),
          ("gemm1_kernel", gemm1.gemm1_kernel(mapping), (224, 512, 131072)),
          ("back_kernel", back.back_kernel(), (256, 512, 131072 + 2*conv.CHSZ))])
def build_v3(mapping=0):
    import back, front
    return assemble_list([("front_kernel", front.front_kernel(mapping), (256, 512, 131072 + 4096)),
          ("back_kernel", back.back_kernel(), (256, 512, 131072 + 2*conv.CHSZ))])
def build_v4(mapping=0):
    import back, front2
    return assemble_list([("front_kernel", front2.front2_kernel(mapping), (256, 512, front2.FRONT_LDS)),
          ("back_kernel", back.back_kernel(), (256, 512, 131072 + 2*conv.CHSZ))])
def build_v5(mapping=0, touch=True):
    import back, front3
    return assemble_list([("front_kernel", front3.front3_kernel(mapping, touch), (256, 512, front3.FRONT_LDS)),
          ("back_kernel", back.back_kernel(), (256, 512, 131072 + 2*conv.CHSZ))])
def build_v5nt(): return build_v5(0, False)
def _diag(**kw):
    import front3
    for k, v in kw.items(): setattr(front3, k, v)
    return build_v5(0, False)
def build_v5nodma(): return _diag(DIAG_NODMA=True)
def build_v5nomfma(): return _diag(DIAG_NOMFMA=True)
def build_v5nomfmads(): return _diag(DIAG_NOMFMA=True, DIAG_NODS=True)
def build_v5m1(): return build_v5(1, False)
def build_v5norot():
    import front3
    front3.ROTMASK = 0
    return build_v5(0, False)
def build_v6(mapping=0, touch=True, **kw):
    import back, front4
    for k, v in kw.items(): setattr(front4, k, v)
    return assemble_list([("front_kernel", front4.front3_kernel(mapping, touch), (256, 512, front4.FRONT_LDS)),
          ("back_kernel", back.back_kernel(), (256, 512, 131072 + 2*conv.CHSZ))])
def build_v6nt(): return build_v6(0, False)
def build_v6m1(): return build_v6(1, True)
def build_v6nodma(): return build_v6(0, True, DIAG_NODMA=True)
def build_v6norot(): return build_v6(0, True, ROTMASK=0)
def build_v7(mapping=0, touch=True, **kw):
    import back, front5
    for k, v in kw.items(): setattr(front5, k, v)
    return assemble_list([("front_kernel", front5.front3_kernel(mapping, touch), (256, 512, front5.FRONT_LDS)),
          ("back_kernel", back.back_kernel(), (256, 512, 131072 + 2*conv.CHSZ))])
def build_v7m1(): return build_v7(1, True)
def build_v7m1nt2():
    import back
    back.TOUCH2 = False
    return build_v7(1, True)
def build_v7nodma(): return build_v7(0, True, DIAG_NODMA=True)
def build_v7d2(): return build_v7(0, True, DIST=2)
def build_v7norot(): return build_v7(0, True, ROTMASK=0)
def build_s1(mapping=1):
    import merged
    t, d, lds = merged.merged_kernel(mapping)
    s = HDR + f"; @launch grid=(256,1,1) block=(512,1,1) lds={lds}\n"
    s += '.amdgcn_target "amdgcn-amd-amdhsa--gfx950"\n.text\n' + t + '.section .rodata,"a"\n' + d
    return s
def build_s1m0(): return build_s1(0)
def build_s2(mapping=1):
    import merged2
    merged2.MAPPING = mapping
    t, d, lds = merged2.kernel()
    s = HDR + f"; @launch grid=(256,1,1) block=(512,1,1) lds={lds}\n"
    s += '.amdgcn_target "amdgcn-amd-amdhsa--gfx950"\n.text\n' + t + '.section .rodata,"a"\n' + d
    return s
def build_s2m0(): return build_s2(0)
def build_s2p():
    import merged2, back3
    merged2.PSTAMP = True; back3.NOSTAMP = True
    return build_s2(1)
def build_s3(mapping=1):
    import merged3
    merged3.MAPPING = mapping
    t, d, lds = merged3.kernel()
    s = HDR + f"; @launch grid=(256,1,1) block=(512,1,1) lds={lds}\n"
    s += '.amdgcn_target "amdgcn-amd-amdhsa--gfx950"\n.text\n' + t + '.section .rodata,"a"\n' + d
    return s
def build_s3m0(): return build_s3(0)
def build_s4(mapping=1, rot=7):
    import merged4, front5
    merged4.MAPPING = mapping
    front5.ROTMASK = rot
    t, d, lds = merged4.kernel()
    s = HDR + f"; @launch grid=(256,1,1) block=(512,1,1) lds={lds}\n"
    s += '.amdgcn_target "amdgcn-amd-amdhsa--gfx950"\n.text\n' + t + '.section .rodata,"a"\n' + d
    return s
def build_s4m0(): return build_s4(0)
def build_s4l():
    import merged4, back3
    merged4.LSTAMP = True; back3.NOSTAMP = True
    return build_s4(1, 0)
def build_s4w4():
    import common
    common.STAMP_TID = 256
    return build_s4(1, 0)
def build_s4norot(): return build_s4(1, 0)
def build_s5(mapping=1, rot=0):
    import merged5, front5
    merged5.MAPPING = mapping
    front5.ROTMASK = rot
    t, d, lds = merged5.kernel()
    s = HDR + f"; @launch grid=(256,1,1) block=(512,1,1) lds={lds}\n"
    s += '.amdgcn_target "amdgcn-amd-amdhsa--gfx950"\n.text\n' + t + '.section .rodata,"a"\n' + d
    return s
def build_s5rot(): return build_s5(1, 7)
def build_s5m0(): return build_s5(0, 0)
def build_s5l():
    import merged5, back3
    merged5.LSTAMP = True; back3.NOSTAMP = True
    return build_s5(1, 0)
def build_s5w4():
    import common
    common.STAMP_TID = 256
    return build_s5(1, 0)
if __name__ == "__main__":
    out = sys.argv[1]
    import common
    common.INSTR = len(sys.argv) > 2 and sys.argv[2] in ("instr", "dbg")
    common.DBGMODE = len(sys.argv) > 2 and sys.argv[2] == "dbg"
    ver = sys.argv[3] if len(sys.argv) > 3 else "v1"
    open(out, "w").write(globals()["build_" + ver]())
```

```python
from common import *
import common
from conv import OB, UB, CHSZ

CV_BASE = 131072
EX_BASE = 98304
NST = 14
AF = None
NW = None
TOUCH2 = True
W2_PRE = False
OUT_PRELOADED = False
ACT_PLAIN = False
ROT2 = False
SPIN_SLEEP = 4
NOSTAMP = False

S_WAVE, S_DB, S_TB, S_ACTF, S_N = 18, 34, 35, 19, 62
SRD_X, SRD_W2, SRD_WS, SRD_OUT, SRD_K = 20, 24, 28, 40, 44

def emit_prefetch(a):
    w = f"s{S_WAVE}"
    a(f"""
    s_and_b32 s52, s2, 7
    s_lshr_b32 s53, s2, 3
    s_lshr_b32 s{S_TB}, s53, 3
    s_lshl_b32 s52, s52, 2
    s_add_u32 s{S_TB}, s{S_TB}, s52
    s_and_b32 s{S_DB}, s53, 7
    s_mov_b32 s{SRD_K}, s50
    s_mov_b32 s{SRD_K+1}, s51
    s_mov_b32 s{SRD_K+2}, {D*S*2}
    s_mov_b32 s{SRD_K+3}, 0x00020000
    s_mov_b32 s{SRD_W2}, s48
    s_mov_b32 s{SRD_W2+1}, s49
    s_mov_b32 s{SRD_W2+2}, {F*D*2}
    s_mov_b32 s{SRD_W2+3}, 0x00020000
    s_lshr_b32 s52, {w}, 2                         ; ch
    s_bfe_u32 s53, {w}, 0x10001                    ; copy
    s_and_b32 s54, {w}, 1
    s_lshl_b32 s54, s54, 11                        ; 2048*half
    s_lshl_b32 s55, s53, 1
    v_lshl_add_u32 v183, v1, 4, s55                ; 16 l + 2 copy
    s_mul_i32 s53, s53, {OB}
    s_mul_i32 s55, s52, {CHSZ}
    s_add_u32 s53, s53, s55
    s_add_u32 s53, s53, s54
    s_add_u32 m0, s53, {CV_BASE + 32}
    s_lshl_b32 s53, s2, 1
    s_add_u32 s53, s53, s52
    s_lshl_b32 s53, s53, 12
    s_add_u32 s53, s53, s54
    buffer_load_dwordx4 v183, s[{SRD_K}:{SRD_K+3}], s53 offen lds
    buffer_load_dwordx4 v183, s[{SRD_K}:{SRD_K+3}], s53 offen offset:1024 lds
    v_lshrrev_b32 v183, 3, v1
    v_lshlrev_b32 v183, 10, v183
    v_bfe_u32 v184, v1, 4, 1
    v_lshlrev_b32 v184, 2, v184
    v_xor_b32 v184, v184, v1
    v_and_b32 v184, 7, v184
    v_lshl_add_u32 v183, v184, 4, v183
    s_lshl_b32 s52, {w}, 14
    s_lshl_b32 s53, s{S_DB}, 7
    s_add_u32 s52, s52, s53
    s_lshl_b32 s53, {w}, 11
    s_add_u32 s53, s53, 16384
    """)
    for st in range(3):
        a(f"""
        s_add_u32 m0, s53, {32768*st}
        s_add_u32 s54, s52, {131072*st}
        s_add_u32 s55, s52, {131072*st + 8192 - 1024}
        buffer_load_dwordx4 v183, s[{SRD_W2}:{SRD_W2+3}], s54 offen lds
        buffer_load_dwordx4 v183, s[{SRD_W2}:{SRD_W2+3}], s55 offen offset:1024 lds
        """)

def spin_flags(a, name, voff, vdst, nlanes, on_ready_first=None):
    lsp, ldn = a.label(name + "_spin"), a.label(name + "_done")
    a(f"s_mov_b32 s63, 0")
    a.lines.append(f"{lsp}:")
    a(f"""
    buffer_load_dword v{vdst}, v{voff}, s[{SRD_WS}:{SRD_WS+3}], 0 offen sc1
    s_add_u32 s63, s63, 1
    s_waitcnt vmcnt(0)
    v_cmp_ne_u32 vcc, s{S_N}, v{vdst}
    s_nop 1
    s_cmp_eq_u64 vcc, 0
    s_cbranch_scc1 {ldn}
    s_cmp_ge_u32 s63, 0x40000
    s_cbranch_scc1 {ldn}
    s_sleep {SPIN_SLEEP}
    s_branch {lsp}
    """)
    a.lines.append(f"{ldn}:")

def emit_entry(a):
    a(f"""
    {"" if OUT_PRELOADED else "s_load_dwordx2 s[8:9], s[0:1], " + str(KA['out'])}
    v_mov_b32 v2, {NW}
    ds_read_b32 v2, v2
    s_and_b32 s52, s2, 7
    s_lshr_b32 s53, s2, 3
    s_lshr_b32 s{S_TB}, s53, 3
    s_lshl_b32 s52, s52, 2
    s_add_u32 s{S_TB}, s{S_TB}, s52
    s_and_b32 s{S_DB}, s53, 7
    s_mov_b32 s{SRD_W2}, s48
    s_mov_b32 s{SRD_W2+1}, s49
    s_mov_b32 s{SRD_W2+2}, {F*D*2}
    s_mov_b32 s{SRD_W2+3}, 0x00020000
    s_waitcnt lgkmcnt(0)
    v_readfirstlane_b32 s{S_N}, v2
    """)
    srd(a, SRD_OUT, 8, S*D*2)

VSA, VSW = 60, 61
def rot2(a, dst, tmp):
    a(f"""
    s_lshl_b32 {dst}, s{S_DB}, 1
    s_and_b32 {tmp}, s{S_TB}, 3
    s_mul_i32 {tmp}, {tmp}, 3
    s_add_u32 {dst}, {dst}, {tmp}
    s_cmp_ge_u32 {dst}, 14
    s_cselect_b32 {tmp}, 14, 0
    s_sub_u32 {dst}, {dst}, {tmp}
    """)

def act_pieces(a):
    m = "" if ACT_PLAIN else " sc1"
    a(f"""
    s_add_u32 m0, s54, s57
    s_nop 0
    buffer_load_dwordx4 v{VSA}, s[{SRD_WS}:{SRD_WS+3}], s55 offen{m} lds
    buffer_load_dwordx4 v{VSA}, s[{SRD_WS}:{SRD_WS+3}], s55 offen offset:1024{m} lds
    buffer_load_dwordx4 v{VSA}, s[{SRD_WS}:{SRD_WS+3}], s55 offen offset:2048{m} lds
    buffer_load_dwordx4 v{VSA}, s[{SRD_WS}:{SRD_WS+3}], s55 offen offset:3072{m} lds
    s_add_u32 s55, s55, 8192
    """)
    if ROT2:
        a(f"""
        s_cmp_eq_u32 s55, s36
        s_cselect_b32 s55, s37, s55
        """)
def w2_pieces(a):
    a(f"""
    s_add_u32 m0, s54, s58
    s_add_u32 s59, s56, {8192-1024}
    s_add_u32 s60, s56, {2*(8192-1024)}
    buffer_load_dwordx4 v{VSW}, s[{SRD_W2}:{SRD_W2+3}], s56 offen lds
    buffer_load_dwordx4 v{VSW}, s[{SRD_W2}:{SRD_W2+3}], s59 offen offset:1024 lds
    s_add_u32 s59, s56, {3*(8192-1024)}
    buffer_load_dwordx4 v{VSW}, s[{SRD_W2}:{SRD_W2+3}], s60 offen offset:2048 lds
    buffer_load_dwordx4 v{VSW}, s[{SRD_W2}:{SRD_W2+3}], s59 offen offset:3072 lds
    s_add_u32 s56, s56, {128*1024}
    """)
    if ROT2:
        a(f"""
        s_cmp_ge_u32 s56, {14*131072}
        s_cselect_b32 s59, {14*131072}, 0
        s_sub_u32 s56, s56, s59
        """)
def next_slot(a):
    a("s_add_u32 s54, s54, 32768")
    a("s_and_b32 s54, s54, 0x1ffff")

def emit_loader(a):
    lw = "s52"
    a(f"""
    s_sub_u32 {lw}, s{S_WAVE}, 4
    v_lshlrev_b32 v{VSA}, 4, v1
    s_lshl_b32 s53, s{S_TB}, 1
    s_lshr_b32 s54, {lw}, 1
    s_add_u32 s53, s53, s54
    s_mul_i32 s53, s53, 112
    s_and_b32 s54, {lw}, 1
    s_lshl_b32 s54, s54, 2
    s_add_u32 s53, s53, s54
    s_lshl_b32 s55, s53, 10
    s_add_u32 s55, s55, {WS_ACT}
    s_lshl_b32 s57, {lw}, 12
    s_add_u32 s58, s57, 16384
    v_lshrrev_b32 v2, 3, v1
    v_lshlrev_b32 v2, 10, v2
    v_bfe_u32 v3, v1, 4, 1
    v_lshlrev_b32 v3, 2, v3
    v_and_b32 v4, 7, v1
    v_xor_b32 v3, v3, v4
    v_lshl_add_u32 v{VSW}, v3, 4, v2
    s_lshl_b32 s56, {lw}, 15
    s_lshl_b32 s53, s{S_DB}, 7
    s_add_u32 s56, s56, s53
    s_mov_b32 s54, 0
    """)
    if ROT2:
        rot2(a, "s53", "s59")
        a(f"""
        s_add_u32 s36, s55, {14*8192}
        s_mov_b32 s37, s55
        s_lshl_b32 s59, s53, 13
        s_add_u32 s55, s55, s59
        s_add_u32 s53, s53, 3
        s_cmp_ge_u32 s53, 14
        s_cselect_b32 s59, 14, 0
        s_sub_u32 s53, s53, s59
        s_lshl_b32 s53, s53, 17
        s_add_u32 s56, s56, s53
        """)
        a("s_waitcnt vmcnt(0)")
    elif W2_PRE:
        a(f"s_add_u32 s56, s56, {3*131072}")
        a("s_waitcnt vmcnt(0)")
    else:
        for st in range(3):
            w2_pieces(a); next_slot(a)
        a("s_waitcnt vmcnt(12)")
    a("""
    s_mov_b32 s54, 0
    s_barrier
    """)
    (NOSTAMP or stamp(a, 6))
    lna = a.label("ld_noactf")
    a(f"""
    s_cmp_lg_u32 s{S_WAVE}, 4
    s_cbranch_scc1 {lna}
    s_cmp_eq_u32 s{S_ACTF}, -1
    s_cbranch_scc1 {lna}
    v_mov_b32 v2, s{S_ACTF}
    v_mov_b32 v3, s{S_N}
    s_mov_b64 exec, 1
    buffer_store_dword v3, v2, s[{SRD_WS}:{SRD_WS+3}], 0 offen sc1
    s_mov_b64 exec, -1
    """)
    a.lines.append(f"{lna}:")
    lother, lready = a.label("ld_other"), a.label("ld_ready")
    a(f"""
    s_cmp_lg_u32 s{S_WAVE}, 4
    s_cbranch_scc1 {lother}
    s_lshr_b32 s53, s{S_TB}, 1
    s_lshl_b32 s53, s53, 11
    s_add_u32 s53, s53, {WS_ACTF}
    v_min_u32 v2, 13, v1
    v_lshl_add_u32 v2, v2, 7, s53
    """)
    spin_flags(a, "ld_actf", 2, 3, 14)
    a(f"""
    v_mov_b32 v2, {AF}
    v_mov_b32 v3, 1
    ds_write_b32 v2, v3
    s_branch {lready}
    """)
    a.lines.append(f"{lother}:")
    lsp = a.label("ld_lspin")
    a(f"""
    v_mov_b32 v2, {AF}
    s_mov_b32 s63, 0
    """)
    a.lines.append(f"{lsp}:")
    a(f"""
    ds_read_b32 v3, v2
    s_add_u32 s63, s63, 1
    s_waitcnt lgkmcnt(0)
    v_readfirstlane_b32 s59, v3
    s_cmp_lg_u32 s59, 0
    s_cbranch_scc1 {lready}
    s_cmp_ge_u32 s63, 0x400000
    s_cbranch_scc1 {lready}
    s_sleep 1
    s_branch {lsp}
    """)
    a.lines.append(f"{lready}:")
    if ACT_PLAIN:
        a("buffer_inv sc1")
        a("s_waitcnt vmcnt(0)")
    (NOSTAMP or stamp(a, 7))
    for st in range(3):
        act_pieces(a); next_slot(a)
    if TOUCH2:
        a(f"""
        s_lshr_b32 s59, s2, 3
        s_lshl_b32 s59, s59, 12
        v_and_b32 v2, 31, v1
        v_lshlrev_b32 v2, 7, v2
        v_lshrrev_b32 v3, 5, v1
        s_lshl_b32 s60, {lw}, 1
        v_add_u32 v3, s60, v3
        v_add_u32 v3, 3, v3
        v_lshlrev_b32 v3, 17, v3
        v_add3_u32 v2, v2, v3, s59
        buffer_load_dword v8, v2, s[{SRD_W2}:{SRD_W2+3}], 0 offen
        s_mov_b32 s60, {8 << 17}
        s_cmp_ge_u32 {lw}, 2
        s_cselect_b32 s60, 0x7fffffff, s60
        v_add_u32 v2, s60, v2
        buffer_load_dword v9, v2, s[{SRD_W2}:{SRD_W2+3}], 0 offen
        """)
    nt = 2 if TOUCH2 else 0
    (NOSTAMP or stamp(a, 8))
    a("s_barrier")
    (NOSTAMP or stamp(a, 9))
    def stage(vm, issue):
        a(f"s_waitcnt vmcnt({vm})")
        a("s_barrier")
        if issue:
            act_pieces(a); w2_pieces(a); next_slot(a)
    stage(8, True)
    (NOSTAMP or stamp(a, 5))
    stage(12, True)
    stage(16, True)
    lns = a.label("ld_nosig")
    a(f"""
    s_cmp_lg_u32 s{S_WAVE}, 4
    s_cbranch_scc1 {lns}
    s_lshl_b32 s53, s2, 7
    s_add_u32 s53, s53, {WS_Y2F}
    v_mov_b32 v2, s53
    v_mov_b32 v3, s{S_N}
    s_mov_b64 exec, 1
    buffer_store_dword v3, v2, s[{SRD_WS}:{SRD_WS+3}], 0 offen sc1
    s_mov_b64 exec, -1
    """)
    a.lines.append(f"{lns}:")
    loop = a.label("ld_loop")
    a("s_mov_b32 s61, 3")
    a.lines.append(f"{loop}:")
    stage(16, True)
    a(f"""
    s_add_u32 s61, s61, 1
    s_cmp_lt_u32 s61, {NST-3}
    s_cbranch_scc1 {loop}
    """)
    stage(16, False)
    stage(8, False)
    stage(0, False)

def emit_conv_compute(a):
    ACC = 8
    A0, B0, A1, B1 = 40, 72, 104, 136
    VA, VB = 168, 172
    p = "s2"
    a(f"""
    s_lshr_b32 s52, s{S_WAVE}, 1                   ; ch
    s_and_b32 s53, s{S_WAVE}, 1                    ; half
    s_mul_i32 s60, s52, {CHSZ}
    s_add_u32 s60, s60, {CV_BASE}
    v_and_b32 v2, 15, v1
    v_lshrrev_b32 v3, 4, v1
    v_lshlrev_b32 v4, 3, v3
    v_sub_u32 v4, v2, v4
    v_add_u32 v4, 9, v4
    v_lshlrev_b32 v4, 1, v4
    v_and_b32 v5, 1, v2
    v_cmp_eq_u32 vcc, 0, v5
    v_mov_b32 v6, {OB-2}
    s_lshl_b32 s61, s53, 8
    v_cndmask_b32 v6, 0, v6, vcc
    s_add_u32 s63, s60, 32
    s_add_u32 s63, s63, s61
    v_add3_u32 v{VA}, v4, v6, s63
    v_add_u32 v{VA+1}, 1024, v{VA}
    v_add_u32 v{VA+2}, 2048, v{VA}
    v_add_u32 v{VA+3}, 3072, v{VA}
    v_lshlrev_b32 v4, 5, v2
    v_lshl_add_u32 v4, v3, 4, v4
    s_add_u32 s63, s60, {UB + 4112 - 3584}
    s_add_u32 s63, s63, s61
    v_sub_u32 v{VB}, s63, v4
    """)
    def reads(A, B):
        ins = []
        for mu in range(8):
            base = VA + (mu >> 1); o = 128*(mu & 1)
            ins.append(f"ds_read_b128 v[{B+4*mu}:{B+4*mu+3}], v{VB} offset:{512*(7-mu)}")
            ins.append(f"ds_read2_b32 v[{A+4*mu}:{A+4*mu+1}], v{base} offset0:{o} offset1:{o+1}")
            ins.append(f"ds_read2_b32 v[{A+4*mu+2}:{A+4*mu+3}], v{base} offset0:{o+2} offset1:{o+3}")
        return ins
    def advance():
        return [f"v_add_u32 v{r}, 64, v{r}" for r in (VA, VA+1, VA+2, VA+3, VB)]
    def mfmas(A, B):
        ins = []
        for q in range(8):
            for mu in range(q+1):
                n = q - mu
                ins.append(f"v_mfma_f32_16x16x32_bf16 v[{ACC+4*q}:{ACC+4*q+3}], v[{A+4*mu}:{A+4*mu+3}], v[{B+4*n}:{B+4*n+3}], v[{ACC+4*q}:{ACC+4*q+3}]")
        return ins
    def interleave(m, rd):
        k = 0
        for x in m:
            a(x)
            if k < len(rd):
                a(rd[k]); k += 1
        assert k == len(rd)
    for x in reads(A0, B0): a(x)
    for r in range(32):
        a(f"v_mov_b32 v{ACC+r}, 0")
    (NOSTAMP or stamp(a, 7))
    loop, ldone = a.label("cv_loop"), a.label("cv_done")
    a("s_mov_b32 s61, 0")
    a.lines.append(f"{loop}:")
    a("s_waitcnt lgkmcnt(0)")
    interleave(mfmas(A0, B0), advance() + reads(A1, B1))
    a("s_waitcnt lgkmcnt(0)")
    a(f"""
    s_cmp_eq_u32 s61, 1
    s_cbranch_scc1 {ldone}
    s_mov_b32 s61, 1
    s_waitcnt vmcnt(0)
    s_barrier                                      ; Y
    """)
    interleave(mfmas(A1, B1), advance() + reads(A0, B0))
    a(f"s_branch {loop}")
    a.lines.append(f"{ldone}:")
    for x in mfmas(A1, B1): a(x)
    (NOSTAMP or stamp(a, 8))
    a(f"""
    s_lshl_b32 s61, s{S_WAVE}, 13
    s_add_u32 s61, s61, {EX_BASE}
    v_lshlrev_b32 v2, 4, v1
    v_add_u32 v3, s61, v2
    v_and_b32 v4, 15, v1
    v_lshrrev_b32 v5, 4, v1
    v_lshlrev_b32 v6, 5, v4
    v_lshl_add_u32 v6, v5, 3, v6
    s_lshl_b32 s63, s{S_WAVE}, 10
    s_sub_u32 s63, {CV_BASE + UB + 2*2044 - 512}, s63
    v_sub_u32 v7, s63, v6
    ds_read_b64 v[40:41], v7 offset:512
    ds_read_b64 v[42:43], v7
    ds_read_b64 v[44:45], v7 offset:{512+CHSZ}
    ds_read_b64 v[46:47], v7 offset:{CHSZ}
    s_nop 4
    """)
    for q in range(8):
        a(f"ds_write_b128 v3, v[{ACC+4*q}:{ACC+4*q+3}] offset:{1024*q}")
    a(f"""
    s_lshl_b32 s61, s{S_WAVE}, 11
    s_add_u32 s61, s61, {EX_BASE}
    v_add_u32 v3, s61, v2
    s_waitcnt lgkmcnt(0)
    s_barrier                                      ; B1
    """)
    Y = 48
    for w in range(4):
        for qq in range(2):
            a(f"ds_read_b128 v[{Y+8*w+4*qq}:{Y+8*w+4*qq+3}], v3 offset:{8192*w+1024*qq}")
    a(f"""
    s_lshl_b32 s56, s17, 16
    s_and_b32 s57, s17, 0xffff0000
    v_lshlrev_b32 v6, 6, v4
    v_lshl_add_u32 v6, v5, 4, v6
    s_lshl_b32 s61, {p}, 13
    s_lshl_b32 s53, s{S_WAVE}, 11
    s_add_u32 s61, s61, s53
    s_add_u32 s61, s61, {WS_Y2}
    s_waitcnt lgkmcnt(0)
    """)
    T = 80
    for qq in range(2):
        for ch in range(2):
            y0, y1 = Y + 8*(2*ch) + 4*qq, Y + 8*(2*ch+1) + 4*qq
            u = 40 + 2*qq + 4*ch
            sD = 56 + ch
            r = T + 8*ch
            for k in range(4):
                a(f"v_add_f32 v{r+k}, v{y0+k}, v{y1+k}")
            a(f"v_and_b32 v{r+4}, 0xffff0000, v{u+1}")
            a(f"v_lshlrev_b32 v{r+5}, 16, v{u+1}")
            a(f"v_and_b32 v{r+6}, 0xffff0000, v{u}")
            a(f"v_lshlrev_b32 v{r+7}, 16, v{u}")
            for k in range(4):
                a(f"v_fmac_f32 v{r+k}, s{sD}, v{r+4+k}")
        o = 96 + 4*qq
        for k in range(4):
            a(f"v_cvt_pk_bf16_f32 v{o+k}, v{T+k}, v{T+8+k}")
        a(f"buffer_store_dwordx4 v[{o}:{o+3}], v6, s[{SRD_WS}:{SRD_WS+3}], s61 offen offset:{1024*qq} sc1")

G_ACC = 8
FP, FQ = 24, 32
VX, VY, VST = 104, 112, 120
VA2, VW2, VOFF, VYO = 122, 123, 124, 125

def g2_read(a, dst, step):
    a(f"ds_read_b128 v[{dst}:{dst+3}], v{VA2} offset:{1024*step}")
    a(f"ds_read_b64_tr_b16 v[{dst+4}:{dst+5}], v{VW2} offset:{2048*step}")
    a(f"ds_read_b64_tr_b16 v[{dst+6}:{dst+7}], v{VW2} offset:{2048*step+1024}")
def g2_mfma(a, src):
    a(f"v_mfma_f32_32x32x16_bf16 v[{G_ACC}:{G_ACC+15}], v[{src+4}:{src+7}], v[{src}:{src+3}], v[{G_ACC}:{G_ACC+15}]")

def emit_gemm2_compute(a):
    w = f"s{S_WAVE}"
    a(f"""
    s_and_b32 s52, {w}, 1                          ; ti
    s_lshr_b32 s53, {w}, 1                         ; di
    v_and_b32 v5, 31, v1
    v_lshrrev_b32 v6, 5, v1
    s_lshl_b32 s54, s{S_TB}, 6
    s_lshl_b32 s55, s52, 5
    s_add_u32 s54, s54, s55
    v_add_u32 v2, s54, v5                          ; token
    s_lshl_b32 s54, s{S_DB}, 6
    s_lshl_b32 s55, s53, 5
    s_add_u32 s54, s54, s55
    v_lshl_add_u32 v3, v6, 4, s54
    v_lshlrev_b32 v4, 10, v2
    v_lshl_add_u32 v{VOFF}, v3, 1, v4
    buffer_load_dwordx4 v[{VX}:{VX+3}], v{VOFF}, s[{SRD_X}:{SRD_X+3}], 0 offen
    buffer_load_dwordx4 v[{VX+4}:{VX+7}], v{VOFF}, s[{SRD_X}:{SRD_X+3}], 0 offen offset:16
    v_lshlrev_b32 v4, 3, v2
    buffer_load_dwordx2 v[{VST}:{VST+1}], v4, s[{SRD_WS}:{SRD_WS+3}], 0 offen offset:{WS_STATS} sc1
    v_lshlrev_b32 v4, 12, v3
    v_lshl_add_u32 v{VYO}, v2, 2, v4
    s_lshl_b32 s54, s52, 13
    v_lshl_add_u32 v{VA2}, v1, 4, s54
    v_bfe_u32 v2, v1, 2, 2
    v_bfe_u32 v3, v1, 4, 1
    v_and_b32 v4, 1, v1
    v_lshl_add_u32 v3, v4, 1, v3
    v_lshrrev_b32 v4, 1, v2
    v_xor_b32 v4, s53, v4
    v_lshl_add_u32 v3, v4, 2, v3
    v_bfe_u32 v4, v1, 1, 1
    v_lshlrev_b32 v4, 3, v4
    v_lshl_add_u32 v3, v3, 4, v4
    v_lshl_add_u32 v2, v6, 2, v2
    v_lshl_add_u32 v3, v2, 7, v3
    v_add_u32 v{VW2}, 16384, v3
    """)
    for r in range(16):
        a(f"v_mov_b32 v{G_ACC+r}, 0")
    a(f"""
    s_mov_b32 s54, 0                               ; stage
    s_mov_b32 s55, 0
    s_mov_b32 s56, 32768
    s_mov_b32 s57, 0
    s_lshl_b32 s58, s{S_DB}, 12
    s_add_u32 s58, s58, {WS_Y2F}
    v_and_b32 v126, 31, v1
    v_lshl_add_u32 v126, v126, 7, s58
    s_barrier                                      ; S_0
    """)
    (NOSTAMP or stamp(a, 9))
    g2_read(a, FP, 0)
    loop, llast, lnodrain, lnopoll, lnochk = [a.label(x) for x in ("g2_loop", "g2_last", "g2_nodrain", "g2_nopoll", "g2_nochk")]
    def y2_loads():
        a(f"s_mov_b32 s59, {WS_Y2}")
        for k in range(8):
            a(f"buffer_load_dword v{VY+k}, v{VYO}, s[{SRD_WS}:{SRD_WS+3}], s59 offen sc1")
            if k < 7: a("s_add_u32 s59, s59, 8192")
    a.lines.append(f"{loop}:")
    cur, nxt = FP, FQ
    for s in range(7):
        g2_read(a, nxt, s+1); a("s_waitcnt lgkmcnt(3)"); g2_mfma(a, cur)
        cur, nxt = nxt, cur
    a(f"""
    s_cmp_eq_u32 s54, {NST-1}
    s_cbranch_scc1 {llast}
    s_cmp_lg_u32 s54, 1
    s_cbranch_scc1 {lnodrain}
    s_waitcnt vmcnt(0)
    """)
    a.lines.append(f"{lnodrain}:")
    a(f"""
    s_cmp_lg_u32 s54, 9
    s_cbranch_scc1 {lnopoll}
    buffer_load_dword v127, v126, s[{SRD_WS}:{SRD_WS+3}], 0 offen sc1
    """)
    a.lines.append(f"{lnopoll}:")
    a(f"""
    s_cmp_lg_u32 s54, 11
    s_cbranch_scc1 {lnochk}
    s_waitcnt vmcnt(0)
    v_cmp_ne_u32 vcc, s{S_N}, v127
    s_nop 1
    s_cmp_eq_u64 vcc, 0
    s_cbranch_scc0 {lnochk}
    s_mov_b32 s57, 1
    """)
    y2_loads()
    a.lines.append(f"{lnochk}:")
    a(f"""
    s_waitcnt lgkmcnt(0)
    s_barrier                                      ; S_(s+1)
    s_add_u32 s55, s55, 32768
    s_and_b32 s55, s55, 0x1ffff
    s_cmp_eq_u32 s55, 0
    s_cselect_b32 s59, {(-98304) & 0xffffffff}, s56
    s_add_u32 s54, s54, 1
    v_add_u32 v{VA2}, s59, v{VA2}
    v_add_u32 v{VW2}, s59, v{VW2}
    """)
    g2_read(a, nxt, 0)
    g2_mfma(a, cur)
    a(f"s_branch {loop}")
    a.lines.append(f"{llast}:")
    a("s_waitcnt lgkmcnt(0)")
    g2_mfma(a, cur)
    (NOSTAMP or stamp(a, 5))
    lgot = a.label("g2_got")
    a(f"""
    s_cmp_eq_u32 s57, 1
    s_cbranch_scc1 {lgot}
    """)
    spin_flags(a, "g2_y2f", 126, 127, 32)
    y2_loads()
    a.lines.append(f"{lgot}:")
    def pr(r): return f"v[{r}:{r+1}]"
    K1, KL = 40, 42
    XF, SF, E, T = 44, 60, 24, 76
    a(f"""
    v_mov_b32 v{K1}, 1.0
    v_mov_b32 v{K1+1}, 1.0
    v_mov_b32 v{KL}, {hex(LOG2E | 0x80000000)}
    v_mov_b32 v{KL+1}, {hex(LOG2E | 0x80000000)}
    """)
    for k in range(8):
        a(f"v_pk_mul_f32 {pr(E+2*k)}, {pr(G_ACC+2*k)}, {pr(KL)}")
    for k in range(16):
        a(f"v_exp_f32 v{E+k}, v{E+k}")
    for k in range(8):
        a(f"v_pk_add_f32 {pr(E+2*k)}, {pr(E+2*k)}, {pr(K1)}")
    for k in range(16):
        a(f"v_rcp_f32 v{E+k}, v{E+k}")
    for k in range(8):
        a(f"v_pk_mul_f32 {pr(E+2*k)}, {pr(E+2*k)}, {pr(G_ACC+2*k)}")
    a("s_waitcnt vmcnt(0)")
    for k in range(8):
        a(f"v_lshlrev_b32 v{XF+2*k}, 16, v{VX+k}")
        a(f"v_and_b32 v{XF+2*k+1}, 0xffff0000, v{VX+k}")
    for k in range(8):
        a(f"v_pk_add_f32 {pr(SF+2*k)}, {pr(XF+2*k)}, {pr(VST)} op_sel_hi:[1,0] neg_lo:[0,1] neg_hi:[0,1]")
    for k in range(8):
        a(f"v_pk_mul_f32 {pr(SF+2*k)}, {pr(SF+2*k)}, {pr(VST)} op_sel:[0,1] op_sel_hi:[1,1]")
    for k in range(8):
        a(f"v_lshlrev_b32 v{T+2*k}, 16, v{VY+k}")
        a(f"v_and_b32 v{T+2*k+1}, 0xffff0000, v{VY+k}")
    for k in range(8):
        a(f"v_pk_mul_f32 {pr(SF+2*k)}, {pr(SF+2*k)}, {pr(T+2*k)}")
    for k in range(8):
        a(f"v_pk_fma_f32 {pr(E+2*k)}, {pr(E+2*k)}, {pr(SF+2*k)}, {pr(XF+2*k)}")
    for k in range(8):
        a(f"v_cvt_pk_bf16_f32 v{VX+k}, v{E+2*k}, v{E+2*k+1}")
    a(f"buffer_store_dwordx4 v[{VX}:{VX+3}], v{VOFF}, s[{SRD_OUT}:{SRD_OUT+3}], 0 offen")
    a(f"buffer_store_dwordx4 v[{VX+4}:{VX+7}], v{VOFF}, s[{SRD_OUT}:{SRD_OUT+3}], 0 offen offset:16")

def emit_back(a):
    emit_entry(a)
    lload, lend = a.label("bk_loader"), a.label("bk_end")
    a(f"""
    s_cmp_ge_u32 s{S_WAVE}, 4
    s_cbranch_scc1 {lload}
    """)
    emit_conv_compute(a)
    emit_gemm2_compute(a)
    a(f"s_branch {lend}")
    a.lines.append(f"{lload}:")
    emit_loader(a)
    a.lines.append(f"{lend}:")
```

```python
from common import *
import common
import front5 as f5
import merged2 as m2
import merged4 as m4
import back3 as b3
from gemm1 import emit_wgmap_gemm1
from conv import OB, UB, CHSZ

NAME = m2.NAME
S_WAVE, S_N = 18, 62
SRD_X, SRD_W1, SRD_WS, SRD_DBG, SRD_W2 = 20, 24, 28, 56, 24
OPS, NW = f5.OPS, f5.NW
AF = NW + 4
KT, VT, TR = f5.KT, f5.VT, f5.TR
W = f"s{S_WAVE}"
MAPPING = 1
LSTAMP = False
ACC, FS, VC, VB = f5.ACC, f5.FS, f5.VC, f5.VB
VXA, VWA, VXH, VWH = f5.VXA, f5.VWA, f5.VXH, f5.VWH
VX0, VX1, VW, VST, VK = f5.VX0, f5.VX1, f5.VW, f5.VST, f5.VK
VOPS, VFL, VFO = f5.VOPS, f5.VFL, f5.VFO
VROW = 64

def setup(a):
    a(f"""
    s_load_dwordx4 s[4:7], s[0:1], {KA['q']}       ; q, k
    s_load_dwordx4 s[8:11], s[0:1], {KA['v']}      ; v, shift
    s_load_dwordx4 s[12:15], s[0:1], {KA['w1']}    ; w1, b1
    s_load_dwordx4 s[48:51], s[0:1], {KA['dbg']}
    v_and_b32 v1, 63, v0
    v_lshrrev_b32 v2, 6, v0
    s_nop 0
    v_readfirstlane_b32 s{S_WAVE}, v2
    s_lshl_b32 s52, s2, 3
    s_add_u32 s53, s52, {W}
    s_lshl_b32 s53, s53, 10
    v_lshl_add_u32 v5, v1, 4, s53
    v_lshrrev_b32 v3, 3, v1
    v_add_u32 v3, s52, v3
    v_lshlrev_b32 v3, 10, v3
    v_and_b32 v4, 7, v1
    v_lshl_add_u32 v3, v4, 4, v3
    s_waitcnt lgkmcnt(0)
    """)
    srd(a, SRD_X, 4, S*D*2)
    lg, ld = a.label("su_g"), a.label("su_d")
    a(f"""
    s_cmp_ge_u32 s2, 32
    s_cbranch_scc1 {lg}
    buffer_load_dwordx4 v[112:115], v5, s[{SRD_X}:{SRD_X+3}], 0 offen
    s_branch {ld}
    """)
    a.lines.append(f"{lg}:")
    a(f"""
    s_cmp_lg_u32 {W}, 4
    s_cbranch_scc1 {ld}
    """)
    for it in range(8):
        a(f"buffer_load_dwordx4 v[{VROW+4*it}:{VROW+4*it+3}], v3, s[{SRD_X}:{SRD_X+3}], 0 offen offset:{128*it}")
    a.lines.append(f"{ld}:")
    f5.emit_kv_loads(a)
    srd(a, SRD_DBG, 48, 256)
    srd(a, SRD_WS, 50, WS_SIZE)
    srd(a, SRD_W1, 12, D*F*2)
    a(f"""
    s_load_dwordx2 s[48:49], s[0:1], {KA['w2']}
    s_load_dwordx4 s[52:55], s[0:1], {KA['ssmk']}
    """)

def stats8(a):
    A = 96
    a(f"v_mov_b32 v104, 0x3f803f80")
    a("s_nop 0")
    for q in range(4):
        a(f"v_dot2_f32_bf16 v{A+q}, v{VROW+q}, v104, 0")
        a(f"v_dot2_f32_bf16 v{A+4+q}, v{VROW+q}, v{VROW+q}, 0")
    for i in range(4, 32):
        a(f"v_dot2_f32_bf16 v{A+i%4}, v{VROW+i}, v104, v{A+i%4}")
        a(f"v_dot2_f32_bf16 v{A+4+i%4}, v{VROW+i}, v{VROW+i}, v{A+4+i%4}")
    a("s_nop 2")
    a(f"""
    v_add_f32 v{A}, v{A}, v{A+1}
    v_add_f32 v{A+2}, v{A+2}, v{A+3}
    v_add_f32 v{A+4}, v{A+4}, v{A+5}
    v_add_f32 v{A+6}, v{A+6}, v{A+7}
    v_add_f32 v{A}, v{A}, v{A+2}
    v_add_f32 v{A+4}, v{A+4}, v{A+6}
    """)
    for mod in ("quad_perm:[1,0,3,2]", "quad_perm:[2,3,0,1]", "row_half_mirror"):
        a("s_nop 1")
        a(f"v_add_f32_dpp v{A}, v{A}, v{A} {mod} row_mask:0xf bank_mask:0xf")
        a(f"v_add_f32_dpp v{A+4}, v{A+4}, v{A+4} {mod} row_mask:0xf bank_mask:0xf")
    a(f"""
    v_mul_f32 v{A+1}, 0x3b000000, v{A}
    v_mul_f32 v{A+4}, 0x3b000000, v{A+4}
    v_fma_f32 v{A+4}, -v{A+1}, v{A+1}, v{A+4}
    v_max_f32 v{A+4}, 0, v{A+4}
    """)
    bf16_round(a, A+4, A+4)
    a(f"v_add_f32 v{A+4}, 0x3727c5ac, v{A+4}")
    bf16_round(a, A+4, A+4)
    a(f"v_sqrt_f32 v{A+4}, v{A+4}")
    a("s_nop 0")
    bf16_round(a, A+4, A+4)
    a(f"v_rcp_f32 v{A+3}, v{A+4}")
    bf16_round(a, A+2, A+1)
    a(f"""
    v_lshrrev_b32 v3, 3, v1
    s_lshl_b32 s52, s2, 3
    v_add_lshl_u32 v3, v3, s52, 3
    v_and_b32 v4, 7, v1
    v_cmp_eq_u32 vcc, 0, v4
    s_and_saveexec_b64 s[60:61], vcc
    buffer_store_dwordx2 v[{A+2}:{A+3}], v3, s[{SRD_WS}:{SRD_WS+3}], 0 offen offset:{WS_STATS} sc1
    s_mov_b64 exec, s[60:61]
    """)

def kv8(a):
    RK, RV, K, V, SS, KV, O = 40, 51, 64, 86, 102, 8, 24
    def pr(r): return f"v[{r}:{r+1}]"
    a(f"""
    v_and_b32 v2, 31, v1
    v_lshrrev_b32 v3, 5, v1
    s_lshl_b32 s52, {W}, 1
    v_add_u32 v3, s52, v3                          ; g
    v_lshlrev_b32 v4, 10, v3
    v_lshl_add_u32 v4, v2, 2, v4
    v_add_u32 v5, {KT + 5*128}, v4
    v_add_u32 v6, {VT}, v4
    """)
    for i in range(11): a(f"ds_read_b32 v{RK+i}, v5 offset:{128*i}")
    a(f"""
    v_lshlrev_b32 v{SS+0}, 16, v124
    v_lshlrev_b32 v{SS+1}, 16, v126
    v_and_b32 v{SS+2}, 0xffff0000, v124
    v_and_b32 v{SS+3}, 0xffff0000, v126
    v_lshlrev_b32 v{SS+4}, 16, v125
    v_lshlrev_b32 v{SS+5}, 16, v127
    v_and_b32 v{SS+6}, 0xffff0000, v125
    v_and_b32 v{SS+7}, 0xffff0000, v127
    v_sub_u32 v3, 7, v3
    v_and_b32 v7, 7, v2
    v_xor_b32 v3, v3, v7
    v_lshlrev_b32 v3, 4, v3
    v_lshl_add_u32 v3, v2, 8, v3
    v_add_u32 v3, {TR}, v3
    s_waitcnt lgkmcnt(4)
    """)
    for i in range(8): a(f"ds_read_b32 v{RV+i}, v6 offset:{128*i}")
    for i in range(7):
        a(f"v_lshlrev_b32 v{K+2*i}, 16, v{RK+i}")
        a(f"v_and_b32 v{K+2*i+1}, 0xffff0000, v{RK+i}")
    a("s_waitcnt lgkmcnt(8)")
    for i in range(7, 11):
        a(f"v_lshlrev_b32 v{K+2*i}, 16, v{RK+i}")
        a(f"v_and_b32 v{K+2*i+1}, 0xffff0000, v{RK+i}")
    for tt in range(8):
        a(f"v_pk_mul_f32 {pr(KV+2*tt)}, {pr(K+2*tt)}, {pr(SS+6)}")
    for n, off in ((4, 1), (2, 2), (0, 3)):
        for tt in range(8):
            a(f"v_pk_fma_f32 {pr(KV+2*tt)}, {pr(K+2*(tt+off))}, {pr(SS+n)}, {pr(KV+2*tt)}")
    a("s_waitcnt lgkmcnt(0)")
    for i in range(8):
        a(f"v_lshlrev_b32 v{V+2*i}, 16, v{RV+i}")
        a(f"v_and_b32 v{V+2*i+1}, 0xffff0000, v{RV+i}")
    for tt in range(8):
        a(f"v_pk_mul_f32 {pr(KV+2*tt)}, {pr(KV+2*tt)}, {pr(V+2*tt)}")
    for ch in range(2):
        for q in range(4):
            a(f"v_cvt_pk_bf16_f32 v{O+4*ch+q}, v{KV+2*(7-2*q)+ch}, v{KV+2*(6-2*q)+ch}")
        a(f"ds_write_b128 v3, v[{O+4*ch}:{O+4*ch+3}] offset:{128*ch}")

def w2_part(a, st):
    if b3.ROT2:
        a(f"""
        s_add_u32 s54, s43, {st}
        s_cmp_ge_u32 s54, 14
        s_cselect_b32 s55, 14, 0
        s_sub_u32 s54, s54, s55
        s_lshl_b32 s54, s54, 17
        s_add_u32 s54, s54, s60
        s_add_u32 s55, s54, {8192 - 1024}
        s_add_u32 m0, s61, {32768*st}
        s_nop 0
        buffer_load_dwordx4 v183, s[{SRD_W2}:{SRD_W2+3}], s54 offen lds
        buffer_load_dwordx4 v183, s[{SRD_W2}:{SRD_W2+3}], s55 offen offset:1024 lds
        """)
        return
    a(f"""
    s_add_u32 m0, s61, {32768*st}
    s_add_u32 s54, s60, {131072*st}
    s_add_u32 s55, s60, {131072*st + 8192 - 1024}
    buffer_load_dwordx4 v183, s[{SRD_W2}:{SRD_W2+3}], s54 offen lds
    buffer_load_dwordx4 v183, s[{SRD_W2}:{SRD_W2+3}], s55 offen offset:1024 lds
    """)
def w2_prep(a):
    a(f"""
    s_mov_b32 s{SRD_W2}, s48
    s_mov_b32 s{SRD_W2+1}, s49
    s_mov_b32 s{SRD_W2+2}, {F*D*2}
    s_mov_b32 s{SRD_W2+3}, 0x00020000
    v_lshrrev_b32 v183, 3, v1
    v_lshlrev_b32 v183, 10, v183
    v_bfe_u32 v184, v1, 4, 1
    v_lshlrev_b32 v184, 2, v184
    v_xor_b32 v184, v184, v1
    v_and_b32 v184, 7, v184
    v_lshl_add_u32 v183, v184, 4, v183
    s_lshl_b32 s60, {W}, 14
    s_lshr_b32 s61, s2, 3
    s_and_b32 s61, s61, 7                          ; db
    s_lshl_b32 s61, s61, 7
    s_add_u32 s60, s60, s61
    s_lshl_b32 s61, {W}, 11
    s_add_u32 s61, s61, 16384
    """)
    if b3.ROT2:
        a(f"""
        s_and_b32 s52, s2, 7
        s_lshr_b32 s53, s2, 3
        s_lshr_b32 s{b3.S_TB}, s53, 3
        s_lshl_b32 s52, s52, 2
        s_add_u32 s{b3.S_TB}, s{b3.S_TB}, s52
        s_and_b32 s{b3.S_DB}, s53, 7
        """)
        b3.rot2(a, "s43", "s52")

def gemm_role(a, wid):
    emit_wgmap_gemm1(a, wid, MAPPING)
    a(f"""
    v_lshrrev_b32 v2, 3, v1
    v_lshrrev_b32 v3, 4, v1
    v_and_b32 v4, 7, v1
    s_lshl_b32 s38, s32, 7
    s_lshl_b32 s39, {W}, 4
    s_add_u32 s38, s38, s39
    v_add_u32 v5, s38, v2
    v_lshlrev_b32 v5, 10, v5
    v_xor_b32 v6, v4, v3
    v_lshl_add_u32 v{VX0}, v6, 4, v5
    v_xor_b32 v6, 4, v6
    v_lshl_add_u32 v{VX1}, v6, 4, v5
    v_add_u32 v{VX1}, 8192, v{VX1}
    s_lshl_b32 s39, {W}, 3
    v_add_u32 v5, s39, v3
    v_mul_u32_u24 v5, {F*2}, v5
    v_and_b32 v6, 15, v1
    v_lshlrev_b32 v7, 2, v3
    v_xor_b32 v6, v6, v7
    v_lshl_add_u32 v5, v6, 4, v5
    s_lshl_b32 s39, s33, 8
    v_add_u32 v{VW}, s39, v5
    s_lshl_b32 s40, {W}, 11
    s_and_b32 s41, s32, 1
    s_lshl_b32 s41, s41, 2
    s_add_u32 s41, s41, s33
    s_and_b32 s41, s41, {f5.ROTMASK}
    s_mul_i32 s42, s41, {64*F*2}
    s_lshl_b32 s41, s41, 7
    """)
    for st in range(2):
        for k in range(4): f5.g1_piece(a, k)
    stamp(a, 0)
    a(f"""
    s_and_b32 s36, {W}, 3                          ; tg
    s_lshr_b32 s37, {W}, 2                         ; fh
    v_and_b32 v5, 31, v1
    v_lshrrev_b32 v6, 5, v1                        ; h
    s_lshl_b32 s38, s33, 9
    v_lshl_add_u32 v2, v5, 4, s38
    v_mul_u32_u24 v3, {WS_BL - WS_CS}, v6
    v_add3_u32 v{VOPS}, v2, v3, 0
    v_add_u32 v{VOPS}, {WS_CS}, v{VOPS}
    s_lshl_b32 s38, s32, 11
    s_add_u32 s38, s38, {WS_STF}
    v_and_b32 v2, 15, v1
    v_lshl_add_u32 v2, v2, 7, s38
    s_lshl_b32 s38, s33, 8
    s_add_u32 s38, s38, {WS_CSF}
    v_and_b32 v3, 1, v1
    v_lshl_add_u32 v3, v3, 7, s38
    v_cmp_gt_u32 vcc, 16, v1
    s_lshr_b32 s38, s2, 5
    s_lshl_b32 s38, s38, 12
    v_cndmask_b32 v{VFO}, v3, v2, vcc
    s_add_u32 s38, s38, {WS_KVF}
    v_lshl_add_u32 v3, v5, 7, s38
    v_cmp_gt_u32 vcc, 32, v1
    v_lshrrev_b32 v4, 1, v5
    v_and_b32 v4, 7, v4
    v_cndmask_b32 v{VFO}, v3, v{VFO}, vcc
    v_xor_b32 v2, v4, v6
    s_lshl_b32 s38, s36, 12
    v_lshl_add_u32 v3, v5, 7, s38
    """)
    for s in range(4):
        a(f"v_xor_b32 v4, {2*s}, v2")
        a(f"v_lshl_add_u32 v{VXA+s}, v4, 4, v3")
    a(f"""
    v_bfe_u32 v2, v1, 2, 2
    v_bfe_u32 v3, v1, 4, 1
    v_and_b32 v4, 3, v1
    v_lshrrev_b32 v7, 1, v4
    v_lshl_add_u32 v7, v3, 1, v7
    v_and_b32 v4, 1, v4
    v_lshlrev_b32 v4, 3, v4
    v_lshl_add_u32 v3, v6, 3, v2
    v_lshl_add_u32 v4, v3, 8, v4
    v_add_u32 v4, 16384, v4
    s_lshl_b32 s38, s37, 1
    """)
    for n in range(2):
        a(f"s_add_u32 s39, s38, {n}")
        a(f"v_xor_b32 v3, s39, v2")
        a(f"v_lshl_add_u32 v3, v3, 2, v7")
        a(f"v_lshl_add_u32 v{VWA+n}, v3, 4, v4")
    for r in range(4): a(f"v_add_u32 v{VXH+r}, 65536, v{VXA+r}")
    for r in range(2): a(f"v_add_u32 v{VWH+r}, 65536, v{VWA+r}")
    a(f"""
    v_mov_b32 v2, {AF}
    v_mov_b32 v3, 0
    ds_write_b32 v2, v3
    v_lshrrev_b32 v122, 3, v1
    s_lshl_b32 s38, {W}, 3
    v_add_u32 v122, s38, v122
    v_lshrrev_b32 v152, 1, v122
    v_and_b32 v152, 7, v152
    v_and_b32 v155, 7, v1
    v_xor_b32 v152, v152, v155
    v_lshlrev_b32 v152, 4, v152
    v_lshl_add_u32 v152, v122, 7, v152
    v_add_u32 v152, {TR}, v152
    s_and_b32 s38, s2, 7
    s_lshl_b32 s38, s38, 6
    v_add_u32 v122, s38, v122
    v_lshlrev_b32 v122, 12, v122
    v_lshl_add_u32 v122, v155, 4, v122
    """)
    m2.conv_words(a)
    a(f"""
    s_mov_b32 s63, 0
    s_waitcnt vmcnt(8) lgkmcnt(0)
    s_barrier
    """)
    if not LSTAMP: stamp(a, 6)
    for k in range(4): f5.g1_piece(a, k)
    lst, lnone = a.label("g1_stats"), a.label("g1_pro")
    a(f"""
    s_cmp_ge_u32 {W}, 4
    s_cbranch_scc1 {lst}
    """)
    kv8(a)
    a(f"s_branch {lnone}")
    a.lines.append(f"{lst}:")
    a(f"""
    s_cmp_lg_u32 {W}, 4
    s_cbranch_scc1 {lnone}
    """)
    stats8(a)
    a.lines.append(f"{lnone}:")
    for r in range(32):
        a(f"v_mov_b32 v{ACC+r}, 0")
    a("""
    s_waitcnt vmcnt(8) lgkmcnt(0)
    s_barrier
    """)
    stamp(a, 1)
    tail = []
    def reads_of(stage, step):
        slot = stage % 4
        hi, off = slot >> 1, 32768 * (slot & 1)
        dst = FS[step]
        r = [f"ds_read_b128 v[{dst}:{dst+3}], v{(VXH if hi else VXA)+step} offset:{off}"]
        for n in range(2):
            for j in range(2):
                q = dst + 4 + 4*n + 2*j
                r.append(f"ds_read_b64_tr_b16 v[{q}:{q+1}], v{(VWH if hi else VWA)+n} offset:{off + 4096*step + 1024*j}")
        return r
    def step(stage, k):
        nst = stage + (k >= 2)
        r = reads_of(nst, (k + 2) % 4) if nst < 8 else []
        a("s_waitcnt lgkmcnt(0)" if (stage == 7 and k == 3) else "s_waitcnt lgkmcnt(5)")
        f5.g1_mfma(a, k, 0)
        for x in r[:3]: a(x)
        if stage + 3 < 8: f5.g1_piece(a, k, True)
        f5.g1_mfma(a, k, 1)
        for x in r[3:]: a(x)
    def out_of_line(name, cond, body):
        lo, lb = a.label(name + "_out"), a.label(name + "_back")
        a(cond)
        a(f"s_cbranch_scc1 {lo}")
        a.lines.append(f"{lb}:")
        b = Asm(); b.nlabel = a.nlabel + 1000 * (len(tail) + 1)
        b.lines.append(f"{lo}:")
        body(b)
        b(f"s_branch {lb}")
        tail.append(b)
    W0 = f"s_cmp_eq_u32 {W}, 0"
    def request(b):
        lop, lu, le = b.label("rq_op"), b.label("rq_u"), b.label("rq_e")
        b(f"""
        v_cmp_ne_u32 vcc, s{S_N}, v{VFL}
        s_bitcmp1_b32 s63, 0
        s_cbranch_scc1 {lop}
        s_cmp_lg_u32 vcc_lo, 0
        s_cbranch_scc1 {lop}
        s_or_b32 s63, s63, 1
        """)
        f5.g1_operand_dma(b)
        b.lines.append(f"{lop}:")
        b(f"""
        s_bitcmp1_b32 s63, 1
        s_cbranch_scc1 {lu}
        s_cmp_lg_u32 vcc_hi, 0
        s_cbranch_scc1 {lu}
        s_or_b32 s63, s63, 2
        """)
        m2.u_images(b)
        b.lines.append(f"{lu}:")
        b(f"""
        s_cmp_eq_u32 s63, 3
        s_cbranch_scc1 {le}
        """)
        f5.g1_poll(b)
        b.lines.append(f"{le}:")
    a("ds_read_b128 v[64:67], v152")
    for x in reads_of(0, 0) + reads_of(0, 1): a(x)
    VM = [7, 7, 6, 6, 6, 6, 2]
    for st in range(8):
        if st == 5:
            m2.k_images(a)
            out_of_line("g1_pads", f"s_cmp_lt_u32 {W}, 4", m2.conv_pads)
        step(st, 0); step(st, 1)
        if st == 0:
            a(f"""
            s_lshr_b32 s52, s2, 3
            s_lshl_b32 s52, s52, 7
            s_sub_u32 s52, {WS_KVT + 2*1984}, s52
            buffer_store_dwordx4 v[64:67], v122, s[{SRD_WS}:{SRD_WS+3}], s52 offen sc1
            """)
        if st < 7:
            a(f"s_waitcnt vmcnt({VM[st]})")
            a("s_barrier")
            if LSTAMP: stamp(a, 2 + st)
        if st == 6:
            out_of_line("g1_req1", W0, request)
        step(st, 2); step(st, 3)
        if st == 0:
            out_of_line("g1_nld", W0, f5.nonce_load)
        if st == 2:
            def post(b):
                f5.nonce_get(b)
                m4.post_stats_flag(b)
                f5.post_kv_flag(b)
            out_of_line("g1_post", W0, post)
        if st == 4:
            out_of_line("g1_poll1", W0, f5.g1_poll)
    stamp(a, 9 if LSTAMP else 2)
    def fin(b):
        lsp, le = b.label("fin_spin"), b.label("fin_e")
        b("s_mov_b32 s54, 0")
        b.lines.append(f"{lsp}:")
        b(f"""
        s_cmp_eq_u32 s63, 3
        s_cbranch_scc1 {le}
        s_cmp_ge_u32 s54, 0x40000
        s_cbranch_scc1 {le}
        s_add_u32 s54, s54, 1
        s_waitcnt vmcnt(0)
        """)
        request(b)
        b(f"s_branch {lsp}")
        b.lines.append(f"{le}:")
    out_of_line("g1_fin", W0, fin)
    R = VK + 6
    a(f"""
    v_mov_b32 v{VK}, 1.0
    v_mov_b32 v{VK+1}, 1.0
    v_mov_b32 v{VK+2}, {hex(LN2)}
    v_mov_b32 v{VK+3}, {hex(LN2)}
    v_mov_b32 v{VK+4}, {hex(NEG2LN2)}
    v_mov_b32 v{VK+5}, {hex(NEG2LN2)}
    s_lshl_b32 s38, s32, 2
    s_add_u32 s38, s38, s36
    s_mul_i32 s38, s38, 112
    s_lshl_b32 s39, s33, 3
    s_add_u32 s38, s38, s39
    s_lshl_b32 s39, s37, 2
    s_add_u32 s38, s38, s39
    s_lshl_b32 s38, s38, 10
    s_add_u32 s38, s38, {WS_ACT}
    v_and_b32 v5, 31, v1
    s_lshl_b32 s39, s36, 8
    v_lshl_add_u32 v3, v5, 3, s39
    v_add_u32 v3, {OPS}, v3
    v_lshrrev_b32 v4, 5, v1
    s_lshl_b32 s39, s37, 8
    v_lshl_add_u32 v4, v4, 4, s39
    v_add_u32 v4, {OPS + 1024}, v4
    v_lshlrev_b32 v182, 4, v1
    """)
    w2_prep(a)
    a(f"""
    s_waitcnt vmcnt(0) lgkmcnt(0)
    s_barrier
    ds_read_b64 v[{VST}:{VST+1}], v3
    """)
    for g in range(7):
        a(f"ds_read_b128 v[{VC+4*g}:{VC+4*g+3}], v4 offset:{32*g}")
        a(f"ds_read_b128 v[{VB+4*g}:{VB+4*g+3}], v4 offset:{512+32*g}")
    a("s_waitcnt lgkmcnt(14)")
    a(f"v_mul_f32 v{R}, {hex(LOG2E)}, v{VST+1}")
    a(f"ds_read_b128 v[{VC+28}:{VC+31}], v4 offset:{32*7}")
    a(f"ds_read_b128 v[{VB+28}:{VB+31}], v4 offset:{512+32*7}")
    if not LSTAMP: stamp(a, 3)
    def pr(r): return f"v[{r}:{r+1}]"
    T, OUT = 40, 152
    for fr in range(4):
        prs = [(ACC + 8*fr + 2*p, VC + 8*fr + 2*p, VB + 8*fr + 2*p) for p in range(4)]
        Z = [T + 2*p for p in range(4)]
        E = [T + 8 + 2*p for p in range(4)]
        if fr < 3: w2_part(a, fr)
        a(f"s_waitcnt lgkmcnt({12 - 4*fr})")
        for p, (ac, c, b) in enumerate(prs):
            a(f"v_pk_fma_f32 {pr(Z[p])}, {pr(VST)}, {pr(c)}, {pr(ac)} op_sel_hi:[0,1,1] neg_lo:[1,0,0] neg_hi:[1,0,0]")
        for p, (ac, c, b) in enumerate(prs):
            a(f"v_pk_fma_f32 {pr(Z[p])}, {pr(R)}, {pr(Z[p])}, {pr(b)} op_sel_hi:[0,1,1]")
        for p in range(4):
            a(f"v_exp_f32 v{E[p]}, v{Z[p]}")
            a(f"v_exp_f32 v{E[p]+1}, v{Z[p]+1}")
        for p in range(4):
            a(f"v_pk_add_f32 {pr(E[p])}, {pr(E[p])}, {pr(VK)}")
        for p in range(4):
            a(f"v_pk_fma_f32 {pr(E[p])}, {pr(E[p])}, {pr(E[p])}, {pr(VK)}")
        for p in range(4):
            a(f"v_rcp_f32 v{E[p]}, v{E[p]}")
            a(f"v_rcp_f32 v{E[p]+1}, v{E[p]+1}")
        for p in range(4):
            a(f"v_pk_fma_f32 {pr(E[p])}, {pr(E[p])}, {pr(VK+4)}, {pr(VK+2)}")
        for p in range(4):
            a(f"v_pk_mul_f32 {pr(Z[p])}, {pr(Z[p])}, {pr(E[p])}")
        o = OUT + 4*fr
        for p in range(4):
            a(f"v_cvt_pk_bf16_f32 v{o+p}, v{Z[p]}, v{Z[p]+1}")
        a(f"buffer_store_dwordx4 v[{o}:{o+3}], v182, s[{SRD_WS}:{SRD_WS+3}], s38 offen offset:{1024*fr} sc1")
    if not LSTAMP: stamp(a, 4)
    a(f"""
    s_lshl_b32 s{b3.S_ACTF}, s32, 11
    s_lshl_b32 s52, s33, 7
    s_add_u32 s{b3.S_ACTF}, s{b3.S_ACTF}, s52
    s_add_u32 s{b3.S_ACTF}, s{b3.S_ACTF}, {WS_ACTF}
    """)
    lend = a.label("g1_end")
    a(f"s_branch {lend}")
    for b in tail: a.lines += b.lines
    a.lines.append(f"{lend}:")

def prep_role(a, j):
    m4.prep_role(a, j)
    w2_prep(a)
    for st in range(3): w2_part(a, st)

def kernel(name=NAME):
    f5.MERGED = True
    b3.NW = NW
    b3.AF = AF
    b3.W2_PRE = True
    a = Asm()
    kernel_begin(a, name)
    a("""
    s_cmp_ge_u32 s2, 256
    s_cbranch_scc1 L_all_end
    """)
    stamp_begin(a)
    setup(a)
    lg, lb = a.label("fr_gemm"), a.label("fr_back")
    a(f"""
    s_cmp_ge_u32 s2, 32
    s_cbranch_scc1 {lg}
    s_mov_b32 s3, s2
    v_mov_b32 v2, {AF}
    v_mov_b32 v3, 0
    ds_write_b32 v2, v3
    """)
    prep_role(a, "s3")
    a(f"s_branch {lb}")
    a.lines.append(f"{lg}:")
    a("s_sub_u32 s3, s2, 32")
    gemm_role(a, "s3")
    a.lines.append(f"{lb}:")
    b3.emit_back(a)
    stamp_end(a, 0)
    a.lines.append("L_all_end:")
    a("s_endpgm")
    return a.text(), kernel_desc(name, 200, nsgpr(64)), f5.FRONT_LDS
```

```python
from common import *
import common
import front5 as f5
import merged2 as m2
import merged4 as m4
import back3 as b3
from gemm1 import emit_wgmap_gemm1
from conv import OB, UB, CHSZ

NAME = m2.NAME
S_WAVE, S_N = 18, 62
SRD_X, SRD_W1, SRD_WS, SRD_DBG, SRD_W2 = 20, 24, 28, 56, 24
OPS, NW = f5.OPS, f5.NW
AF = NW + 4
KT, VT, TR = f5.KT, f5.VT, f5.TR
W = f"s{S_WAVE}"
MAPPING = 1
LSTAMP = False
ACC, FS, VC, VB = f5.ACC, f5.FS, f5.VC, f5.VB
VXA, VWA, VXH, VWH = f5.VXA, f5.VWA, f5.VXH, f5.VWH
VX0, VX1, VW, VST, VK = f5.VX0, f5.VX1, f5.VW, f5.VST, f5.VK
VOPS, VFL, VFO = f5.VOPS, f5.VFL, f5.VFO
VROW = 64

CODE_PREFETCH = True
PW = 5

def setup(a):
    if CODE_PREFETCH:
        l = a.label("cp_skip")
        a(f"""
        v_lshrrev_b32 v2, 6, v0
        s_getpc_b64 s[60:61]
        L_code_base:
        v_cmp_eq_u32 vcc, 7, v2
        s_lshr_b32 s52, s2, 3
        s_mul_i32 s52, s52, CODE_NL
        v_and_b32 v1, 63, v0
        v_add_u32 v3, s52, v1
        v_lshlrev_b32 v3, 7, v3
        s_and_saveexec_b64 s[54:55], vcc
        s_cbranch_execz {l}
        v_cmp_gt_u32 vcc, CODE_NL, v1
        s_and_b64 exec, exec, vcc
        v_cmp_gt_u32 vcc, CODE_BYTES, v3
        s_and_b64 exec, exec, vcc
        s_cbranch_execz {l}
        global_load_dword v193, v3, s[60:61]
        """)
        a.lines.append(f"{l}:")
        a("s_mov_b64 exec, -1")
    a(f"""
    s_load_dwordx4 s[4:7], s[0:1], {KA['q']}       ; q, k
    s_load_dwordx4 s[8:11], s[0:1], {KA['v']}      ; v, shift
    s_load_dwordx4 s[12:15], s[0:1], {KA['w1']}    ; w1, b1
    s_load_dwordx4 s[48:51], s[0:1], {KA['dbg']}
    v_and_b32 v1, 63, v0
    v_lshrrev_b32 v2, 6, v0
    s_nop 0
    v_readfirstlane_b32 s{S_WAVE}, v2
    s_lshl_b32 s52, s2, 3
    v_lshrrev_b32 v3, 3, v1
    v_add_u32 v3, s52, v3
    v_lshlrev_b32 v3, 10, v3
    v_and_b32 v4, 7, v1
    v_lshl_add_u32 v190, v4, 4, v3
    s_waitcnt lgkmcnt(0)
    """)
    srd(a, SRD_X, 4, S*D*2)
    srd(a, SRD_W1, 12, D*F*2)

def row_loads(a):
    l = a.label("rows")
    a(f"""
    s_cmp_lg_u32 {W}, 4
    s_cbranch_scc1 {l}
    """)
    for it in range(8):
        a(f"buffer_load_dwordx4 v[{VROW+4*it}:{VROW+4*it+3}], v190, s[{SRD_X}:{SRD_X+3}], 0 offen offset:{128*it}")
    a.lines.append(f"{l}:")

def late_setup(a):
    srd(a, SRD_DBG, 48, 256)
    srd(a, SRD_WS, 50, WS_SIZE)
    a(f"""
    s_load_dwordx2 s[48:49], s[0:1], {KA['w2']}
    s_load_dwordx4 s[52:55], s[0:1], {KA['ssmk']}
    s_load_dwordx2 s[8:9], s[0:1], {KA['out']}
    """)

def stats8(a):
    A = 96
    a(f"v_mov_b32 v104, 0x3f803f80")
    a("s_nop 0")
    for q in range(4):
        a(f"v_dot2_f32_bf16 v{A+q}, v{VROW+q}, v104, 0")
        a(f"v_dot2_f32_bf16 v{A+4+q}, v{VROW+q}, v{VROW+q}, 0")
    for i in range(4, 32):
        a(f"v_dot2_f32_bf16 v{A+i%4}, v{VROW+i}, v104, v{A+i%4}")
        a(f"v_dot2_f32_bf16 v{A+4+i%4}, v{VROW+i}, v{VROW+i}, v{A+4+i%4}")
    a("s_nop 2")
    a(f"""
    v_add_f32 v{A}, v{A}, v{A+1}
    v_add_f32 v{A+2}, v{A+2}, v{A+3}
    v_add_f32 v{A+4}, v{A+4}, v{A+5}
    v_add_f32 v{A+6}, v{A+6}, v{A+7}
    v_add_f32 v{A}, v{A}, v{A+2}
    v_add_f32 v{A+4}, v{A+4}, v{A+6}
    """)
    for mod in ("quad_perm:[1,0,3,2]", "quad_perm:[2,3,0,1]", "row_half_mirror"):
        a("s_nop 1")
        a(f"v_add_f32_dpp v{A}, v{A}, v{A} {mod} row_mask:0xf bank_mask:0xf")
        a(f"v_add_f32_dpp v{A+4}, v{A+4}, v{A+4} {mod} row_mask:0xf bank_mask:0xf")
    a(f"""
    v_mul_f32 v{A+1}, 0x3b000000, v{A}
    v_mul_f32 v{A+4}, 0x3b000000, v{A+4}
    v_fma_f32 v{A+4}, -v{A+1}, v{A+1}, v{A+4}
    v_max_f32 v{A+4}, 0, v{A+4}
    """)
    bf16_round(a, A+4, A+4)
    a(f"v_add_f32 v{A+4}, 0x3727c5ac, v{A+4}")
    bf16_round(a, A+4, A+4)
    a(f"v_sqrt_f32 v{A+4}, v{A+4}")
    a("s_nop 0")
    bf16_round(a, A+4, A+4)
    a(f"v_rcp_f32 v{A+3}, v{A+4}")
    bf16_round(a, A+2, A+1)
    a(f"""
    v_lshrrev_b32 v3, 3, v1
    s_lshl_b32 s52, s2, 3
    v_add_lshl_u32 v3, v3, s52, 3
    v_and_b32 v4, 7, v1
    v_cmp_eq_u32 vcc, 0, v4
    s_and_saveexec_b64 s[60:61], vcc
    buffer_store_dwordx2 v[{A+2}:{A+3}], v3, s[{SRD_WS}:{SRD_WS+3}], 0 offen offset:{WS_STATS} sc1
    s_mov_b64 exec, s[60:61]
    """)

def kv8(a):
    RK, RV, K, V, SS, KV, O = 40, 51, 64, 86, 102, 8, 24
    def pr(r): return f"v[{r}:{r+1}]"
    a(f"""
    v_and_b32 v2, 31, v1
    v_lshrrev_b32 v3, 5, v1
    s_lshl_b32 s52, {W}, 1
    v_add_u32 v3, s52, v3                          ; g
    v_lshlrev_b32 v4, 10, v3
    v_lshl_add_u32 v4, v2, 2, v4
    v_add_u32 v5, {KT + 5*128}, v4
    v_add_u32 v6, {VT}, v4
    """)
    for i in range(11): a(f"ds_read_b32 v{RK+i}, v5 offset:{128*i}")
    a(f"""
    v_lshlrev_b32 v{SS+0}, 16, v124
    v_lshlrev_b32 v{SS+1}, 16, v126
    v_and_b32 v{SS+2}, 0xffff0000, v124
    v_and_b32 v{SS+3}, 0xffff0000, v126
    v_lshlrev_b32 v{SS+4}, 16, v125
    v_lshlrev_b32 v{SS+5}, 16, v127
    v_and_b32 v{SS+6}, 0xffff0000, v125
    v_and_b32 v{SS+7}, 0xffff0000, v127
    v_sub_u32 v3, 7, v3
    v_and_b32 v7, 7, v2
    v_xor_b32 v3, v3, v7
    v_lshlrev_b32 v3, 4, v3
    v_lshl_add_u32 v3, v2, 8, v3
    v_add_u32 v3, {TR}, v3
    s_waitcnt lgkmcnt(4)
    """)
    for i in range(8): a(f"ds_read_b32 v{RV+i}, v6 offset:{128*i}")
    for i in range(7):
        a(f"v_lshlrev_b32 v{K+2*i}, 16, v{RK+i}")
        a(f"v_and_b32 v{K+2*i+1}, 0xffff0000, v{RK+i}")
    a("s_waitcnt lgkmcnt(8)")
    for i in range(7, 11):
        a(f"v_lshlrev_b32 v{K+2*i}, 16, v{RK+i}")
        a(f"v_and_b32 v{K+2*i+1}, 0xffff0000, v{RK+i}")
    for tt in range(8):
        a(f"v_pk_mul_f32 {pr(KV+2*tt)}, {pr(K+2*tt)}, {pr(SS+6)}")
    for n, off in ((4, 1), (2, 2), (0, 3)):
        for tt in range(8):
            a(f"v_pk_fma_f32 {pr(KV+2*tt)}, {pr(K+2*(tt+off))}, {pr(SS+n)}, {pr(KV+2*tt)}")
    a("s_waitcnt lgkmcnt(0)")
    for i in range(8):
        a(f"v_lshlrev_b32 v{V+2*i}, 16, v{RV+i}")
        a(f"v_and_b32 v{V+2*i+1}, 0xffff0000, v{RV+i}")
    for tt in range(8):
        a(f"v_pk_mul_f32 {pr(KV+2*tt)}, {pr(KV+2*tt)}, {pr(V+2*tt)}")
    for ch in range(2):
        for q in range(4):
            a(f"v_cvt_pk_bf16_f32 v{O+4*ch+q}, v{KV+2*(7-2*q)+ch}, v{KV+2*(6-2*q)+ch}")
        a(f"ds_write_b128 v3, v[{O+4*ch}:{O+4*ch+3}] offset:{128*ch}")

def w2_part(a, st):
    if b3.ROT2:
        a(f"""
        s_add_u32 s54, s43, {st}
        s_cmp_ge_u32 s54, 14
        s_cselect_b32 s55, 14, 0
        s_sub_u32 s54, s54, s55
        s_lshl_b32 s54, s54, 17
        s_add_u32 s54, s54, s60
        s_add_u32 s55, s54, {8192 - 1024}
        s_add_u32 m0, s61, {32768*st}
        s_nop 0
        buffer_load_dwordx4 v183, s[{SRD_W2}:{SRD_W2+3}], s54 offen lds
        buffer_load_dwordx4 v183, s[{SRD_W2}:{SRD_W2+3}], s55 offen offset:1024 lds
        """)
        return
    a(f"""
    s_add_u32 m0, s61, {32768*st}
    s_add_u32 s54, s60, {131072*st}
    s_add_u32 s55, s60, {131072*st + 8192 - 1024}
    buffer_load_dwordx4 v183, s[{SRD_W2}:{SRD_W2+3}], s54 offen lds
    buffer_load_dwordx4 v183, s[{SRD_W2}:{SRD_W2+3}], s55 offen offset:1024 lds
    """)
def w2_prep(a):
    a(f"""
    s_mov_b32 s{SRD_W2}, s48
    s_mov_b32 s{SRD_W2+1}, s49
    s_mov_b32 s{SRD_W2+2}, {F*D*2}
    s_mov_b32 s{SRD_W2+3}, 0x00020000
    v_lshrrev_b32 v183, 3, v1
    v_lshlrev_b32 v183, 10, v183
    v_bfe_u32 v184, v1, 4, 1
    v_lshlrev_b32 v184, 2, v184
    v_xor_b32 v184, v184, v1
    v_and_b32 v184, 7, v184
    v_lshl_add_u32 v183, v184, 4, v183
    s_lshl_b32 s60, {W}, 14
    s_lshr_b32 s61, s2, 3
    s_and_b32 s61, s61, 7                          ; db
    s_lshl_b32 s61, s61, 7
    s_add_u32 s60, s60, s61
    s_lshl_b32 s61, {W}, 11
    s_add_u32 s61, s61, 16384
    """)
    if b3.ROT2:
        a(f"""
        s_and_b32 s52, s2, 7
        s_lshr_b32 s53, s2, 3
        s_lshr_b32 s{b3.S_TB}, s53, 3
        s_lshl_b32 s52, s52, 2
        s_add_u32 s{b3.S_TB}, s{b3.S_TB}, s52
        s_and_b32 s{b3.S_DB}, s53, 7
        """)
        b3.rot2(a, "s43", "s52")

def gemm_role(a, wid):
    row_loads(a)
    f5.emit_kv_loads(a)
    emit_wgmap_gemm1(a, wid, MAPPING)
    a(f"""
    v_lshrrev_b32 v2, 3, v1
    v_lshrrev_b32 v3, 4, v1
    v_and_b32 v4, 7, v1
    s_lshl_b32 s38, s32, 7
    s_lshl_b32 s39, {W}, 4
    s_add_u32 s38, s38, s39
    v_add_u32 v5, s38, v2
    v_lshlrev_b32 v5, 10, v5
    v_xor_b32 v6, v4, v3
    v_lshl_add_u32 v{VX0}, v6, 4, v5
    v_xor_b32 v6, 4, v6
    v_lshl_add_u32 v{VX1}, v6, 4, v5
    v_add_u32 v{VX1}, 8192, v{VX1}
    s_lshl_b32 s39, {W}, 3
    v_add_u32 v5, s39, v3
    v_mul_u32_u24 v5, {F*2}, v5
    v_and_b32 v6, 15, v1
    v_lshlrev_b32 v7, 2, v3
    v_xor_b32 v6, v6, v7
    v_lshl_add_u32 v5, v6, 4, v5
    s_lshl_b32 s39, s33, 8
    v_add_u32 v{VW}, s39, v5
    s_lshl_b32 s40, {W}, 11
    s_and_b32 s41, s32, 1
    s_lshl_b32 s41, s41, 2
    s_add_u32 s41, s41, s33
    s_and_b32 s41, s41, {f5.ROTMASK}
    s_mul_i32 s42, s41, {64*F*2}
    s_lshl_b32 s41, s41, 7
    """)
    for st in range(2):
        for k in range(4): f5.g1_piece(a, k)
    late_setup(a)
    stamp(a, 0)
    a(f"""
    s_and_b32 s36, {W}, 3                          ; tg
    s_lshr_b32 s37, {W}, 2                         ; fh
    v_and_b32 v5, 31, v1
    v_lshrrev_b32 v6, 5, v1                        ; h
    s_lshl_b32 s38, s33, 9
    v_lshl_add_u32 v2, v5, 4, s38
    v_mul_u32_u24 v3, {WS_BL - WS_CS}, v6
    v_add3_u32 v{VOPS}, v2, v3, 0
    v_add_u32 v{VOPS}, {WS_CS}, v{VOPS}
    s_lshl_b32 s38, s32, 11
    s_add_u32 s38, s38, {WS_STF}
    v_and_b32 v2, 15, v1
    v_lshl_add_u32 v2, v2, 7, s38
    s_lshl_b32 s38, s33, 8
    s_add_u32 s38, s38, {WS_CSF}
    v_and_b32 v3, 1, v1
    v_lshl_add_u32 v3, v3, 7, s38
    v_cmp_gt_u32 vcc, 16, v1
    s_lshr_b32 s38, s2, 5
    s_lshl_b32 s38, s38, 12
    v_cndmask_b32 v{VFO}, v3, v2, vcc
    s_add_u32 s38, s38, {WS_KVF}
    v_lshl_add_u32 v3, v5, 7, s38
    v_cmp_gt_u32 vcc, 32, v1
    v_lshrrev_b32 v4, 1, v5
    v_and_b32 v4, 7, v4
    v_cndmask_b32 v{VFO}, v3, v{VFO}, vcc
    v_xor_b32 v2, v4, v6
    s_lshl_b32 s38, s36, 12
    v_lshl_add_u32 v3, v5, 7, s38
    """)
    for s in range(4):
        a(f"v_xor_b32 v4, {2*s}, v2")
        a(f"v_lshl_add_u32 v{VXA+s}, v4, 4, v3")
    a(f"""
    v_bfe_u32 v2, v1, 2, 2
    v_bfe_u32 v3, v1, 4, 1
    v_and_b32 v4, 3, v1
    v_lshrrev_b32 v7, 1, v4
    v_lshl_add_u32 v7, v3, 1, v7
    v_and_b32 v4, 1, v4
    v_lshlrev_b32 v4, 3, v4
    v_lshl_add_u32 v3, v6, 3, v2
    v_lshl_add_u32 v4, v3, 8, v4
    v_add_u32 v4, 16384, v4
    s_lshl_b32 s38, s37, 1
    """)
    for n in range(2):
        a(f"s_add_u32 s39, s38, {n}")
        a(f"v_xor_b32 v3, s39, v2")
        a(f"v_lshl_add_u32 v3, v3, 2, v7")
        a(f"v_lshl_add_u32 v{VWA+n}, v3, 4, v4")
    for r in range(4): a(f"v_add_u32 v{VXH+r}, 65536, v{VXA+r}")
    for r in range(2): a(f"v_add_u32 v{VWH+r}, 65536, v{VWA+r}")
    a(f"""
    v_mov_b32 v2, {AF}
    v_mov_b32 v3, 0
    ds_write_b32 v2, v3
    v_lshrrev_b32 v122, 3, v1
    s_lshl_b32 s38, {W}, 3
    v_add_u32 v122, s38, v122
    v_lshrrev_b32 v152, 1, v122
    v_and_b32 v152, 7, v152
    v_and_b32 v155, 7, v1
    v_xor_b32 v152, v152, v155
    v_lshlrev_b32 v152, 4, v152
    v_lshl_add_u32 v152, v122, 7, v152
    v_add_u32 v152, {TR}, v152
    s_and_b32 s38, s2, 7
    s_lshl_b32 s38, s38, 6
    v_add_u32 v122, s38, v122
    v_lshlrev_b32 v122, 12, v122
    v_lshl_add_u32 v122, v155, 4, v122
    """)
    m2.conv_words(a)
    a(f"""
    s_mov_b32 s63, 0
    s_waitcnt vmcnt(8) lgkmcnt(0)
    s_barrier
    """)
    if not LSTAMP: stamp(a, 6)
    ln0 = a.label("g1_nld0")
    a(f"""
    s_cmp_lg_u32 {W}, 0
    s_cbranch_scc1 {ln0}
    """)
    f5.nonce_load(a)
    a.lines.append(f"{ln0}:")
    for k in range(4): f5.g1_piece(a, k)
    lst, lnone = a.label("g1_stats"), a.label("g1_pro")
    a(f"""
    s_cmp_ge_u32 {W}, 4
    s_cbranch_scc1 {lst}
    """)
    kv8(a)
    a(f"s_branch {lnone}")
    a.lines.append(f"{lst}:")
    a(f"""
    s_cmp_lg_u32 {W}, 4
    s_cbranch_scc1 {lnone}
    """)
    stats8(a)
    a.lines.append(f"{lnone}:")
    for r in range(32):
        a(f"v_mov_b32 v{ACC+r}, 0")
    a("""
    s_waitcnt vmcnt(8) lgkmcnt(0)
    s_barrier
    """)
    stamp(a, 1)
    tail = []
    def reads_of(stage, step):
        slot = stage % 4
        hi, off = slot >> 1, 32768 * (slot & 1)
        dst = FS[step]
        r = [f"ds_read_b128 v[{dst}:{dst+3}], v{(VXH if hi else VXA)+step} offset:{off}"]
        for n in range(2):
            for j in range(2):
                q = dst + 4 + 4*n + 2*j
                r.append(f"ds_read_b64_tr_b16 v[{q}:{q+1}], v{(VWH if hi else VWA)+n} offset:{off + 4096*step + 1024*j}")
        return r
    def step(stage, k):
        nst = stage + (k >= 2)
        r = reads_of(nst, (k + 2) % 4) if nst < 8 else []
        a("s_waitcnt lgkmcnt(0)" if (stage == 7 and k == 3) else "s_waitcnt lgkmcnt(5)")
        f5.g1_mfma(a, k, 0)
        for x in r[:3]: a(x)
        if stage + 3 < 8: f5.g1_piece(a, k, True)
        f5.g1_mfma(a, k, 1)
        for x in r[3:]: a(x)
    def out_of_line(name, cond, body):
        lo, lb = a.label(name + "_out"), a.label(name + "_back")
        a(cond)
        a(f"s_cbranch_scc1 {lo}")
        a.lines.append(f"{lb}:")
        b = Asm(); b.nlabel = a.nlabel + 1000 * (len(tail) + 1)
        b.lines.append(f"{lo}:")
        body(b)
        b(f"s_branch {lb}")
        tail.append(b)
    W0 = f"s_cmp_eq_u32 {W}, 0"
    def request(b):
        lop, lu, le = b.label("rq_op"), b.label("rq_u"), b.label("rq_e")
        b(f"""
        v_cmp_ne_u32 vcc, s{S_N}, v{VFL}
        s_bitcmp1_b32 s63, 0
        s_cbranch_scc1 {lop}
        s_cmp_lg_u32 vcc_lo, 0
        s_cbranch_scc1 {lop}
        s_or_b32 s63, s63, 1
        """)
        f5.g1_operand_dma(b)
        b.lines.append(f"{lop}:")
        b(f"""
        s_bitcmp1_b32 s63, 1
        s_cbranch_scc1 {lu}
        s_cmp_lg_u32 vcc_hi, 0
        s_cbranch_scc1 {lu}
        s_or_b32 s63, s63, 2
        """)
        m2.u_images(b)
        b.lines.append(f"{lu}:")
        b(f"""
        s_cmp_eq_u32 s63, 3
        s_cbranch_scc1 {le}
        """)
        f5.g1_poll(b)
        b.lines.append(f"{le}:")
    a("ds_read_b128 v[64:67], v152")
    for x in reads_of(0, 0) + reads_of(0, 1): a(x)
    VM = [7, 7, 6, 6, 6, 6, 2]
    for st in range(8):
        if st == 5:
            m2.k_images(a)
            out_of_line("g1_pads", f"s_cmp_lt_u32 {W}, 4", m2.conv_pads)
        step(st, 0); step(st, 1)
        if st == 0:
            a(f"""
            s_lshr_b32 s52, s2, 3
            s_lshl_b32 s52, s52, 7
            s_sub_u32 s52, {WS_KVT + 2*1984}, s52
            buffer_store_dwordx4 v[64:67], v122, s[{SRD_WS}:{SRD_WS+3}], s52 offen sc1
            """)
        if st < 7:
            a(f"s_waitcnt vmcnt({VM[st]})")
            a("s_barrier")
            if LSTAMP: stamp(a, 2 + st)
        if st == 6:
            out_of_line("g1_req1", W0, request)
        step(st, 2); step(st, 3)
        if st == 1:
            def post(b):
                f5.nonce_get(b)
                m4.post_stats_flag(b)
            out_of_line("g1_post", W0, post)
        if st == 2:
            out_of_line("g1_kvf", W0, f5.post_kv_flag)
        if st == 4:
            out_of_line("g1_poll1", W0, f5.g1_poll)
    stamp(a, 9 if LSTAMP else 2)
    def fin(b):
        lsp, le = b.label("fin_spin"), b.label("fin_e")
        b("s_mov_b32 s54, 0")
        b.lines.append(f"{lsp}:")
        b(f"""
        s_cmp_eq_u32 s63, 3
        s_cbranch_scc1 {le}
        s_cmp_ge_u32 s54, 0x40000
        s_cbranch_scc1 {le}
        s_add_u32 s54, s54, 1
        s_waitcnt vmcnt(0)
        """)
        request(b)
        b(f"s_branch {lsp}")
        b.lines.append(f"{le}:")
    out_of_line("g1_fin", W0, fin)
    R = VK + 6
    a(f"""
    v_mov_b32 v{VK}, 1.0
    v_mov_b32 v{VK+1}, 1.0
    v_mov_b32 v{VK+2}, {hex(LN2)}
    v_mov_b32 v{VK+3}, {hex(LN2)}
    v_mov_b32 v{VK+4}, {hex(NEG2LN2)}
    v_mov_b32 v{VK+5}, {hex(NEG2LN2)}
    s_lshl_b32 s38, s32, 2
    s_add_u32 s38, s38, s36
    s_mul_i32 s38, s38, 112
    s_lshl_b32 s39, s33, 3
    s_add_u32 s38, s38, s39
    s_lshl_b32 s39, s37, 2
    s_add_u32 s38, s38, s39
    s_lshl_b32 s38, s38, 10
    s_add_u32 s38, s38, {WS_ACT}
    v_and_b32 v5, 31, v1
    s_lshl_b32 s39, s36, 8
    v_lshl_add_u32 v3, v5, 3, s39
    v_add_u32 v3, {OPS}, v3
    v_lshrrev_b32 v4, 5, v1
    s_lshl_b32 s39, s37, 8
    v_lshl_add_u32 v4, v4, 4, s39
    v_add_u32 v4, {OPS + 1024}, v4
    v_lshlrev_b32 v182, 4, v1
    """)
    w2_prep(a)
    a(f"""
    s_waitcnt vmcnt(0) lgkmcnt(0)
    s_barrier
    ds_read_b64 v[{VST}:{VST+1}], v3
    """)
    for g in range(7):
        a(f"ds_read_b128 v[{VC+4*g}:{VC+4*g+3}], v4 offset:{32*g}")
        a(f"ds_read_b128 v[{VB+4*g}:{VB+4*g+3}], v4 offset:{512+32*g}")
    a("s_waitcnt lgkmcnt(14)")
    a(f"v_mul_f32 v{R}, {hex(LOG2E)}, v{VST+1}")
    a(f"ds_read_b128 v[{VC+28}:{VC+31}], v4 offset:{32*7}")
    a(f"ds_read_b128 v[{VB+28}:{VB+31}], v4 offset:{512+32*7}")
    if not LSTAMP: stamp(a, 3)
    def pr(r): return f"v[{r}:{r+1}]"
    T, OUT = 40, 152
    for fr in range(4):
        prs = [(ACC + 8*fr + 2*p, VC + 8*fr + 2*p, VB + 8*fr + 2*p) for p in range(4)]
        Z = [T + 2*p for p in range(4)]
        E = [T + 8 + 2*p for p in range(4)]
        if fr < 3: w2_part(a, fr)
        a(f"s_waitcnt lgkmcnt({12 - 4*fr})")
        for p, (ac, c, b) in enumerate(prs):
            a(f"v_pk_fma_f32 {pr(Z[p])}, {pr(VST)}, {pr(c)}, {pr(ac)} op_sel_hi:[0,1,1] neg_lo:[1,0,0] neg_hi:[1,0,0]")
        for p, (ac, c, b) in enumerate(prs):
            a(f"v_pk_fma_f32 {pr(Z[p])}, {pr(R)}, {pr(Z[p])}, {pr(b)} op_sel_hi:[0,1,1]")
        for p in range(4):
            a(f"v_exp_f32 v{E[p]}, v{Z[p]}")
            a(f"v_exp_f32 v{E[p]+1}, v{Z[p]+1}")
        for p in range(4):
            a(f"v_pk_add_f32 {pr(E[p])}, {pr(E[p])}, {pr(VK)}")
        for p in range(4):
            a(f"v_pk_fma_f32 {pr(E[p])}, {pr(E[p])}, {pr(E[p])}, {pr(VK)}")
        for p in range(4):
            a(f"v_rcp_f32 v{E[p]}, v{E[p]}")
            a(f"v_rcp_f32 v{E[p]+1}, v{E[p]+1}")
        for p in range(4):
            a(f"v_pk_fma_f32 {pr(E[p])}, {pr(E[p])}, {pr(VK+4)}, {pr(VK+2)}")
        for p in range(4):
            a(f"v_pk_mul_f32 {pr(Z[p])}, {pr(Z[p])}, {pr(E[p])}")
        o = OUT + 4*fr
        for p in range(4):
            a(f"v_cvt_pk_bf16_f32 v{o+p}, v{Z[p]}, v{Z[p]+1}")
        a(f"buffer_store_dwordx4 v[{o}:{o+3}], v182, s[{SRD_WS}:{SRD_WS+3}], s38 offen offset:{1024*fr} sc1")
    if not LSTAMP: stamp(a, 4)
    a(f"""
    s_lshl_b32 s{b3.S_ACTF}, s32, 11
    s_lshl_b32 s52, s33, 7
    s_add_u32 s{b3.S_ACTF}, s{b3.S_ACTF}, s52
    s_add_u32 s{b3.S_ACTF}, s{b3.S_ACTF}, {WS_ACTF}
    """)
    lend = a.label("g1_end")
    a(f"s_branch {lend}")
    for b in tail: a.lines += b.lines
    a.lines.append(f"{lend}:")

def prep_role(a, j):
    CRED, RING = f5.CRED, f5.RING
    a(f"""
    s_cmp_lt_u32 {j}, 28
    s_cselect_b32 s63, s{SRD_W1+2}, 0
    v_lshrrev_b32 v3, 3, v1
    v_and_b32 v4, 7, v1
    s_lshl_b32 s60, {W}, 6
    v_add_u32 v7, s60, v3
    v_mul_u32_u24 v7, {F*2}, v7
    v_bfe_u32 v2, v1, 4, 1
    v_lshlrev_b32 v2, 2, v2
    v_xor_b32 v2, v2, v4
    v_lshl_add_u32 v7, v2, 4, v7
    s_lshl_b32 s60, {j}, 7
    s_lshl_b32 s61, {W}, 13
    s_mov_b32 s36, s{SRD_W1}
    s_mov_b32 s37, s{SRD_W1+1}
    s_mov_b32 s38, s63
    s_mov_b32 s39, 0x00020000
    """)
    for it in range(8):
        a(f"s_add_u32 m0, s61, {RING + 1024*it}")
        a(f"s_add_u32 s32, s60, {8*F*2*it}")
        a(f"buffer_load_dwordx4 v7, s[36:39], s32 offen lds")
    row_loads(a)
    f5.emit_kv_loads(a)
    srd(a, 40, 14, F*2)
    a(f"""
    s_lshl_b32 s60, {j}, 6
    v_add_lshl_u32 v104, v1, s60, 1
    buffer_load_ushort v105, v104, s[40:43], 0 offen
    """)
    late_setup(a)
    m2.conv_words(a)
    f5.nonce_publish(a)
    a(f"""
    v_mov_b32 v60, 0x3f803f80
    v_bfe_u32 v2, v1, 2, 2
    v_bfe_u32 v3, v1, 4, 1
    v_lshrrev_b32 v5, 5, v1
    v_bfe_u32 v6, v1, 1, 1
    v_lshl_add_u32 v6, v3, 1, v6
    v_lshrrev_b32 v7, 1, v2
    v_lshl_add_u32 v2, v5, 2, v2
    v_lshlrev_b32 v2, 7, v2
    v_and_b32 v3, 1, v1
    v_lshl_add_u32 v2, v3, 3, v2
    s_lshl_b32 s53, {W}, 13
    v_add_u32 v2, s53, v2
    v_lshl_add_u32 v3, v7, 2, v6
    v_lshl_add_u32 v8, v3, 4, v2
    v_xor_b32 v3, 4, v3
    v_lshl_add_u32 v9, v3, 4, v2
    v_mov_b32 v61, v60
    v_mov_b32 v62, v60
    v_mov_b32 v63, v60
    s_waitcnt vmcnt(4)
    """)
    stamp(a, 0)
    FR = 10
    for s_ in range(4):
        for di in range(2):
            r = FR + 8*s_ + 4*di
            a(f"ds_read_b64_tr_b16 v[{r}:{r+1}], v{8+di} offset:{RING + 2048*s_}")
            a(f"ds_read_b64_tr_b16 v[{r+2}:{r+3}], v{8+di} offset:{RING + 2048*s_+1024}")
        if s_ == 1: a("s_waitcnt lgkmcnt(4)")
    C0 = 164
    a("s_waitcnt lgkmcnt(0)")
    for s_ in range(4):
        for di in range(2):
            r = FR + 8*s_ + 4*di
            src = "0" if s_ == 0 else f"v[{C0+16*di}:{C0+16*di+15}]"
            a(f"v_mfma_f32_32x32x16_bf16 v[{C0+16*di}:{C0+16*di+15}], v[{r}:{r+3}], v[60:63], {src}")
    a(f"""
    s_lshl_b32 s53, {W}, 8
    s_add_u32 s53, s53, {CRED}
    v_lshl_add_u32 v3, v5, 4, s53
    s_mov_b32 s60, 1
    s_mov_b32 s61, 1
    s_nop 7
    s_nop 3
    s_mov_b64 exec, s[60:61]
    """)
    for di in range(2):
        for a4 in range(4):
            r = C0 + 16*di + 4*a4
            a(f"ds_write_b128 v3, v[{r}:{r+3}] offset:{128*di + 32*a4}")
    a(f"""
    s_mov_b64 exec, -1
    s_waitcnt vmcnt(1) lgkmcnt(0)
    s_barrier                                      ; P1
    """)
    stamp(a, 1)
    lkv, lst, lcs, lp2 = [a.label(x) for x in ("pp_kv", "pp_st", "pp_cs", "pp_p2")]
    a(f"""
    s_cmp_lt_u32 {W}, 4
    s_cbranch_scc1 {lkv}
    s_cmp_eq_u32 {W}, 4
    s_cbranch_scc1 {lst}
    s_cmp_lg_u32 {W}, {PW}
    s_cbranch_scc1 {lp2}
    s_waitcnt vmcnt(0)
    """)
    f5.nonce_load(a)
    a(f"v_lshlrev_b32 v2, 2, v1")
    a(f"v_add_u32 v2, {CRED}, v2")
    for ww in range(8):
        a(f"ds_read_b32 v{8+ww}, v2 offset:{256*ww}")
    a(f"""
    v_lshlrev_b32 v16, 16, v105
    v_mul_f32 v16, {hex(LOG2E)}, v16
    v_lshlrev_b32 v5, 1, v104
    s_mov_b32 s36, s{SRD_WS}
    s_mov_b32 s37, s{SRD_WS+1}
    s_cmp_lt_u32 {j}, 28
    s_cselect_b32 s38, s{SRD_WS+2}, 0
    s_mov_b32 s39, 0x00020000
    s_mov_b32 s53, {WS_BL}
    buffer_store_dword v16, v5, s[36:39], s53 offen sc1
    s_waitcnt lgkmcnt(0)
    v_add_f32 v8, v8, v9
    v_add_f32 v10, v10, v11
    v_add_f32 v12, v12, v13
    v_add_f32 v14, v14, v15
    v_add_f32 v8, v8, v10
    v_add_f32 v12, v12, v14
    v_add_f32 v8, v8, v12
    s_mov_b32 s53, {WS_CS}
    buffer_store_dword v8, v5, s[36:39], s53 offen sc1
    s_waitcnt vmcnt(2)
    """)
    f5.nonce_get(a)
    a("s_waitcnt vmcnt(0)")
    m4.post_colsum_flag(a, j)
    a(f"s_branch {lp2}")
    a.lines.append(f"{lkv}:")
    kv8(a)
    a(f"s_branch {lp2}")
    a.lines.append(f"{lst}:")
    stats8(a)
    a.lines.append(f"{lp2}:")
    a(f"""
    v_lshrrev_b32 v122, 3, v1
    s_lshl_b32 s38, {W}, 3
    v_add_u32 v122, s38, v122
    v_lshrrev_b32 v152, 1, v122
    v_and_b32 v152, 7, v152
    v_and_b32 v155, 7, v1
    v_xor_b32 v152, v152, v155
    v_lshlrev_b32 v152, 4, v152
    v_lshl_add_u32 v152, v122, 7, v152
    v_add_u32 v152, {TR}, v152
    s_and_b32 s38, s2, 7
    s_lshl_b32 s38, s38, 6
    v_add_u32 v122, s38, v122
    v_lshlrev_b32 v122, 12, v122
    v_lshl_add_u32 v122, v155, 4, v122
    s_waitcnt lgkmcnt(0)
    s_barrier
    ds_read_b128 v[64:67], v152
    v_mov_b32 v2, {NW}
    ds_read_b32 v2, v2
    s_lshr_b32 s52, s2, 3
    s_lshl_b32 s52, s52, 7
    s_sub_u32 s52, {WS_KVT + 2*1984}, s52
    s_waitcnt lgkmcnt(0)
    buffer_store_dwordx4 v[64:67], v122, s[{SRD_WS}:{SRD_WS+3}], s52 offen sc1
    v_readfirstlane_b32 s{S_N}, v2
    s_waitcnt vmcnt(0)
    s_barrier
    """)
    stamp(a, 2)
    l = a.label("pp_noflags")
    a(f"""
    s_cmp_lg_u32 {W}, {PW}
    s_cbranch_scc1 {l}
    """)
    m4.post_stats_flag(a)
    f5.post_kv_flag(a)
    a.lines.append(f"{l}:")
    stamp(a, 3)
    m2.k_images(a)
    l = a.label("pp_nopad")
    a(f"""
    s_cmp_ge_u32 {W}, 4
    s_cbranch_scc1 {l}
    """)
    m2.conv_pads(a)
    a.lines.append(f"{l}:")
    f5.emit_warm_touch(a)
    l = a.label("pp_nou")
    a(f"""
    s_cmp_lg_u32 {W}, 0
    s_cbranch_scc1 {l}
    """)
    m2.kv_flag_offsets(a, 2, 3)
    b3.spin_flags(a, "pp_kvf", 2, 3, 32)
    m2.u_images(a)
    a.lines.append(f"{l}:")
    a("""
    s_waitcnt vmcnt(0) lgkmcnt(0)
    s_barrier
    """)
    a(f"s_mov_b32 s{b3.S_ACTF}, -1")
    w2_prep(a)
    for st in range(3): w2_part(a, st)

def kernel(name=NAME):
    f5.MERGED = True
    b3.NW = NW
    b3.AF = AF
    b3.W2_PRE = True
    a = Asm()
    kernel_begin(a, name)
    a("""
    s_cmp_ge_u32 s2, 256
    s_cbranch_scc1 L_all_end
    """)
    stamp_begin(a)
    setup(a)
    lg, lb = a.label("fr_gemm"), a.label("fr_back")
    a(f"""
    s_cmp_ge_u32 s2, 32
    s_cbranch_scc1 {lg}
    s_mov_b32 s3, s2
    v_mov_b32 v2, {AF}
    v_mov_b32 v3, 0
    ds_write_b32 v2, v3
    """)
    prep_role(a, "s3")
    a(f"s_branch {lb}")
    a.lines.append(f"{lg}:")
    a("s_sub_u32 s3, s2, 32")
    gemm_role(a, "s3")
    a.lines.append(f"{lb}:")
    b3.emit_back(a)
    stamp_end(a, 0)
    a.lines.append("L_all_end:")
    a("s_endpgm")
    a.lines.append("L_code_end:")
    a.lines.insert(0, ".set CODE_BYTES, L_code_end - L_code_base")
    a.lines.insert(1, ".set CODE_NL, (CODE_BYTES + 32*128 - 1) / (32*128)")
    return a.text(), kernel_desc(name, 200, nsgpr(64)), f5.FRONT_LDS
```

```python
import sys
from common import *
import prep, gemm1, conv, gemm2
HDR = open("recurrent_scan__ssm_conv_h3__dense_activation_mish__prompt.s.ref").read().split("; Override launch geometry")[0]
def build_v1(mapping=0):
    ks = [("prep_kernel", prep.prep_kernel(), (32, 512, 67584)),
          ("gemm1_kernel", gemm1.gemm1_kernel(mapping), (224, 512, 131072)),
          ("conv_kernel", conv.conv_kernel(), (256, 256, 2*conv.CHSZ + 32768)),
          ("gemm2_kernel", gemm2.gemm2_kernel(), (256, 256, 131072))]
    s = HDR
    for n, _, (g, b, l) in ks:
        s += f"; @launch kernel={n} grid=({g},1,1) block=({b},1,1) lds={l}\n"
    s += '.amdgcn_target "amdgcn-amd-amdhsa--gfx950"\n.text\n'
    for n, (t, d), _ in ks: s += t
    s += '.section .rodata,"a"\n'
    for n, (t, d), _ in ks: s += d
    return s
def assemble_list(ks):
    s = HDR
    for n, _, (g, b, l) in ks:
        s += f"; @launch kernel={n} grid=({g},1,1) block=({b},1,1) lds={l}\n"
    s += '.amdgcn_target "amdgcn-amd-amdhsa--gfx950"\n.text\n'
    for n, (t, d), _ in ks: s += t
    s += '.section .rodata,"a"\n'
    for n, (t, d), _ in ks: s += d
    return s
def build_v2(mapping=0):
    import back
    return assemble_list([("prep_kernel", prep.prep_kernel(), (32, 512, 67584)),
          ("gemm1_kernel", gemm1.gemm1_kernel(mapping), (224, 512, 131072)),
          ("back_kernel", back.back_kernel(), (256, 512, 131072 + 2*conv.CHSZ))])
def build_v3(mapping=0):
    import back, front
    return assemble_list([("front_kernel", front.front_kernel(mapping), (256, 512, 131072 + 4096)),
          ("back_kernel", back.back_kernel(), (256, 512, 131072 + 2*conv.CHSZ))])
def build_v4(mapping=0):
    import back, front2
    return assemble_list([("front_kernel", front2.front2_kernel(mapping), (256, 512, front2.FRONT_LDS)),
          ("back_kernel", back.back_kernel(), (256, 512, 131072 + 2*conv.CHSZ))])
def build_v5(mapping=0, touch=True):
    import back, front3
    return assemble_list([("front_kernel", front3.front3_kernel(mapping, touch), (256, 512, front3.FRONT_LDS)),
          ("back_kernel", back.back_kernel(), (256, 512, 131072 + 2*conv.CHSZ))])
def build_v5nt(): return build_v5(0, False)
def _diag(**kw):
    import front3
    for k, v in kw.items(): setattr(front3, k, v)
    return build_v5(0, False)
def build_v5nodma(): return _diag(DIAG_NODMA=True)
def build_v5nomfma(): return _diag(DIAG_NOMFMA=True)
def build_v5nomfmads(): return _diag(DIAG_NOMFMA=True, DIAG_NODS=True)
def build_v5m1(): return build_v5(1, False)
def build_v5norot():
    import front3
    front3.ROTMASK = 0
    return build_v5(0, False)
def build_v6(mapping=0, touch=True, **kw):
    import back, front4
    for k, v in kw.items(): setattr(front4, k, v)
    return assemble_list([("front_kernel", front4.front3_kernel(mapping, touch), (256, 512, front4.FRONT_LDS)),
          ("back_kernel", back.back_kernel(), (256, 512, 131072 + 2*conv.CHSZ))])
def build_v6nt(): return build_v6(0, False)
def build_v6m1(): return build_v6(1, True)
def build_v6nodma(): return build_v6(0, True, DIAG_NODMA=True)
def build_v6norot(): return build_v6(0, True, ROTMASK=0)
def build_v7(mapping=0, touch=True, **kw):
    import back, front5
    for k, v in kw.items(): setattr(front5, k, v)
    return assemble_list([("front_kernel", front5.front3_kernel(mapping, touch), (256, 512, front5.FRONT_LDS)),
          ("back_kernel", back.back_kernel(), (256, 512, 131072 + 2*conv.CHSZ))])
def build_v7m1(): return build_v7(1, True)
def build_v7m1nt2():
    import back
    back.TOUCH2 = False
    return build_v7(1, True)
def build_v7nodma(): return build_v7(0, True, DIAG_NODMA=True)
def build_v7d2(): return build_v7(0, True, DIST=2)
def build_v7norot(): return build_v7(0, True, ROTMASK=0)
def build_s1(mapping=1):
    import merged
    t, d, lds = merged.merged_kernel(mapping)
    s = HDR + f"; @launch grid=(256,1,1) block=(512,1,1) lds={lds}\n"
    s += '.amdgcn_target "amdgcn-amd-amdhsa--gfx950"\n.text\n' + t + '.section .rodata,"a"\n' + d
    return s
def build_s1m0(): return build_s1(0)
def build_s2(mapping=1):
    import merged2
    merged2.MAPPING = mapping
    t, d, lds = merged2.kernel()
    s = HDR + f"; @launch grid=(256,1,1) block=(512,1,1) lds={lds}\n"
    s += '.amdgcn_target "amdgcn-amd-amdhsa--gfx950"\n.text\n' + t + '.section .rodata,"a"\n' + d
    return s
def build_s2m0(): return build_s2(0)
def build_s2p():
    import merged2, back3
    merged2.PSTAMP = True; back3.NOSTAMP = True
    return build_s2(1)
def build_s3(mapping=1):
    import merged3
    merged3.MAPPING = mapping
    t, d, lds = merged3.kernel()
    s = HDR + f"; @launch grid=(256,1,1) block=(512,1,1) lds={lds}\n"
    s += '.amdgcn_target "amdgcn-amd-amdhsa--gfx950"\n.text\n' + t + '.section .rodata,"a"\n' + d
    return s
def build_s3m0(): return build_s3(0)
def build_s4(mapping=1, rot=7):
    import merged4, front5
    merged4.MAPPING = mapping
    front5.ROTMASK = rot
    t, d, lds = merged4.kernel()
    s = HDR + f"; @launch grid=(256,1,1) block=(512,1,1) lds={lds}\n"
    s += '.amdgcn_target "amdgcn-amd-amdhsa--gfx950"\n.text\n' + t + '.section .rodata,"a"\n' + d
    return s
def build_s4m0(): return build_s4(0)
def build_s4l():
    import merged4, back3
    merged4.LSTAMP = True; back3.NOSTAMP = True
    return build_s4(1, 0)
def build_s4w4():
    import common
    common.STAMP_TID = 256
    return build_s4(1, 0)
def build_s4norot(): return build_s4(1, 0)
def build_s5(mapping=1, rot=0):
    import merged5, front5
    merged5.MAPPING = mapping
    front5.ROTMASK = rot
    t, d, lds = merged5.kernel()
    s = HDR + f"; @launch grid=(256,1,1) block=(512,1,1) lds={lds}\n"
    s += '.amdgcn_target "amdgcn-amd-amdhsa--gfx950"\n.text\n' + t + '.section .rodata,"a"\n' + d
    return s
def build_s5rot(): return build_s5(1, 7)
def build_s5m0(): return build_s5(0, 0)
def _s5v(**kw):
    import back3
    for k, v in kw.items(): setattr(back3, k, v)
    return build_s5(1, 0)
def build_s5a(): return _s5v(ACT_PLAIN=True)
def build_s5b(): return _s5v(ROT2=True, TOUCH2=False)
def build_s5c(): return _s5v(ACT_PLAIN=True, ROT2=True, TOUCH2=False)
def build_s5d(): return _s5v(ACT_PLAIN=True, ROT2=True, TOUCH2=True)
def build_s5e(): return _s5v(TOUCH2=False)
def build_s5l():
    import merged5, back3
    merged5.LSTAMP = True; back3.NOSTAMP = True
    return build_s5(1, 0)
def build_s5w4():
    import common
    common.STAMP_TID = 256
    return build_s5(1, 0)
def build_s6(mapping=1, rot=0, **kw):
    import merged6, front5, back3
    merged6.MAPPING = mapping
    front5.ROTMASK = rot
    back3.ROT2 = True; back3.TOUCH2 = False; back3.OUT_PRELOADED = True
    for k, v in kw.items(): setattr(merged6, k, v)
    t, d, lds = merged6.kernel()
    s = HDR + f"; @launch grid=(256,1,1) block=(512,1,1) lds={lds}\n"
    s += '.amdgcn_target "amdgcn-amd-amdhsa--gfx950"\n.text\n' + t + '.section .rodata,"a"\n' + d
    return s
def build_s6ncp(): return build_s6(CODE_PREFETCH=False)
def build_s6rot(): return build_s6(1, 7)
def build_s6m0(): return build_s6(0, 0)
if __name__ == "__main__":
    out = sys.argv[1]
    import common
    common.INSTR = len(sys.argv) > 2 and sys.argv[2] in ("instr", "dbg")
    common.DBGMODE = len(sys.argv) > 2 and sys.argv[2] == "dbg"
    ver = sys.argv[3] if len(sys.argv) > 3 else "v1"
    open(out, "w").write(globals()["build_" + ver]())
```

```python
from common import *
import common
from conv import OB, UB, CHSZ

CV_BASE = 131072
EX_BASE = 98304
NST = 14
AF = None
NW = None
TOUCH2 = True
W2_PRE = False
OUT_PRELOADED = False
YCOUNT = False
YC = None
STAGE_GATE = False
XC = None
G2_EARLY = False
ACT_PLAIN = False
ROT2 = False
SPIN_SLEEP = 4
NOSTAMP = False

S_WAVE, S_DB, S_TB, S_ACTF, S_N = 18, 34, 35, 19, 62
SRD_X, SRD_W2, SRD_WS, SRD_OUT, SRD_K = 20, 24, 28, 40, 44

def emit_prefetch(a):
    w = f"s{S_WAVE}"
    a(f"""
    s_and_b32 s52, s2, 7
    s_lshr_b32 s53, s2, 3
    s_lshr_b32 s{S_TB}, s53, 3
    s_lshl_b32 s52, s52, 2
    s_add_u32 s{S_TB}, s{S_TB}, s52
    s_and_b32 s{S_DB}, s53, 7
    s_mov_b32 s{SRD_K}, s50
    s_mov_b32 s{SRD_K+1}, s51
    s_mov_b32 s{SRD_K+2}, {D*S*2}
    s_mov_b32 s{SRD_K+3}, 0x00020000
    s_mov_b32 s{SRD_W2}, s48
    s_mov_b32 s{SRD_W2+1}, s49
    s_mov_b32 s{SRD_W2+2}, {F*D*2}
    s_mov_b32 s{SRD_W2+3}, 0x00020000
    s_lshr_b32 s52, {w}, 2                         ; ch
    s_bfe_u32 s53, {w}, 0x10001                    ; copy
    s_and_b32 s54, {w}, 1
    s_lshl_b32 s54, s54, 11                        ; 2048*half
    s_lshl_b32 s55, s53, 1
    v_lshl_add_u32 v183, v1, 4, s55                ; 16 l + 2 copy
    s_mul_i32 s53, s53, {OB}
    s_mul_i32 s55, s52, {CHSZ}
    s_add_u32 s53, s53, s55
    s_add_u32 s53, s53, s54
    s_add_u32 m0, s53, {CV_BASE + 32}
    s_lshl_b32 s53, s2, 1
    s_add_u32 s53, s53, s52
    s_lshl_b32 s53, s53, 12
    s_add_u32 s53, s53, s54
    buffer_load_dwordx4 v183, s[{SRD_K}:{SRD_K+3}], s53 offen lds
    buffer_load_dwordx4 v183, s[{SRD_K}:{SRD_K+3}], s53 offen offset:1024 lds
    v_lshrrev_b32 v183, 3, v1
    v_lshlrev_b32 v183, 10, v183
    v_bfe_u32 v184, v1, 4, 1
    v_lshlrev_b32 v184, 2, v184
    v_xor_b32 v184, v184, v1
    v_and_b32 v184, 7, v184
    v_lshl_add_u32 v183, v184, 4, v183
    s_lshl_b32 s52, {w}, 14
    s_lshl_b32 s53, s{S_DB}, 7
    s_add_u32 s52, s52, s53
    s_lshl_b32 s53, {w}, 11
    s_add_u32 s53, s53, 16384
    """)
    for st in range(3):
        a(f"""
        s_add_u32 m0, s53, {32768*st}
        s_add_u32 s54, s52, {131072*st}
        s_add_u32 s55, s52, {131072*st + 8192 - 1024}
        buffer_load_dwordx4 v183, s[{SRD_W2}:{SRD_W2+3}], s54 offen lds
        buffer_load_dwordx4 v183, s[{SRD_W2}:{SRD_W2+3}], s55 offen offset:1024 lds
        """)

def spin_flags(a, name, voff, vdst, nlanes, on_ready_first=None):
    lsp, ldn = a.label(name + "_spin"), a.label(name + "_done")
    a(f"s_mov_b32 s63, 0")
    a.lines.append(f"{lsp}:")
    a(f"""
    buffer_load_dword v{vdst}, v{voff}, s[{SRD_WS}:{SRD_WS+3}], 0 offen sc1
    s_add_u32 s63, s63, 1
    s_waitcnt vmcnt(0)
    v_cmp_ne_u32 vcc, s{S_N}, v{vdst}
    s_nop 1
    s_cmp_eq_u64 vcc, 0
    s_cbranch_scc1 {ldn}
    s_cmp_ge_u32 s63, 0x40000
    s_cbranch_scc1 {ldn}
    s_sleep {SPIN_SLEEP}
    s_branch {lsp}
    """)
    a.lines.append(f"{ldn}:")

def emit_entry(a):
    a(f"""
    {"" if OUT_PRELOADED else "s_load_dwordx2 s[8:9], s[0:1], " + str(KA['out'])}
    v_mov_b32 v2, {NW}
    ds_read_b32 v2, v2
    s_and_b32 s52, s2, 7
    s_lshr_b32 s53, s2, 3
    s_lshr_b32 s{S_TB}, s53, 3
    s_lshl_b32 s52, s52, 2
    s_add_u32 s{S_TB}, s{S_TB}, s52
    s_and_b32 s{S_DB}, s53, 7
    s_mov_b32 s{SRD_W2}, s48
    s_mov_b32 s{SRD_W2+1}, s49
    s_mov_b32 s{SRD_W2+2}, {F*D*2}
    s_mov_b32 s{SRD_W2+3}, 0x00020000
    s_waitcnt lgkmcnt(0)
    v_readfirstlane_b32 s{S_N}, v2
    """)
    srd(a, SRD_OUT, 8, S*D*2)

VSA, VSW = 60, 61
def rot2(a, dst, tmp):
    a(f"""
    s_lshl_b32 {dst}, s{S_DB}, 1
    s_and_b32 {tmp}, s{S_TB}, 3
    s_mul_i32 {tmp}, {tmp}, 3
    s_add_u32 {dst}, {dst}, {tmp}
    s_cmp_ge_u32 {dst}, 14
    s_cselect_b32 {tmp}, 14, 0
    s_sub_u32 {dst}, {dst}, {tmp}
    """)

def act_pieces(a):
    m = "" if ACT_PLAIN else " sc1"
    a(f"""
    s_add_u32 m0, s54, s57
    s_nop 0
    buffer_load_dwordx4 v{VSA}, s[{SRD_WS}:{SRD_WS+3}], s55 offen{m} lds
    buffer_load_dwordx4 v{VSA}, s[{SRD_WS}:{SRD_WS+3}], s55 offen offset:1024{m} lds
    buffer_load_dwordx4 v{VSA}, s[{SRD_WS}:{SRD_WS+3}], s55 offen offset:2048{m} lds
    buffer_load_dwordx4 v{VSA}, s[{SRD_WS}:{SRD_WS+3}], s55 offen offset:3072{m} lds
    s_add_u32 s55, s55, 8192
    """)
    if ROT2:
        a(f"""
        s_cmp_eq_u32 s55, s36
        s_cselect_b32 s55, s37, s55
        """)
def w2_pieces(a):
    a(f"""
    s_add_u32 m0, s54, s58
    s_add_u32 s59, s56, {8192-1024}
    s_add_u32 s60, s56, {2*(8192-1024)}
    buffer_load_dwordx4 v{VSW}, s[{SRD_W2}:{SRD_W2+3}], s56 offen lds
    buffer_load_dwordx4 v{VSW}, s[{SRD_W2}:{SRD_W2+3}], s59 offen offset:1024 lds
    s_add_u32 s59, s56, {3*(8192-1024)}
    buffer_load_dwordx4 v{VSW}, s[{SRD_W2}:{SRD_W2+3}], s60 offen offset:2048 lds
    buffer_load_dwordx4 v{VSW}, s[{SRD_W2}:{SRD_W2+3}], s59 offen offset:3072 lds
    s_add_u32 s56, s56, {128*1024}
    """)
    if ROT2:
        a(f"""
        s_cmp_ge_u32 s56, {14*131072}
        s_cselect_b32 s59, {14*131072}, 0
        s_sub_u32 s56, s56, s59
        """)
def next_slot(a):
    a("s_add_u32 s54, s54, 32768")
    a("s_and_b32 s54, s54, 0x1ffff")


def emit_loader_gated(a):
    a(f"""
    s_lshr_b32 s53, s{S_TB}, 1
    s_lshl_b32 s53, s53, 11
    s_add_u32 s53, s53, {WS_ACTF}
    v_min_u32 v62, 13, v1
    v_lshl_add_u32 v62, v62, 7, s53
    v_mov_b32 v64, {AF}
    s_mov_b32 s38, 0
    """)
    rot2(a, "s39", "s59")
    subs = []
    def gate(i_expr, const=None):
        lok, lslow = a.label("gate_ok"), a.label("gate_slow")
        a(f"s_cmp_gt_u32 s38, {i_expr}")
        a(f"s_cbranch_scc0 {lslow}")
        a.lines.append(f"{lok}:")
        t = Asm(); t.nlabel = a.nlabel + 300000 + 1000*len(subs)
        lsp, loth, losp = t.label("gate_spin"), t.label("gate_oth"), t.label("gate_ospin")
        t.lines.append(f"{lslow}:")
        t(f"""
        s_mov_b32 s63, 0
        s_cmp_lg_u32 s{S_WAVE}, 4
        s_cbranch_scc1 {loth}
        """)
        t.lines.append(f"{lsp}:")
        t(f"""
        buffer_load_dword v63, v62, s[{SRD_WS}:{SRD_WS+3}], 0 offen sc1
        s_add_u32 s63, s63, 1
        s_waitcnt vmcnt(0)
        v_cmp_eq_u32 vcc, s{S_N}, v63
        s_sub_u32 s59, 14, s39
        s_nop 0
        s_and_b32 s60, vcc_lo, 0x3fff
        s_lshl_b32 s59, s60, s59
        s_lshr_b32 s60, s60, s39
        s_or_b32 s60, s60, s59
        s_and_b32 s60, s60, 0x3fff
        s_ff0_i32_b32 s38, s60
        v_mov_b32 v63, s38
        ds_write_b32 v64, v63
        s_cmp_gt_u32 s38, {i_expr}
        s_cbranch_scc1 {lok}
        s_cmp_ge_u32 s63, 0x40000
        s_cbranch_scc1 {lok}
        s_sleep 2
        s_branch {lsp}
        """)
        t.lines.append(f"{loth}:")
        t.lines.append(f"{losp}:")
        t(f"""
        ds_read_b32 v63, v64
        s_add_u32 s63, s63, 1
        s_waitcnt lgkmcnt(0)
        v_readfirstlane_b32 s38, v63
        s_cmp_gt_u32 s38, {i_expr}
        s_cbranch_scc1 {lok}
        s_cmp_ge_u32 s63, 0x400000
        s_cbranch_scc1 {lok}
        s_sleep 1
        s_branch {losp}
        """)
        subs.append(t)
    for st in range(3):
        gate(str(st))
        act_pieces(a); next_slot(a)
        if st == 0: (NOSTAMP or stamp(a, 7))
    (NOSTAMP or stamp(a, 8))
    def stage(vm, gate_i):
        a(f"s_waitcnt vmcnt({vm})")
        a("s_barrier")
        if gate_i is not None:
            gate(gate_i)
            act_pieces(a); w2_pieces(a); next_slot(a)
    stage(8, "3")
    (NOSTAMP or stamp(a, 5))
    stage(12, "4")
    stage(16, "5")
    lns = a.label("ld_nosig")
    a(f"""
    s_cmp_lg_u32 s{S_WAVE}, 4
    s_cbranch_scc1 {lns}
    s_lshl_b32 s53, s2, 7
    s_add_u32 s53, s53, {WS_Y2F}
    v_mov_b32 v2, s53
    v_mov_b32 v3, s{S_N}
    s_mov_b64 exec, 1
    buffer_store_dword v3, v2, s[{SRD_WS}:{SRD_WS+3}], 0 offen sc1
    s_mov_b64 exec, -1
    """)
    a.lines.append(f"{lns}:")
    loop = a.label("ld_loop")
    a("s_mov_b32 s61, 6")
    a.lines.append(f"{loop}:")
    stage(16, "s61")
    a(f"""
    s_add_u32 s61, s61, 1
    s_cmp_lt_u32 s61, {NST}
    s_cbranch_scc1 {loop}
    """)
    stage(16, None)
    stage(8, None)
    stage(0, None)
    lend = a.label("ldg_end")
    a(f"s_branch {lend}")
    for t in subs: a.lines += t.lines
    a.lines.append(f"{lend}:")

def emit_loader(a):
    lw = "s52"
    a(f"""
    s_sub_u32 {lw}, s{S_WAVE}, 4
    v_lshlrev_b32 v{VSA}, 4, v1
    s_lshl_b32 s53, s{S_TB}, 1
    s_lshr_b32 s54, {lw}, 1
    s_add_u32 s53, s53, s54
    s_mul_i32 s53, s53, 112
    s_and_b32 s54, {lw}, 1
    s_lshl_b32 s54, s54, 2
    s_add_u32 s53, s53, s54
    s_lshl_b32 s55, s53, 10
    s_add_u32 s55, s55, {WS_ACT}
    s_lshl_b32 s57, {lw}, 12
    s_add_u32 s58, s57, 16384
    v_lshrrev_b32 v2, 3, v1
    v_lshlrev_b32 v2, 10, v2
    v_bfe_u32 v3, v1, 4, 1
    v_lshlrev_b32 v3, 2, v3
    v_and_b32 v4, 7, v1
    v_xor_b32 v3, v3, v4
    v_lshl_add_u32 v{VSW}, v3, 4, v2
    s_lshl_b32 s56, {lw}, 15
    s_lshl_b32 s53, s{S_DB}, 7
    s_add_u32 s56, s56, s53
    s_mov_b32 s54, 0
    """)
    if ROT2:
        rot2(a, "s53", "s59")
        a(f"""
        s_add_u32 s36, s55, {14*8192}
        s_mov_b32 s37, s55
        s_lshl_b32 s59, s53, 13
        s_add_u32 s55, s55, s59
        s_add_u32 s53, s53, 3
        s_cmp_ge_u32 s53, 14
        s_cselect_b32 s59, 14, 0
        s_sub_u32 s53, s53, s59
        s_lshl_b32 s53, s53, 17
        s_add_u32 s56, s56, s53
        """)
        a("s_waitcnt vmcnt(0)")
    elif W2_PRE:
        a(f"s_add_u32 s56, s56, {3*131072}")
        a("s_waitcnt vmcnt(0)")
    else:
        for st in range(3):
            w2_pieces(a); next_slot(a)
        a("s_waitcnt vmcnt(12)")
    if YCOUNT:
        a(f"""
        s_mov_b32 s54, 0
        v_mov_b32 v2, {YC}
        v_mov_b32 v3, 1
        ds_add_u32 v2, v3
        """)
        lna, lys = a.label("ld_noactf"), a.label("ld_yspin")
        a(f"""
        s_cmp_lg_u32 s{S_WAVE}, 4
        s_cbranch_scc1 {lna}
        s_cmp_eq_u32 s{S_ACTF}, -1
        s_cbranch_scc1 {lna}
        s_mov_b32 s63, 0
        """)
        a.lines.append(f"{lys}:")
        lyd = a.label("ld_ydone")
        a(f"""
        ds_read_b32 v3, v2
        s_add_u32 s63, s63, 1
        s_waitcnt lgkmcnt(0)
        v_readfirstlane_b32 s59, v3
        s_cmp_ge_u32 s59, 512
        s_cbranch_scc1 {lyd}
        s_cmp_ge_u32 s63, 0x400000
        s_cbranch_scc1 {lyd}
        s_sleep 1
        s_branch {lys}
        """)
        a.lines.append(f"{lyd}:")
        (NOSTAMP or stamp(a, 6))
        a(f"""
        v_mov_b32 v2, s{S_ACTF}
        v_mov_b32 v3, s{S_N}
        s_mov_b64 exec, 1
        buffer_store_dword v3, v2, s[{SRD_WS}:{SRD_WS+3}], 0 offen sc1
        s_mov_b64 exec, -1
        """)
        a.lines.append(f"{lna}:")
    else:
        a("""
        s_mov_b32 s54, 0
        s_barrier
        """)
        (NOSTAMP or stamp(a, 6))
        lna = a.label("ld_noactf")
        a(f"""
        s_cmp_lg_u32 s{S_WAVE}, 4
        s_cbranch_scc1 {lna}
        s_cmp_eq_u32 s{S_ACTF}, -1
        s_cbranch_scc1 {lna}
        v_mov_b32 v2, s{S_ACTF}
        v_mov_b32 v3, s{S_N}
        s_mov_b64 exec, 1
        buffer_store_dword v3, v2, s[{SRD_WS}:{SRD_WS+3}], 0 offen sc1
        s_mov_b64 exec, -1
        """)
        a.lines.append(f"{lna}:")
    if STAGE_GATE:
        emit_loader_gated(a)
        return
    lother, lready = a.label("ld_other"), a.label("ld_ready")
    a(f"""
    s_cmp_lg_u32 s{S_WAVE}, 4
    s_cbranch_scc1 {lother}
    s_lshr_b32 s53, s{S_TB}, 1
    s_lshl_b32 s53, s53, 11
    s_add_u32 s53, s53, {WS_ACTF}
    v_min_u32 v2, 13, v1
    v_lshl_add_u32 v2, v2, 7, s53
    """)
    spin_flags(a, "ld_actf", 2, 3, 14)
    a(f"""
    v_mov_b32 v2, {AF}
    v_mov_b32 v3, 1
    ds_write_b32 v2, v3
    s_branch {lready}
    """)
    a.lines.append(f"{lother}:")
    lsp = a.label("ld_lspin")
    a(f"""
    v_mov_b32 v2, {AF}
    s_mov_b32 s63, 0
    """)
    a.lines.append(f"{lsp}:")
    a(f"""
    ds_read_b32 v3, v2
    s_add_u32 s63, s63, 1
    s_waitcnt lgkmcnt(0)
    v_readfirstlane_b32 s59, v3
    s_cmp_lg_u32 s59, 0
    s_cbranch_scc1 {lready}
    s_cmp_ge_u32 s63, 0x400000
    s_cbranch_scc1 {lready}
    s_sleep 1
    s_branch {lsp}
    """)
    a.lines.append(f"{lready}:")
    if ACT_PLAIN:
        a("buffer_inv sc1")
        a("s_waitcnt vmcnt(0)")
    (NOSTAMP or stamp(a, 7))
    for st in range(3):
        act_pieces(a); next_slot(a)
    if TOUCH2:
        a(f"""
        s_lshr_b32 s59, s2, 3
        s_lshl_b32 s59, s59, 12
        v_and_b32 v2, 31, v1
        v_lshlrev_b32 v2, 7, v2
        v_lshrrev_b32 v3, 5, v1
        s_lshl_b32 s60, {lw}, 1
        v_add_u32 v3, s60, v3
        v_add_u32 v3, 3, v3
        v_lshlrev_b32 v3, 17, v3
        v_add3_u32 v2, v2, v3, s59
        buffer_load_dword v8, v2, s[{SRD_W2}:{SRD_W2+3}], 0 offen
        s_mov_b32 s60, {8 << 17}
        s_cmp_ge_u32 {lw}, 2
        s_cselect_b32 s60, 0x7fffffff, s60
        v_add_u32 v2, s60, v2
        buffer_load_dword v9, v2, s[{SRD_W2}:{SRD_W2+3}], 0 offen
        """)
    nt = 2 if TOUCH2 else 0
    (NOSTAMP or stamp(a, 8))
    a("s_barrier")
    (NOSTAMP or stamp(a, 9))
    def stage(vm, issue):
        a(f"s_waitcnt vmcnt({vm})")
        a("s_barrier")
        if issue:
            act_pieces(a); w2_pieces(a); next_slot(a)
    stage(8, True)
    (NOSTAMP or stamp(a, 5))
    stage(12, True)
    stage(16, True)
    lns = a.label("ld_nosig")
    a(f"""
    s_cmp_lg_u32 s{S_WAVE}, 4
    s_cbranch_scc1 {lns}
    s_lshl_b32 s53, s2, 7
    s_add_u32 s53, s53, {WS_Y2F}
    v_mov_b32 v2, s53
    v_mov_b32 v3, s{S_N}
    s_mov_b64 exec, 1
    buffer_store_dword v3, v2, s[{SRD_WS}:{SRD_WS+3}], 0 offen sc1
    s_mov_b64 exec, -1
    """)
    a.lines.append(f"{lns}:")
    loop = a.label("ld_loop")
    a("s_mov_b32 s61, 3")
    a.lines.append(f"{loop}:")
    stage(16, True)
    a(f"""
    s_add_u32 s61, s61, 1
    s_cmp_lt_u32 s61, {NST-3}
    s_cbranch_scc1 {loop}
    """)
    stage(16, False)
    stage(8, False)
    stage(0, False)

def emit_conv_compute(a):
    ACC = 8
    A0, B0, A1, B1 = 40, 72, 104, 136
    VA, VB = 168, 172
    p = "s2"
    a(f"""
    s_lshr_b32 s52, s{S_WAVE}, 1                   ; ch
    s_and_b32 s53, s{S_WAVE}, 1                    ; half
    s_mul_i32 s60, s52, {CHSZ}
    s_add_u32 s60, s60, {CV_BASE}
    v_and_b32 v2, 15, v1
    v_lshrrev_b32 v3, 4, v1
    v_lshlrev_b32 v4, 3, v3
    v_sub_u32 v4, v2, v4
    v_add_u32 v4, 9, v4
    v_lshlrev_b32 v4, 1, v4
    v_and_b32 v5, 1, v2
    v_cmp_eq_u32 vcc, 0, v5
    v_mov_b32 v6, {OB-2}
    s_lshl_b32 s61, s53, 8
    v_cndmask_b32 v6, 0, v6, vcc
    s_add_u32 s63, s60, 32
    s_add_u32 s63, s63, s61
    v_add3_u32 v{VA}, v4, v6, s63
    v_add_u32 v{VA+1}, 1024, v{VA}
    v_add_u32 v{VA+2}, 2048, v{VA}
    v_add_u32 v{VA+3}, 3072, v{VA}
    v_lshlrev_b32 v4, 5, v2
    v_lshl_add_u32 v4, v3, 4, v4
    s_add_u32 s63, s60, {UB + 4112 - 3584}
    s_add_u32 s63, s63, s61
    v_sub_u32 v{VB}, s63, v4
    """)
    def reads(A, B):
        ins = []
        for mu in range(8):
            base = VA + (mu >> 1); o = 128*(mu & 1)
            ins.append(f"ds_read_b128 v[{B+4*mu}:{B+4*mu+3}], v{VB} offset:{512*(7-mu)}")
            ins.append(f"ds_read2_b32 v[{A+4*mu}:{A+4*mu+1}], v{base} offset0:{o} offset1:{o+1}")
            ins.append(f"ds_read2_b32 v[{A+4*mu+2}:{A+4*mu+3}], v{base} offset0:{o+2} offset1:{o+3}")
        return ins
    def advance():
        return [f"v_add_u32 v{r}, 64, v{r}" for r in (VA, VA+1, VA+2, VA+3, VB)]
    def mfmas(A, B):
        ins = []
        for q in range(8):
            for mu in range(q+1):
                n = q - mu
                ins.append(f"v_mfma_f32_16x16x32_bf16 v[{ACC+4*q}:{ACC+4*q+3}], v[{A+4*mu}:{A+4*mu+3}], v[{B+4*n}:{B+4*n+3}], v[{ACC+4*q}:{ACC+4*q+3}]")
        return ins
    def interleave(m, rd):
        k = 0
        for x in m:
            a(x)
            if k < len(rd):
                a(rd[k]); k += 1
        assert k == len(rd)
    for x in reads(A0, B0): a(x)
    for r in range(32):
        a(f"v_mov_b32 v{ACC+r}, 0")
    (NOSTAMP or stamp(a, 7))
    loop, ldone = a.label("cv_loop"), a.label("cv_done")
    a("s_mov_b32 s61, 0")
    a.lines.append(f"{loop}:")
    a("s_waitcnt lgkmcnt(0)")
    interleave(mfmas(A0, B0), advance() + reads(A1, B1))
    a("s_waitcnt lgkmcnt(0)")
    a(f"""
    s_cmp_eq_u32 s61, 1
    s_cbranch_scc1 {ldone}
    s_mov_b32 s61, 1
    """)
    if not YCOUNT:
        a("s_waitcnt vmcnt(0)")
        a("s_barrier                                      ; Y")
    interleave(mfmas(A1, B1), advance() + reads(A0, B0))
    if YCOUNT:
        a(f"""
        v_mov_b32 v2, {YC}
        v_mov_b32 v3, 1
        s_waitcnt vmcnt(0)
        ds_add_u32 v2, v3
        """)
    a(f"s_branch {loop}")
    a.lines.append(f"{ldone}:")
    for x in mfmas(A1, B1): a(x)
    (NOSTAMP or stamp(a, 8))
    a(f"""
    s_lshl_b32 s61, s{S_WAVE}, 13
    s_add_u32 s61, s61, {EX_BASE}
    v_lshlrev_b32 v2, 4, v1
    v_add_u32 v3, s61, v2
    v_and_b32 v4, 15, v1
    v_lshrrev_b32 v5, 4, v1
    v_lshlrev_b32 v6, 5, v4
    v_lshl_add_u32 v6, v5, 3, v6
    s_lshl_b32 s63, s{S_WAVE}, 10
    s_sub_u32 s63, {CV_BASE + UB + 2*2044 - 512}, s63
    v_sub_u32 v7, s63, v6
    ds_read_b64 v[40:41], v7 offset:512
    ds_read_b64 v[42:43], v7
    ds_read_b64 v[44:45], v7 offset:{512+CHSZ}
    ds_read_b64 v[46:47], v7 offset:{CHSZ}
    s_nop 4
    """)
    for q in range(8):
        a(f"ds_write_b128 v3, v[{ACC+4*q}:{ACC+4*q+3}] offset:{1024*q}")
    if G2_EARLY:
        emit_gemm2_setup(a)
        a(f"""
        v_lshlrev_b32 v2, 4, v1
        v_and_b32 v4, 15, v1
        v_lshrrev_b32 v5, 4, v1
        """)
    a(f"""
    s_lshl_b32 s61, s{S_WAVE}, 11
    s_add_u32 s61, s61, {EX_BASE}
    v_add_u32 v3, s61, v2
    s_waitcnt lgkmcnt(0)
    """)
    if STAGE_GATE:
        lx, lxd = a.label("cv_xspin"), a.label("cv_xdone")
        a(f"""
        v_mov_b32 v48, {XC}
        v_mov_b32 v49, 1
        ds_add_u32 v48, v49
        s_mov_b32 s63, 0
        """)
        a.lines.append(f"{lx}:")
        a(f"""
        ds_read_b32 v49, v48
        s_add_u32 s63, s63, 1
        s_waitcnt lgkmcnt(0)
        v_readfirstlane_b32 s61, v49
        s_cmp_ge_u32 s61, 256
        s_cbranch_scc1 {lxd}
        s_cmp_lt_u32 s63, 0x400000
        s_cbranch_scc1 {lx}
        """)
        a.lines.append(f"{lxd}:")
    else:
        a("s_barrier                                      ; B1")
    Y = 48
    for w in range(4):
        for qq in range(2):
            a(f"ds_read_b128 v[{Y+8*w+4*qq}:{Y+8*w+4*qq+3}], v3 offset:{8192*w+1024*qq}")
    a(f"""
    s_lshl_b32 s56, s17, 16
    s_and_b32 s57, s17, 0xffff0000
    v_lshlrev_b32 v6, 6, v4
    v_lshl_add_u32 v6, v5, 4, v6
    s_lshl_b32 s61, {p}, 13
    s_lshl_b32 s53, s{S_WAVE}, 11
    s_add_u32 s61, s61, s53
    s_add_u32 s61, s61, {WS_Y2}
    s_waitcnt lgkmcnt(0)
    """)
    T = 80
    for qq in range(2):
        for ch in range(2):
            y0, y1 = Y + 8*(2*ch) + 4*qq, Y + 8*(2*ch+1) + 4*qq
            u = 40 + 2*qq + 4*ch
            sD = 56 + ch
            r = T + 8*ch
            for k in range(4):
                a(f"v_add_f32 v{r+k}, v{y0+k}, v{y1+k}")
            a(f"v_and_b32 v{r+4}, 0xffff0000, v{u+1}")
            a(f"v_lshlrev_b32 v{r+5}, 16, v{u+1}")
            a(f"v_and_b32 v{r+6}, 0xffff0000, v{u}")
            a(f"v_lshlrev_b32 v{r+7}, 16, v{u}")
            for k in range(4):
                a(f"v_fmac_f32 v{r+k}, s{sD}, v{r+4+k}")
        o = 96 + 4*qq
        for k in range(4):
            a(f"v_cvt_pk_bf16_f32 v{o+k}, v{T+k}, v{T+8+k}")
        a(f"buffer_store_dwordx4 v[{o}:{o+3}], v6, s[{SRD_WS}:{SRD_WS+3}], s61 offen offset:{1024*qq} sc1")

G_ACC = 8
FP, FQ = 24, 32
VX, VY, VST = 176, 112, 184
VA2, VW2, VOFF, VYO = 186, 187, 188, 189
VY2F, VY2V = 190, 191

def g2_read(a, dst, step):
    a(f"ds_read_b128 v[{dst}:{dst+3}], v{VA2} offset:{1024*step}")
    a(f"ds_read_b64_tr_b16 v[{dst+4}:{dst+5}], v{VW2} offset:{2048*step}")
    a(f"ds_read_b64_tr_b16 v[{dst+6}:{dst+7}], v{VW2} offset:{2048*step+1024}")
def g2_mfma(a, src):
    a(f"v_mfma_f32_32x32x16_bf16 v[{G_ACC}:{G_ACC+15}], v[{src+4}:{src+7}], v[{src}:{src+3}], v[{G_ACC}:{G_ACC+15}]")

def emit_gemm2_setup(a):
    w = f"s{S_WAVE}"
    a(f"""
    s_and_b32 s52, {w}, 1                          ; ti
    s_lshr_b32 s53, {w}, 1                         ; di
    v_and_b32 v5, 31, v1
    v_lshrrev_b32 v6, 5, v1
    s_lshl_b32 s54, s{S_TB}, 6
    s_lshl_b32 s55, s52, 5
    s_add_u32 s54, s54, s55
    v_add_u32 v2, s54, v5                          ; token
    s_lshl_b32 s54, s{S_DB}, 6
    s_lshl_b32 s55, s53, 5
    s_add_u32 s54, s54, s55
    v_lshl_add_u32 v3, v6, 4, s54
    v_lshlrev_b32 v4, 10, v2
    v_lshl_add_u32 v{VOFF}, v3, 1, v4
    buffer_load_dwordx4 v[{VX}:{VX+3}], v{VOFF}, s[{SRD_X}:{SRD_X+3}], 0 offen
    buffer_load_dwordx4 v[{VX+4}:{VX+7}], v{VOFF}, s[{SRD_X}:{SRD_X+3}], 0 offen offset:16
    v_lshlrev_b32 v4, 3, v2
    buffer_load_dwordx2 v[{VST}:{VST+1}], v4, s[{SRD_WS}:{SRD_WS+3}], 0 offen offset:{WS_STATS} sc1
    v_lshlrev_b32 v4, 12, v3
    v_lshl_add_u32 v{VYO}, v2, 2, v4
    s_lshl_b32 s54, s52, 13
    v_lshl_add_u32 v{VA2}, v1, 4, s54
    v_bfe_u32 v2, v1, 2, 2
    v_bfe_u32 v3, v1, 4, 1
    v_and_b32 v4, 1, v1
    v_lshl_add_u32 v3, v4, 1, v3
    v_lshrrev_b32 v4, 1, v2
    v_xor_b32 v4, s53, v4
    v_lshl_add_u32 v3, v4, 2, v3
    v_bfe_u32 v4, v1, 1, 1
    v_lshlrev_b32 v4, 3, v4
    v_lshl_add_u32 v3, v3, 4, v4
    v_lshl_add_u32 v2, v6, 2, v2
    v_lshl_add_u32 v3, v2, 7, v3
    v_add_u32 v{VW2}, 16384, v3
    """)

def emit_gemm2_compute(a):
    w = f"s{S_WAVE}"
    if not G2_EARLY: emit_gemm2_setup(a)
    for r in range(16):
        a(f"v_mov_b32 v{G_ACC+r}, 0")
    a(f"""
    s_mov_b32 s54, 0                               ; stage
    s_mov_b32 s55, 0
    s_mov_b32 s56, 32768
    s_mov_b32 s57, 0
    s_lshl_b32 s58, s{S_DB}, 12
    s_add_u32 s58, s58, {WS_Y2F}
    v_and_b32 v{VY2F}, 31, v1
    v_lshl_add_u32 v{VY2F}, v{VY2F}, 7, s58
    s_barrier                                      ; S_0
    """)
    (NOSTAMP or stamp(a, 9))
    g2_read(a, FP, 0)
    loop, llast, lnodrain, lnopoll, lnochk = [a.label(x) for x in ("g2_loop", "g2_last", "g2_nodrain", "g2_nopoll", "g2_nochk")]
    def y2_loads():
        a(f"s_mov_b32 s59, {WS_Y2}")
        for k in range(8):
            a(f"buffer_load_dword v{VY+k}, v{VYO}, s[{SRD_WS}:{SRD_WS+3}], s59 offen sc1")
            if k < 7: a("s_add_u32 s59, s59, 8192")
    a.lines.append(f"{loop}:")
    cur, nxt = FP, FQ
    for s in range(7):
        g2_read(a, nxt, s+1); a("s_waitcnt lgkmcnt(3)"); g2_mfma(a, cur)
        cur, nxt = nxt, cur
    a(f"""
    s_cmp_eq_u32 s54, {NST-1}
    s_cbranch_scc1 {llast}
    s_cmp_lg_u32 s54, 1
    s_cbranch_scc1 {lnodrain}
    s_waitcnt vmcnt(0)
    """)
    a.lines.append(f"{lnodrain}:")
    a(f"""
    s_cmp_lg_u32 s54, 9
    s_cbranch_scc1 {lnopoll}
    buffer_load_dword v{VY2V}, v{VY2F}, s[{SRD_WS}:{SRD_WS+3}], 0 offen sc1
    """)
    a.lines.append(f"{lnopoll}:")
    a(f"""
    s_cmp_lg_u32 s54, 11
    s_cbranch_scc1 {lnochk}
    s_waitcnt vmcnt(0)
    v_cmp_ne_u32 vcc, s{S_N}, v{VY2V}
    s_nop 1
    s_cmp_eq_u64 vcc, 0
    s_cbranch_scc0 {lnochk}
    s_mov_b32 s57, 1
    """)
    y2_loads()
    a.lines.append(f"{lnochk}:")
    a(f"""
    s_waitcnt lgkmcnt(0)
    s_barrier                                      ; S_(s+1)
    s_add_u32 s55, s55, 32768
    s_and_b32 s55, s55, 0x1ffff
    s_cmp_eq_u32 s55, 0
    s_cselect_b32 s59, {(-98304) & 0xffffffff}, s56
    s_add_u32 s54, s54, 1
    v_add_u32 v{VA2}, s59, v{VA2}
    v_add_u32 v{VW2}, s59, v{VW2}
    """)
    g2_read(a, nxt, 0)
    g2_mfma(a, cur)
    a(f"s_branch {loop}")
    a.lines.append(f"{llast}:")
    a("s_waitcnt lgkmcnt(0)")
    g2_mfma(a, cur)
    (NOSTAMP or stamp(a, 5))
    lgot = a.label("g2_got")
    a(f"""
    s_cmp_eq_u32 s57, 1
    s_cbranch_scc1 {lgot}
    """)
    spin_flags(a, "g2_y2f", VY2F, VY2V, 32)
    y2_loads()
    a.lines.append(f"{lgot}:")
    def pr(r): return f"v[{r}:{r+1}]"
    K1, KL = 40, 42
    XF, SF, E, T = 44, 60, 24, 76
    a(f"""
    v_mov_b32 v{K1}, 1.0
    v_mov_b32 v{K1+1}, 1.0
    v_mov_b32 v{KL}, {hex(LOG2E | 0x80000000)}
    v_mov_b32 v{KL+1}, {hex(LOG2E | 0x80000000)}
    """)
    for k in range(8):
        a(f"v_pk_mul_f32 {pr(E+2*k)}, {pr(G_ACC+2*k)}, {pr(KL)}")
    for k in range(16):
        a(f"v_exp_f32 v{E+k}, v{E+k}")
    for k in range(8):
        a(f"v_pk_add_f32 {pr(E+2*k)}, {pr(E+2*k)}, {pr(K1)}")
    for k in range(16):
        a(f"v_rcp_f32 v{E+k}, v{E+k}")
    for k in range(8):
        a(f"v_pk_mul_f32 {pr(E+2*k)}, {pr(E+2*k)}, {pr(G_ACC+2*k)}")
    a("s_waitcnt vmcnt(0)")
    for k in range(8):
        a(f"v_lshlrev_b32 v{XF+2*k}, 16, v{VX+k}")
        a(f"v_and_b32 v{XF+2*k+1}, 0xffff0000, v{VX+k}")
    for k in range(8):
        a(f"v_pk_add_f32 {pr(SF+2*k)}, {pr(XF+2*k)}, {pr(VST)} op_sel_hi:[1,0] neg_lo:[0,1] neg_hi:[0,1]")
    for k in range(8):
        a(f"v_pk_mul_f32 {pr(SF+2*k)}, {pr(SF+2*k)}, {pr(VST)} op_sel:[0,1] op_sel_hi:[1,1]")
    for k in range(8):
        a(f"v_lshlrev_b32 v{T+2*k}, 16, v{VY+k}")
        a(f"v_and_b32 v{T+2*k+1}, 0xffff0000, v{VY+k}")
    for k in range(8):
        a(f"v_pk_mul_f32 {pr(SF+2*k)}, {pr(SF+2*k)}, {pr(T+2*k)}")
    for k in range(8):
        a(f"v_pk_fma_f32 {pr(E+2*k)}, {pr(E+2*k)}, {pr(SF+2*k)}, {pr(XF+2*k)}")
    for k in range(8):
        a(f"v_cvt_pk_bf16_f32 v{VX+k}, v{E+2*k}, v{E+2*k+1}")
    a(f"buffer_store_dwordx4 v[{VX}:{VX+3}], v{VOFF}, s[{SRD_OUT}:{SRD_OUT+3}], 0 offen")
    a(f"buffer_store_dwordx4 v[{VX+4}:{VX+7}], v{VOFF}, s[{SRD_OUT}:{SRD_OUT+3}], 0 offen offset:16")

def emit_back(a):
    emit_entry(a)
    lload, lend = a.label("bk_loader"), a.label("bk_end")
    a(f"""
    s_cmp_ge_u32 s{S_WAVE}, 4
    s_cbranch_scc1 {lload}
    """)
    emit_conv_compute(a)
    emit_gemm2_compute(a)
    a(f"s_branch {lend}")
    a.lines.append(f"{lload}:")
    emit_loader(a)
    a.lines.append(f"{lend}:")
```

```python
from common import *
import common
import front5 as f5
import merged2 as m2
import merged4 as m4
import back3 as b3
from gemm1 import emit_wgmap_gemm1
from conv import OB, UB, CHSZ

NAME = m2.NAME
S_WAVE, S_N = 18, 62
SRD_X, SRD_W1, SRD_WS, SRD_DBG, SRD_W2 = 20, 24, 28, 56, 24
OPS, NW = f5.OPS, f5.NW
AF = NW + 4
YC = NW + 8
XC = NW + 12
ISSUE_BARRIER = True
EARLY_A = False
KT, VT, TR = f5.KT, f5.VT, f5.TR
W = f"s{S_WAVE}"
MAPPING = 1
LSTAMP = False
ACC, FS, VC, VB = f5.ACC, f5.FS, f5.VC, f5.VB
VXA, VWA, VXH, VWH = f5.VXA, f5.VWA, f5.VXH, f5.VWH
VX0, VX1, VW, VST, VK = f5.VX0, f5.VX1, f5.VW, f5.VST, f5.VK
VOPS, VFL, VFO = f5.VOPS, f5.VFL, f5.VFO
VROW = 64

CODE_PREFETCH = True
PW = 5

def setup(a):
    if CODE_PREFETCH:
        l = a.label("cp_skip")
        a(f"""
        v_lshrrev_b32 v2, 6, v0
        s_getpc_b64 s[60:61]
        L_code_base:
        v_cmp_eq_u32 vcc, 7, v2
        s_lshr_b32 s52, s2, 3
        s_mul_i32 s52, s52, CODE_NL
        v_and_b32 v1, 63, v0
        v_add_u32 v3, s52, v1
        v_lshlrev_b32 v3, 7, v3
        s_and_saveexec_b64 s[54:55], vcc
        s_cbranch_execz {l}
        v_cmp_gt_u32 vcc, CODE_NL, v1
        s_and_b64 exec, exec, vcc
        v_cmp_gt_u32 vcc, CODE_BYTES, v3
        s_and_b64 exec, exec, vcc
        s_cbranch_execz {l}
        global_load_dword v193, v3, s[60:61]
        """)
        a.lines.append(f"{l}:")
        a("s_mov_b64 exec, -1")
    a(f"""
    s_load_dwordx4 s[4:7], s[0:1], {KA['q']}       ; q, k
    s_load_dwordx4 s[8:11], s[0:1], {KA['v']}      ; v, shift
    s_load_dwordx4 s[12:15], s[0:1], {KA['w1']}    ; w1, b1
    s_load_dwordx4 s[48:51], s[0:1], {KA['dbg']}
    v_and_b32 v1, 63, v0
    v_lshrrev_b32 v2, 6, v0
    s_nop 0
    v_readfirstlane_b32 s{S_WAVE}, v2
    s_lshl_b32 s52, s2, 3
    v_lshrrev_b32 v3, 3, v1
    v_add_u32 v3, s52, v3
    v_lshlrev_b32 v3, 10, v3
    v_and_b32 v4, 7, v1
    v_lshl_add_u32 v190, v4, 4, v3
    s_waitcnt lgkmcnt(0)
    """)
    srd(a, SRD_X, 4, S*D*2)
    srd(a, SRD_W1, 12, D*F*2)

def row_loads(a):
    l = a.label("rows")
    a(f"""
    s_cmp_lg_u32 {W}, 4
    s_cbranch_scc1 {l}
    """)
    for it in range(8):
        a(f"buffer_load_dwordx4 v[{VROW+4*it}:{VROW+4*it+3}], v190, s[{SRD_X}:{SRD_X+3}], 0 offen offset:{128*it}")
    a.lines.append(f"{l}:")

def late_setup(a):
    srd(a, SRD_DBG, 48, 256)
    srd(a, SRD_WS, 50, WS_SIZE)
    a(f"""
    s_load_dwordx2 s[48:49], s[0:1], {KA['w2']}
    s_load_dwordx4 s[52:55], s[0:1], {KA['ssmk']}
    s_load_dwordx2 s[8:9], s[0:1], {KA['out']}
    """)

def stats8(a):
    A = 96
    a(f"v_mov_b32 v104, 0x3f803f80")
    a("s_nop 0")
    for q in range(4):
        a(f"v_dot2_f32_bf16 v{A+q}, v{VROW+q}, v104, 0")
        a(f"v_dot2_f32_bf16 v{A+4+q}, v{VROW+q}, v{VROW+q}, 0")
    for i in range(4, 32):
        a(f"v_dot2_f32_bf16 v{A+i%4}, v{VROW+i}, v104, v{A+i%4}")
        a(f"v_dot2_f32_bf16 v{A+4+i%4}, v{VROW+i}, v{VROW+i}, v{A+4+i%4}")
    a("s_nop 2")
    a(f"""
    v_add_f32 v{A}, v{A}, v{A+1}
    v_add_f32 v{A+2}, v{A+2}, v{A+3}
    v_add_f32 v{A+4}, v{A+4}, v{A+5}
    v_add_f32 v{A+6}, v{A+6}, v{A+7}
    v_add_f32 v{A}, v{A}, v{A+2}
    v_add_f32 v{A+4}, v{A+4}, v{A+6}
    """)
    for mod in ("quad_perm:[1,0,3,2]", "quad_perm:[2,3,0,1]", "row_half_mirror"):
        a("s_nop 1")
        a(f"v_add_f32_dpp v{A}, v{A}, v{A} {mod} row_mask:0xf bank_mask:0xf")
        a(f"v_add_f32_dpp v{A+4}, v{A+4}, v{A+4} {mod} row_mask:0xf bank_mask:0xf")
    a(f"""
    v_mul_f32 v{A+1}, 0x3b000000, v{A}
    v_mul_f32 v{A+4}, 0x3b000000, v{A+4}
    v_fma_f32 v{A+4}, -v{A+1}, v{A+1}, v{A+4}
    v_max_f32 v{A+4}, 0, v{A+4}
    """)
    bf16_round(a, A+4, A+4)
    a(f"v_add_f32 v{A+4}, 0x3727c5ac, v{A+4}")
    bf16_round(a, A+4, A+4)
    a(f"v_sqrt_f32 v{A+4}, v{A+4}")
    a("s_nop 0")
    bf16_round(a, A+4, A+4)
    a(f"v_rcp_f32 v{A+3}, v{A+4}")
    bf16_round(a, A+2, A+1)
    a(f"""
    v_lshrrev_b32 v3, 3, v1
    s_lshl_b32 s52, s2, 3
    v_add_lshl_u32 v3, v3, s52, 3
    v_and_b32 v4, 7, v1
    v_cmp_eq_u32 vcc, 0, v4
    s_and_saveexec_b64 s[60:61], vcc
    buffer_store_dwordx2 v[{A+2}:{A+3}], v3, s[{SRD_WS}:{SRD_WS+3}], 0 offen offset:{WS_STATS} sc1
    s_mov_b64 exec, s[60:61]
    """)

def kv8(a):
    RK, RV, K, V, SS, KV, O = 40, 51, 64, 86, 102, 8, 24
    def pr(r): return f"v[{r}:{r+1}]"
    a(f"""
    v_and_b32 v2, 31, v1
    v_lshrrev_b32 v3, 5, v1
    s_lshl_b32 s52, {W}, 1
    v_add_u32 v3, s52, v3                          ; g
    v_lshlrev_b32 v4, 10, v3
    v_lshl_add_u32 v4, v2, 2, v4
    v_add_u32 v5, {KT + 5*128}, v4
    v_add_u32 v6, {VT}, v4
    """)
    for i in range(11): a(f"ds_read_b32 v{RK+i}, v5 offset:{128*i}")
    a(f"""
    v_lshlrev_b32 v{SS+0}, 16, v124
    v_lshlrev_b32 v{SS+1}, 16, v126
    v_and_b32 v{SS+2}, 0xffff0000, v124
    v_and_b32 v{SS+3}, 0xffff0000, v126
    v_lshlrev_b32 v{SS+4}, 16, v125
    v_lshlrev_b32 v{SS+5}, 16, v127
    v_and_b32 v{SS+6}, 0xffff0000, v125
    v_and_b32 v{SS+7}, 0xffff0000, v127
    v_sub_u32 v3, 7, v3
    v_and_b32 v7, 7, v2
    v_xor_b32 v3, v3, v7
    v_lshlrev_b32 v3, 4, v3
    v_lshl_add_u32 v3, v2, 8, v3
    v_add_u32 v3, {TR}, v3
    s_waitcnt lgkmcnt(4)
    """)
    for i in range(8): a(f"ds_read_b32 v{RV+i}, v6 offset:{128*i}")
    for i in range(7):
        a(f"v_lshlrev_b32 v{K+2*i}, 16, v{RK+i}")
        a(f"v_and_b32 v{K+2*i+1}, 0xffff0000, v{RK+i}")
    a("s_waitcnt lgkmcnt(8)")
    for i in range(7, 11):
        a(f"v_lshlrev_b32 v{K+2*i}, 16, v{RK+i}")
        a(f"v_and_b32 v{K+2*i+1}, 0xffff0000, v{RK+i}")
    for tt in range(8):
        a(f"v_pk_mul_f32 {pr(KV+2*tt)}, {pr(K+2*tt)}, {pr(SS+6)}")
    for n, off in ((4, 1), (2, 2), (0, 3)):
        for tt in range(8):
            a(f"v_pk_fma_f32 {pr(KV+2*tt)}, {pr(K+2*(tt+off))}, {pr(SS+n)}, {pr(KV+2*tt)}")
    a("s_waitcnt lgkmcnt(0)")
    for i in range(8):
        a(f"v_lshlrev_b32 v{V+2*i}, 16, v{RV+i}")
        a(f"v_and_b32 v{V+2*i+1}, 0xffff0000, v{RV+i}")
    for tt in range(8):
        a(f"v_pk_mul_f32 {pr(KV+2*tt)}, {pr(KV+2*tt)}, {pr(V+2*tt)}")
    for ch in range(2):
        for q in range(4):
            a(f"v_cvt_pk_bf16_f32 v{O+4*ch+q}, v{KV+2*(7-2*q)+ch}, v{KV+2*(6-2*q)+ch}")
        a(f"ds_write_b128 v3, v[{O+4*ch}:{O+4*ch+3}] offset:{128*ch}")

def w2_part(a, st):
    if b3.ROT2:
        a(f"""
        s_add_u32 s54, s43, {st}
        s_cmp_ge_u32 s54, 14
        s_cselect_b32 s55, 14, 0
        s_sub_u32 s54, s54, s55
        s_lshl_b32 s54, s54, 17
        s_add_u32 s54, s54, s60
        s_add_u32 s55, s54, {8192 - 1024}
        s_add_u32 m0, s61, {32768*st}
        s_nop 0
        buffer_load_dwordx4 v183, s[{SRD_W2}:{SRD_W2+3}], s54 offen lds
        buffer_load_dwordx4 v183, s[{SRD_W2}:{SRD_W2+3}], s55 offen offset:1024 lds
        """)
        return
    a(f"""
    s_add_u32 m0, s61, {32768*st}
    s_add_u32 s54, s60, {131072*st}
    s_add_u32 s55, s60, {131072*st + 8192 - 1024}
    buffer_load_dwordx4 v183, s[{SRD_W2}:{SRD_W2+3}], s54 offen lds
    buffer_load_dwordx4 v183, s[{SRD_W2}:{SRD_W2+3}], s55 offen offset:1024 lds
    """)
def w2_prep(a):
    a(f"""
    s_mov_b32 s{SRD_W2}, s48
    s_mov_b32 s{SRD_W2+1}, s49
    s_mov_b32 s{SRD_W2+2}, {F*D*2}
    s_mov_b32 s{SRD_W2+3}, 0x00020000
    v_lshrrev_b32 v183, 3, v1
    v_lshlrev_b32 v183, 10, v183
    v_bfe_u32 v184, v1, 4, 1
    v_lshlrev_b32 v184, 2, v184
    v_xor_b32 v184, v184, v1
    v_and_b32 v184, 7, v184
    v_lshl_add_u32 v183, v184, 4, v183
    s_lshl_b32 s60, {W}, 14
    s_lshr_b32 s61, s2, 3
    s_and_b32 s61, s61, 7                          ; db
    s_lshl_b32 s61, s61, 7
    s_add_u32 s60, s60, s61
    s_lshl_b32 s61, {W}, 11
    s_add_u32 s61, s61, 16384
    """)
    if b3.ROT2:
        a(f"""
        s_and_b32 s52, s2, 7
        s_lshr_b32 s53, s2, 3
        s_lshr_b32 s{b3.S_TB}, s53, 3
        s_lshl_b32 s52, s52, 2
        s_add_u32 s{b3.S_TB}, s{b3.S_TB}, s52
        s_and_b32 s{b3.S_DB}, s53, 7
        """)
        b3.rot2(a, "s43", "s52")

def gemm_role(a, wid):
    row_loads(a)
    f5.emit_kv_loads(a)
    if ISSUE_BARRIER: a("s_barrier")
    emit_wgmap_gemm1(a, wid, MAPPING)
    a(f"""
    v_lshrrev_b32 v2, 3, v1
    v_lshrrev_b32 v3, 4, v1
    v_and_b32 v4, 7, v1
    s_lshl_b32 s38, s32, 7
    s_lshl_b32 s39, {W}, 4
    s_add_u32 s38, s38, s39
    v_add_u32 v5, s38, v2
    v_lshlrev_b32 v5, 10, v5
    v_xor_b32 v6, v4, v3
    v_lshl_add_u32 v{VX0}, v6, 4, v5
    v_xor_b32 v6, 4, v6
    v_lshl_add_u32 v{VX1}, v6, 4, v5
    v_add_u32 v{VX1}, 8192, v{VX1}
    s_lshl_b32 s39, {W}, 3
    v_add_u32 v5, s39, v3
    v_mul_u32_u24 v5, {F*2}, v5
    v_and_b32 v6, 15, v1
    v_lshlrev_b32 v7, 2, v3
    v_xor_b32 v6, v6, v7
    v_lshl_add_u32 v5, v6, 4, v5
    s_lshl_b32 s39, s33, 8
    v_add_u32 v{VW}, s39, v5
    s_lshl_b32 s40, {W}, 11
    s_and_b32 s41, s32, 1
    s_lshl_b32 s41, s41, 2
    s_add_u32 s41, s41, s33
    s_and_b32 s41, s41, {f5.ROTMASK}
    s_mul_i32 s42, s41, {64*F*2}
    s_lshl_b32 s41, s41, 7
    """)
    for st in range(1 if EARLY_A else 2):
        for k in range(4): f5.g1_piece(a, k)
    late_setup(a)
    stamp(a, 0)
    a(f"""
    s_and_b32 s36, {W}, 3                          ; tg
    s_lshr_b32 s37, {W}, 2                         ; fh
    v_and_b32 v5, 31, v1
    v_lshrrev_b32 v6, 5, v1                        ; h
    s_lshl_b32 s38, s33, 9
    v_lshl_add_u32 v2, v5, 4, s38
    v_mul_u32_u24 v3, {WS_BL - WS_CS}, v6
    v_add3_u32 v{VOPS}, v2, v3, 0
    v_add_u32 v{VOPS}, {WS_CS}, v{VOPS}
    s_lshl_b32 s38, s32, 11
    s_add_u32 s38, s38, {WS_STF}
    v_and_b32 v2, 15, v1
    v_lshl_add_u32 v2, v2, 7, s38
    s_lshl_b32 s38, s33, 8
    s_add_u32 s38, s38, {WS_CSF}
    v_and_b32 v3, 1, v1
    v_lshl_add_u32 v3, v3, 7, s38
    v_cmp_gt_u32 vcc, 16, v1
    s_lshr_b32 s38, s2, 5
    s_lshl_b32 s38, s38, 12
    v_cndmask_b32 v{VFO}, v3, v2, vcc
    s_add_u32 s38, s38, {WS_KVF}
    v_lshl_add_u32 v3, v5, 7, s38
    v_cmp_gt_u32 vcc, 32, v1
    v_lshrrev_b32 v4, 1, v5
    v_and_b32 v4, 7, v4
    v_cndmask_b32 v{VFO}, v3, v{VFO}, vcc
    v_xor_b32 v2, v4, v6
    s_lshl_b32 s38, s36, 12
    v_lshl_add_u32 v3, v5, 7, s38
    """)
    for s in range(4):
        a(f"v_xor_b32 v4, {2*s}, v2")
        a(f"v_lshl_add_u32 v{VXA+s}, v4, 4, v3")
    a(f"""
    v_bfe_u32 v2, v1, 2, 2
    v_bfe_u32 v3, v1, 4, 1
    v_and_b32 v4, 3, v1
    v_lshrrev_b32 v7, 1, v4
    v_lshl_add_u32 v7, v3, 1, v7
    v_and_b32 v4, 1, v4
    v_lshlrev_b32 v4, 3, v4
    v_lshl_add_u32 v3, v6, 3, v2
    v_lshl_add_u32 v4, v3, 8, v4
    v_add_u32 v4, 16384, v4
    s_lshl_b32 s38, s37, 1
    """)
    for n in range(2):
        a(f"s_add_u32 s39, s38, {n}")
        a(f"v_xor_b32 v3, s39, v2")
        a(f"v_lshl_add_u32 v3, v3, 2, v7")
        a(f"v_lshl_add_u32 v{VWA+n}, v3, 4, v4")
    for r in range(4): a(f"v_add_u32 v{VXH+r}, 65536, v{VXA+r}")
    for r in range(2): a(f"v_add_u32 v{VWH+r}, 65536, v{VWA+r}")
    a(f"""
    v_mov_b32 v2, {AF}
    v_mov_b32 v3, 0
    ds_write_b32 v2, v3
    ds_write_b32 v2, v3 offset:4
    ds_write_b32 v2, v3 offset:8
    v_lshrrev_b32 v122, 3, v1
    s_lshl_b32 s38, {W}, 3
    v_add_u32 v122, s38, v122
    v_lshrrev_b32 v152, 1, v122
    v_and_b32 v152, 7, v152
    v_and_b32 v155, 7, v1
    v_xor_b32 v152, v152, v155
    v_lshlrev_b32 v152, 4, v152
    v_lshl_add_u32 v152, v122, 7, v152
    v_add_u32 v152, {TR}, v152
    s_and_b32 s38, s2, 7
    s_lshl_b32 s38, s38, 6
    v_add_u32 v122, s38, v122
    v_lshlrev_b32 v122, 12, v122
    v_lshl_add_u32 v122, v155, 4, v122
    """)
    m2.conv_words(a)
    a(f"""
    s_mov_b32 s63, 0
    s_waitcnt vmcnt({4 if EARLY_A else 8}) lgkmcnt(0)
    s_barrier
    """)
    if not LSTAMP: stamp(a, 6)
    ln0 = a.label("g1_nld0")
    a(f"""
    s_cmp_lg_u32 {W}, 0
    s_cbranch_scc1 {ln0}
    """)
    f5.nonce_load(a)
    a.lines.append(f"{ln0}:")
    for k in range(4): f5.g1_piece(a, k)
    lst, lnone = a.label("g1_stats"), a.label("g1_pro")
    a(f"""
    s_cmp_ge_u32 {W}, 4
    s_cbranch_scc1 {lst}
    """)
    kv8(a)
    a(f"s_branch {lnone}")
    a.lines.append(f"{lst}:")
    a(f"""
    s_cmp_lg_u32 {W}, 4
    s_cbranch_scc1 {lnone}
    """)
    stats8(a)
    a.lines.append(f"{lnone}:")
    if EARLY_A:
        for k in range(4): f5.g1_piece(a, k)
    for r in range(32):
        a(f"v_mov_b32 v{ACC+r}, 0")
    a("""
    s_waitcnt vmcnt(8) lgkmcnt(0)
    s_barrier
    """)
    stamp(a, 1)
    tail = []
    def reads_of(stage, step):
        slot = stage % 4
        hi, off = slot >> 1, 32768 * (slot & 1)
        dst = FS[step]
        r = [f"ds_read_b128 v[{dst}:{dst+3}], v{(VXH if hi else VXA)+step} offset:{off}"]
        for n in range(2):
            for j in range(2):
                q = dst + 4 + 4*n + 2*j
                r.append(f"ds_read_b64_tr_b16 v[{q}:{q+1}], v{(VWH if hi else VWA)+n} offset:{off + 4096*step + 1024*j}")
        return r
    def step(stage, k):
        nst = stage + (k >= 2)
        r = reads_of(nst, (k + 2) % 4) if nst < 8 else []
        a("s_waitcnt lgkmcnt(0)" if (stage == 7 and k == 3) else "s_waitcnt lgkmcnt(5)")
        f5.g1_mfma(a, k, 0)
        for x in r[:3]: a(x)
        if stage + 3 < 8: f5.g1_piece(a, k, True)
        f5.g1_mfma(a, k, 1)
        for x in r[3:]: a(x)
    def out_of_line(name, cond, body):
        lo, lb = a.label(name + "_out"), a.label(name + "_back")
        a(cond)
        a(f"s_cbranch_scc1 {lo}")
        a.lines.append(f"{lb}:")
        b = Asm(); b.nlabel = a.nlabel + 1000 * (len(tail) + 1)
        b.lines.append(f"{lo}:")
        body(b)
        b(f"s_branch {lb}")
        tail.append(b)
    W0 = f"s_cmp_eq_u32 {W}, 0"
    def request(b):
        lop, lu, le = b.label("rq_op"), b.label("rq_u"), b.label("rq_e")
        b(f"""
        v_cmp_ne_u32 vcc, s{S_N}, v{VFL}
        s_bitcmp1_b32 s63, 0
        s_cbranch_scc1 {lop}
        s_cmp_lg_u32 vcc_lo, 0
        s_cbranch_scc1 {lop}
        s_or_b32 s63, s63, 1
        """)
        f5.g1_operand_dma(b)
        b.lines.append(f"{lop}:")
        b(f"""
        s_bitcmp1_b32 s63, 1
        s_cbranch_scc1 {lu}
        s_cmp_lg_u32 vcc_hi, 0
        s_cbranch_scc1 {lu}
        s_or_b32 s63, s63, 2
        """)
        m2.u_images(b)
        b.lines.append(f"{lu}:")
        b(f"""
        s_cmp_eq_u32 s63, 3
        s_cbranch_scc1 {le}
        """)
        f5.g1_poll(b)
        b.lines.append(f"{le}:")
    a("ds_read_b128 v[64:67], v152")
    for x in reads_of(0, 0) + reads_of(0, 1): a(x)
    VM = [7, 7, 6, 6, 6, 6, 2]
    for st in range(8):
        if st == 5:
            m2.k_images(a)
            out_of_line("g1_pads", f"s_cmp_lt_u32 {W}, 4", m2.conv_pads)
        step(st, 0); step(st, 1)
        if st == 0:
            a(f"""
            s_lshr_b32 s52, s2, 3
            s_lshl_b32 s52, s52, 7
            s_sub_u32 s52, {WS_KVT + 2*1984}, s52
            buffer_store_dwordx4 v[64:67], v122, s[{SRD_WS}:{SRD_WS+3}], s52 offen sc1
            """)
        if st < 7:
            if st == 0 and EARLY_A:
                lo, lb = a.label("g1_b0_out"), a.label("g1_b0_back")
                a(f"s_cmp_eq_u32 {W}, 4")
                a(f"s_cbranch_scc1 {lo}")
                a(f"s_waitcnt vmcnt({VM[st]})")
                a.lines.append(f"{lb}:")
                b = Asm(); b.lines.append(f"{lo}:"); b(f"s_waitcnt vmcnt({VM[st]+1})"); b(f"s_branch {lb}"); tail.append(b)
            else:
                a(f"s_waitcnt vmcnt({VM[st]})")
            a("s_barrier")
            if LSTAMP: stamp(a, 2 + st)
        if st == 6:
            out_of_line("g1_req1", W0, request)
        step(st, 2); step(st, 3)
        if st == 1:
            def post(b):
                f5.nonce_get(b)
                m4.post_stats_flag(b)
            out_of_line("g1_post", W0, post)
        if st == 2:
            out_of_line("g1_kvf", W0, f5.post_kv_flag)
        if st == 4:
            out_of_line("g1_poll1", W0, f5.g1_poll)
    stamp(a, 9 if LSTAMP else 2)
    def fin(b):
        lsp, le = b.label("fin_spin"), b.label("fin_e")
        b("s_mov_b32 s54, 0")
        b.lines.append(f"{lsp}:")
        b(f"""
        s_cmp_eq_u32 s63, 3
        s_cbranch_scc1 {le}
        s_cmp_ge_u32 s54, 0x40000
        s_cbranch_scc1 {le}
        s_add_u32 s54, s54, 1
        s_waitcnt vmcnt(0)
        """)
        request(b)
        b(f"s_branch {lsp}")
        b.lines.append(f"{le}:")
    out_of_line("g1_fin", W0, fin)
    R = VK + 6
    a(f"""
    v_mov_b32 v{VK}, 1.0
    v_mov_b32 v{VK+1}, 1.0
    v_mov_b32 v{VK+2}, {hex(LN2)}
    v_mov_b32 v{VK+3}, {hex(LN2)}
    v_mov_b32 v{VK+4}, {hex(NEG2LN2)}
    v_mov_b32 v{VK+5}, {hex(NEG2LN2)}
    s_lshl_b32 s38, s32, 2
    s_add_u32 s38, s38, s36
    s_mul_i32 s38, s38, 112
    s_lshl_b32 s39, s33, 3
    s_add_u32 s38, s38, s39
    s_lshl_b32 s39, s37, 2
    s_add_u32 s38, s38, s39
    s_lshl_b32 s38, s38, 10
    s_add_u32 s38, s38, {WS_ACT}
    v_and_b32 v5, 31, v1
    s_lshl_b32 s39, s36, 8
    v_lshl_add_u32 v3, v5, 3, s39
    v_add_u32 v3, {OPS}, v3
    v_lshrrev_b32 v4, 5, v1
    s_lshl_b32 s39, s37, 8
    v_lshl_add_u32 v4, v4, 4, s39
    v_add_u32 v4, {OPS + 1024}, v4
    v_lshlrev_b32 v182, 4, v1
    """)
    w2_prep(a)
    a(f"""
    s_waitcnt vmcnt(0) lgkmcnt(0)
    s_barrier
    ds_read_b64 v[{VST}:{VST+1}], v3
    """)
    for g in range(7):
        a(f"ds_read_b128 v[{VC+4*g}:{VC+4*g+3}], v4 offset:{32*g}")
        a(f"ds_read_b128 v[{VB+4*g}:{VB+4*g+3}], v4 offset:{512+32*g}")
    a("s_waitcnt lgkmcnt(14)")
    a(f"v_mul_f32 v{R}, {hex(LOG2E)}, v{VST+1}")
    a(f"ds_read_b128 v[{VC+28}:{VC+31}], v4 offset:{32*7}")
    a(f"ds_read_b128 v[{VB+28}:{VB+31}], v4 offset:{512+32*7}")
    if not LSTAMP: stamp(a, 3)
    def pr(r): return f"v[{r}:{r+1}]"
    T, OUT = 40, 152
    for fr in range(4):
        prs = [(ACC + 8*fr + 2*p, VC + 8*fr + 2*p, VB + 8*fr + 2*p) for p in range(4)]
        Z = [T + 2*p for p in range(4)]
        E = [T + 8 + 2*p for p in range(4)]
        if fr < 3: w2_part(a, fr)
        a(f"s_waitcnt lgkmcnt({12 - 4*fr})")
        for p, (ac, c, b) in enumerate(prs):
            a(f"v_pk_fma_f32 {pr(Z[p])}, {pr(VST)}, {pr(c)}, {pr(ac)} op_sel_hi:[0,1,1] neg_lo:[1,0,0] neg_hi:[1,0,0]")
        for p, (ac, c, b) in enumerate(prs):
            a(f"v_pk_fma_f32 {pr(Z[p])}, {pr(R)}, {pr(Z[p])}, {pr(b)} op_sel_hi:[0,1,1]")
        for p in range(4):
            a(f"v_exp_f32 v{E[p]}, v{Z[p]}")
            a(f"v_exp_f32 v{E[p]+1}, v{Z[p]+1}")
        for p in range(4):
            a(f"v_pk_add_f32 {pr(E[p])}, {pr(E[p])}, {pr(VK)}")
        for p in range(4):
            a(f"v_pk_fma_f32 {pr(E[p])}, {pr(E[p])}, {pr(E[p])}, {pr(VK)}")
        for p in range(4):
            a(f"v_rcp_f32 v{E[p]}, v{E[p]}")
            a(f"v_rcp_f32 v{E[p]+1}, v{E[p]+1}")
        for p in range(4):
            a(f"v_pk_fma_f32 {pr(E[p])}, {pr(E[p])}, {pr(VK+4)}, {pr(VK+2)}")
        for p in range(4):
            a(f"v_pk_mul_f32 {pr(Z[p])}, {pr(Z[p])}, {pr(E[p])}")
        o = OUT + 4*fr
        for p in range(4):
            a(f"v_cvt_pk_bf16_f32 v{o+p}, v{Z[p]}, v{Z[p]+1}")
        a(f"buffer_store_dwordx4 v[{o}:{o+3}], v182, s[{SRD_WS}:{SRD_WS+3}], s38 offen offset:{1024*fr} sc1")
    if not LSTAMP: stamp(a, 4)
    a(f"""
    s_lshl_b32 s{b3.S_ACTF}, s32, 11
    s_lshl_b32 s52, s33, 7
    s_add_u32 s{b3.S_ACTF}, s{b3.S_ACTF}, s52
    s_add_u32 s{b3.S_ACTF}, s{b3.S_ACTF}, {WS_ACTF}
    """)
    lend = a.label("g1_end")
    a(f"s_branch {lend}")
    for b in tail: a.lines += b.lines
    a.lines.append(f"{lend}:")

def prep_role(a, j):
    CRED, RING = f5.CRED, f5.RING
    a(f"""
    s_cmp_lt_u32 {j}, 28
    s_cselect_b32 s63, s{SRD_W1+2}, 0
    v_lshrrev_b32 v3, 3, v1
    v_and_b32 v4, 7, v1
    s_lshl_b32 s60, {W}, 6
    v_add_u32 v7, s60, v3
    v_mul_u32_u24 v7, {F*2}, v7
    v_bfe_u32 v2, v1, 4, 1
    v_lshlrev_b32 v2, 2, v2
    v_xor_b32 v2, v2, v4
    v_lshl_add_u32 v7, v2, 4, v7
    s_lshl_b32 s60, {j}, 7
    s_lshl_b32 s61, {W}, 13
    s_mov_b32 s36, s{SRD_W1}
    s_mov_b32 s37, s{SRD_W1+1}
    s_mov_b32 s38, s63
    s_mov_b32 s39, 0x00020000
    """)
    for it in range(8):
        a(f"s_add_u32 m0, s61, {RING + 1024*it}")
        a(f"s_add_u32 s32, s60, {8*F*2*it}")
        a(f"buffer_load_dwordx4 v7, s[36:39], s32 offen lds")
    row_loads(a)
    f5.emit_kv_loads(a)
    srd(a, 40, 14, F*2)
    a(f"""
    s_lshl_b32 s60, {j}, 6
    v_add_lshl_u32 v104, v1, s60, 1
    buffer_load_ushort v105, v104, s[40:43], 0 offen
    """)
    late_setup(a)
    m2.conv_words(a)
    f5.nonce_publish(a)
    a(f"""
    v_mov_b32 v60, 0x3f803f80
    v_bfe_u32 v2, v1, 2, 2
    v_bfe_u32 v3, v1, 4, 1
    v_lshrrev_b32 v5, 5, v1
    v_bfe_u32 v6, v1, 1, 1
    v_lshl_add_u32 v6, v3, 1, v6
    v_lshrrev_b32 v7, 1, v2
    v_lshl_add_u32 v2, v5, 2, v2
    v_lshlrev_b32 v2, 7, v2
    v_and_b32 v3, 1, v1
    v_lshl_add_u32 v2, v3, 3, v2
    s_lshl_b32 s53, {W}, 13
    v_add_u32 v2, s53, v2
    v_lshl_add_u32 v3, v7, 2, v6
    v_lshl_add_u32 v8, v3, 4, v2
    v_xor_b32 v3, 4, v3
    v_lshl_add_u32 v9, v3, 4, v2
    v_mov_b32 v61, v60
    v_mov_b32 v62, v60
    v_mov_b32 v63, v60
    s_waitcnt vmcnt(4)
    """)
    stamp(a, 0)
    FR = 10
    for s_ in range(4):
        for di in range(2):
            r = FR + 8*s_ + 4*di
            a(f"ds_read_b64_tr_b16 v[{r}:{r+1}], v{8+di} offset:{RING + 2048*s_}")
            a(f"ds_read_b64_tr_b16 v[{r+2}:{r+3}], v{8+di} offset:{RING + 2048*s_+1024}")
        if s_ == 1: a("s_waitcnt lgkmcnt(4)")
    C0 = 164
    a("s_waitcnt lgkmcnt(0)")
    for s_ in range(4):
        for di in range(2):
            r = FR + 8*s_ + 4*di
            src = "0" if s_ == 0 else f"v[{C0+16*di}:{C0+16*di+15}]"
            a(f"v_mfma_f32_32x32x16_bf16 v[{C0+16*di}:{C0+16*di+15}], v[{r}:{r+3}], v[60:63], {src}")
    a(f"""
    s_lshl_b32 s53, {W}, 8
    s_add_u32 s53, s53, {CRED}
    v_lshl_add_u32 v3, v5, 4, s53
    s_mov_b32 s60, 1
    s_mov_b32 s61, 1
    s_nop 7
    s_nop 3
    s_mov_b64 exec, s[60:61]
    """)
    for di in range(2):
        for a4 in range(4):
            r = C0 + 16*di + 4*a4
            a(f"ds_write_b128 v3, v[{r}:{r+3}] offset:{128*di + 32*a4}")
    a(f"""
    s_mov_b64 exec, -1
    s_waitcnt vmcnt(1) lgkmcnt(0)
    s_barrier                                      ; P1
    """)
    stamp(a, 1)
    lkv, lst, lcs, lp2 = [a.label(x) for x in ("pp_kv", "pp_st", "pp_cs", "pp_p2")]
    a(f"""
    s_cmp_lt_u32 {W}, 4
    s_cbranch_scc1 {lkv}
    s_cmp_eq_u32 {W}, 4
    s_cbranch_scc1 {lst}
    s_cmp_lg_u32 {W}, {PW}
    s_cbranch_scc1 {lp2}
    s_waitcnt vmcnt(0)
    """)
    f5.nonce_load(a)
    a(f"v_lshlrev_b32 v2, 2, v1")
    a(f"v_add_u32 v2, {CRED}, v2")
    for ww in range(8):
        a(f"ds_read_b32 v{8+ww}, v2 offset:{256*ww}")
    a(f"""
    v_lshlrev_b32 v16, 16, v105
    v_mul_f32 v16, {hex(LOG2E)}, v16
    v_lshlrev_b32 v5, 1, v104
    s_mov_b32 s36, s{SRD_WS}
    s_mov_b32 s37, s{SRD_WS+1}
    s_cmp_lt_u32 {j}, 28
    s_cselect_b32 s38, s{SRD_WS+2}, 0
    s_mov_b32 s39, 0x00020000
    s_mov_b32 s53, {WS_BL}
    buffer_store_dword v16, v5, s[36:39], s53 offen sc1
    s_waitcnt lgkmcnt(0)
    v_add_f32 v8, v8, v9
    v_add_f32 v10, v10, v11
    v_add_f32 v12, v12, v13
    v_add_f32 v14, v14, v15
    v_add_f32 v8, v8, v10
    v_add_f32 v12, v12, v14
    v_add_f32 v8, v8, v12
    s_mov_b32 s53, {WS_CS}
    buffer_store_dword v8, v5, s[36:39], s53 offen sc1
    s_waitcnt vmcnt(2)
    """)
    f5.nonce_get(a)
    a("s_waitcnt vmcnt(0)")
    m4.post_colsum_flag(a, j)
    a(f"s_branch {lp2}")
    a.lines.append(f"{lkv}:")
    kv8(a)
    a(f"s_branch {lp2}")
    a.lines.append(f"{lst}:")
    stats8(a)
    a.lines.append(f"{lp2}:")
    a(f"""
    v_lshrrev_b32 v122, 3, v1
    s_lshl_b32 s38, {W}, 3
    v_add_u32 v122, s38, v122
    v_lshrrev_b32 v152, 1, v122
    v_and_b32 v152, 7, v152
    v_and_b32 v155, 7, v1
    v_xor_b32 v152, v152, v155
    v_lshlrev_b32 v152, 4, v152
    v_lshl_add_u32 v152, v122, 7, v152
    v_add_u32 v152, {TR}, v152
    s_and_b32 s38, s2, 7
    s_lshl_b32 s38, s38, 6
    v_add_u32 v122, s38, v122
    v_lshlrev_b32 v122, 12, v122
    v_lshl_add_u32 v122, v155, 4, v122
    s_waitcnt lgkmcnt(0)
    s_barrier
    ds_read_b128 v[64:67], v152
    v_mov_b32 v2, {NW}
    ds_read_b32 v2, v2
    s_lshr_b32 s52, s2, 3
    s_lshl_b32 s52, s52, 7
    s_sub_u32 s52, {WS_KVT + 2*1984}, s52
    s_waitcnt lgkmcnt(0)
    buffer_store_dwordx4 v[64:67], v122, s[{SRD_WS}:{SRD_WS+3}], s52 offen sc1
    v_readfirstlane_b32 s{S_N}, v2
    s_waitcnt vmcnt(0)
    s_barrier
    """)
    stamp(a, 2)
    l = a.label("pp_noflags")
    a(f"""
    s_cmp_lg_u32 {W}, {PW}
    s_cbranch_scc1 {l}
    """)
    m4.post_stats_flag(a)
    f5.post_kv_flag(a)
    a.lines.append(f"{l}:")
    stamp(a, 3)
    m2.k_images(a)
    l = a.label("pp_nopad")
    a(f"""
    s_cmp_ge_u32 {W}, 4
    s_cbranch_scc1 {l}
    """)
    m2.conv_pads(a)
    a.lines.append(f"{l}:")
    f5.emit_warm_touch(a)
    l = a.label("pp_nou")
    a(f"""
    s_cmp_lg_u32 {W}, 0
    s_cbranch_scc1 {l}
    """)
    m2.kv_flag_offsets(a, 2, 3)
    b3.spin_flags(a, "pp_kvf", 2, 3, 32)
    m2.u_images(a)
    a.lines.append(f"{l}:")
    a("""
    s_waitcnt vmcnt(0) lgkmcnt(0)
    s_barrier
    """)
    a(f"s_mov_b32 s{b3.S_ACTF}, -1")
    w2_prep(a)
    for st in range(3): w2_part(a, st)

def kernel(name=NAME):
    f5.MERGED = True
    b3.NW = NW
    b3.AF = AF
    b3.W2_PRE = True
    b3.YC = YC
    b3.XC = XC
    a = Asm()
    kernel_begin(a, name)
    a("""
    s_cmp_ge_u32 s2, 256
    s_cbranch_scc1 L_all_end
    """)
    stamp_begin(a)
    setup(a)
    lg, lb = a.label("fr_gemm"), a.label("fr_back")
    a(f"""
    s_cmp_ge_u32 s2, 32
    s_cbranch_scc1 {lg}
    s_mov_b32 s3, s2
    v_mov_b32 v2, {AF}
    v_mov_b32 v3, 0
    ds_write_b32 v2, v3
    ds_write_b32 v2, v3 offset:4
    ds_write_b32 v2, v3 offset:8
    """)
    prep_role(a, "s3")
    a(f"s_branch {lb}")
    a.lines.append(f"{lg}:")
    a("s_sub_u32 s3, s2, 32")
    gemm_role(a, "s3")
    a.lines.append(f"{lb}:")
    b3.emit_back(a)
    stamp_end(a, 0)
    a.lines.append("L_all_end:")
    a("s_endpgm")
    a.lines.append("L_code_end:")
    a.lines.insert(0, ".set CODE_BYTES, L_code_end - L_code_base")
    a.lines.insert(1, ".set CODE_NL, (CODE_BYTES + 32*128 - 1) / (32*128)")
    return a.text(), kernel_desc(name, 200, nsgpr(64)), f5.FRONT_LDS
```

```python
import sys
from common import *
import prep, gemm1, conv, gemm2
HDR = open("recurrent_scan__ssm_conv_h3__dense_activation_mish__prompt.s.ref").read().split("; Override launch geometry")[0]
def build_v1(mapping=0):
    ks = [("prep_kernel", prep.prep_kernel(), (32, 512, 67584)),
          ("gemm1_kernel", gemm1.gemm1_kernel(mapping), (224, 512, 131072)),
          ("conv_kernel", conv.conv_kernel(), (256, 256, 2*conv.CHSZ + 32768)),
          ("gemm2_kernel", gemm2.gemm2_kernel(), (256, 256, 131072))]
    s = HDR
    for n, _, (g, b, l) in ks:
        s += f"; @launch kernel={n} grid=({g},1,1) block=({b},1,1) lds={l}\n"
    s += '.amdgcn_target "amdgcn-amd-amdhsa--gfx950"\n.text\n'
    for n, (t, d), _ in ks: s += t
    s += '.section .rodata,"a"\n'
    for n, (t, d), _ in ks: s += d
    return s
def assemble_list(ks):
    s = HDR
    for n, _, (g, b, l) in ks:
        s += f"; @launch kernel={n} grid=({g},1,1) block=({b},1,1) lds={l}\n"
    s += '.amdgcn_target "amdgcn-amd-amdhsa--gfx950"\n.text\n'
    for n, (t, d), _ in ks: s += t
    s += '.section .rodata,"a"\n'
    for n, (t, d), _ in ks: s += d
    return s
def build_v2(mapping=0):
    import back
    return assemble_list([("prep_kernel", prep.prep_kernel(), (32, 512, 67584)),
          ("gemm1_kernel", gemm1.gemm1_kernel(mapping), (224, 512, 131072)),
          ("back_kernel", back.back_kernel(), (256, 512, 131072 + 2*conv.CHSZ))])
def build_v3(mapping=0):
    import back, front
    return assemble_list([("front_kernel", front.front_kernel(mapping), (256, 512, 131072 + 4096)),
          ("back_kernel", back.back_kernel(), (256, 512, 131072 + 2*conv.CHSZ))])
def build_v4(mapping=0):
    import back, front2
    return assemble_list([("front_kernel", front2.front2_kernel(mapping), (256, 512, front2.FRONT_LDS)),
          ("back_kernel", back.back_kernel(), (256, 512, 131072 + 2*conv.CHSZ))])
def build_v5(mapping=0, touch=True):
    import back, front3
    return assemble_list([("front_kernel", front3.front3_kernel(mapping, touch), (256, 512, front3.FRONT_LDS)),
          ("back_kernel", back.back_kernel(), (256, 512, 131072 + 2*conv.CHSZ))])
def build_v5nt(): return build_v5(0, False)
def _diag(**kw):
    import front3
    for k, v in kw.items(): setattr(front3, k, v)
    return build_v5(0, False)
def build_v5nodma(): return _diag(DIAG_NODMA=True)
def build_v5nomfma(): return _diag(DIAG_NOMFMA=True)
def build_v5nomfmads(): return _diag(DIAG_NOMFMA=True, DIAG_NODS=True)
def build_v5m1(): return build_v5(1, False)
def build_v5norot():
    import front3
    front3.ROTMASK = 0
    return build_v5(0, False)
def build_v6(mapping=0, touch=True, **kw):
    import back, front4
    for k, v in kw.items(): setattr(front4, k, v)
    return assemble_list([("front_kernel", front4.front3_kernel(mapping, touch), (256, 512, front4.FRONT_LDS)),
          ("back_kernel", back.back_kernel(), (256, 512, 131072 + 2*conv.CHSZ))])
def build_v6nt(): return build_v6(0, False)
def build_v6m1(): return build_v6(1, True)
def build_v6nodma(): return build_v6(0, True, DIAG_NODMA=True)
def build_v6norot(): return build_v6(0, True, ROTMASK=0)
def build_v7(mapping=0, touch=True, **kw):
    import back, front5
    for k, v in kw.items(): setattr(front5, k, v)
    return assemble_list([("front_kernel", front5.front3_kernel(mapping, touch), (256, 512, front5.FRONT_LDS)),
          ("back_kernel", back.back_kernel(), (256, 512, 131072 + 2*conv.CHSZ))])
def build_v7m1(): return build_v7(1, True)
def build_v7m1nt2():
    import back
    back.TOUCH2 = False
    return build_v7(1, True)
def build_v7nodma(): return build_v7(0, True, DIAG_NODMA=True)
def build_v7d2(): return build_v7(0, True, DIST=2)
def build_v7norot(): return build_v7(0, True, ROTMASK=0)
def build_s1(mapping=1):
    import merged
    t, d, lds = merged.merged_kernel(mapping)
    s = HDR + f"; @launch grid=(256,1,1) block=(512,1,1) lds={lds}\n"
    s += '.amdgcn_target "amdgcn-amd-amdhsa--gfx950"\n.text\n' + t + '.section .rodata,"a"\n' + d
    return s
def build_s1m0(): return build_s1(0)
def build_s2(mapping=1):
    import merged2
    merged2.MAPPING = mapping
    t, d, lds = merged2.kernel()
    s = HDR + f"; @launch grid=(256,1,1) block=(512,1,1) lds={lds}\n"
    s += '.amdgcn_target "amdgcn-amd-amdhsa--gfx950"\n.text\n' + t + '.section .rodata,"a"\n' + d
    return s
def build_s2m0(): return build_s2(0)
def build_s2p():
    import merged2, back3
    merged2.PSTAMP = True; back3.NOSTAMP = True
    return build_s2(1)
def build_s3(mapping=1):
    import merged3
    merged3.MAPPING = mapping
    t, d, lds = merged3.kernel()
    s = HDR + f"; @launch grid=(256,1,1) block=(512,1,1) lds={lds}\n"
    s += '.amdgcn_target "amdgcn-amd-amdhsa--gfx950"\n.text\n' + t + '.section .rodata,"a"\n' + d
    return s
def build_s3m0(): return build_s3(0)
def build_s4(mapping=1, rot=7):
    import merged4, front5
    merged4.MAPPING = mapping
    front5.ROTMASK = rot
    t, d, lds = merged4.kernel()
    s = HDR + f"; @launch grid=(256,1,1) block=(512,1,1) lds={lds}\n"
    s += '.amdgcn_target "amdgcn-amd-amdhsa--gfx950"\n.text\n' + t + '.section .rodata,"a"\n' + d
    return s
def build_s4m0(): return build_s4(0)
def build_s4l():
    import merged4, back3
    merged4.LSTAMP = True; back3.NOSTAMP = True
    return build_s4(1, 0)
def build_s4w4():
    import common
    common.STAMP_TID = 256
    return build_s4(1, 0)
def build_s4norot(): return build_s4(1, 0)
def build_s5(mapping=1, rot=0):
    import merged5, front5
    merged5.MAPPING = mapping
    front5.ROTMASK = rot
    t, d, lds = merged5.kernel()
    s = HDR + f"; @launch grid=(256,1,1) block=(512,1,1) lds={lds}\n"
    s += '.amdgcn_target "amdgcn-amd-amdhsa--gfx950"\n.text\n' + t + '.section .rodata,"a"\n' + d
    return s
def build_s5rot(): return build_s5(1, 7)
def build_s5m0(): return build_s5(0, 0)
def _s5v(**kw):
    import back3
    for k, v in kw.items(): setattr(back3, k, v)
    return build_s5(1, 0)
def build_s5a(): return _s5v(ACT_PLAIN=True)
def build_s5b(): return _s5v(ROT2=True, TOUCH2=False)
def build_s5c(): return _s5v(ACT_PLAIN=True, ROT2=True, TOUCH2=False)
def build_s5d(): return _s5v(ACT_PLAIN=True, ROT2=True, TOUCH2=True)
def build_s5e(): return _s5v(TOUCH2=False)
def build_s5l():
    import merged5, back3
    merged5.LSTAMP = True; back3.NOSTAMP = True
    return build_s5(1, 0)
def build_s5w4():
    import common
    common.STAMP_TID = 256
    return build_s5(1, 0)
def build_s6(mapping=1, rot=0, **kw):
    import merged6, front5, back3
    merged6.MAPPING = mapping
    front5.ROTMASK = rot
    back3.ROT2 = True; back3.TOUCH2 = False; back3.OUT_PRELOADED = True
    for k, v in kw.items(): setattr(merged6, k, v)
    t, d, lds = merged6.kernel()
    s = HDR + f"; @launch grid=(256,1,1) block=(512,1,1) lds={lds}\n"
    s += '.amdgcn_target "amdgcn-amd-amdhsa--gfx950"\n.text\n' + t + '.section .rodata,"a"\n' + d
    return s
def build_s7(**kw):
    import back3
    back3.YCOUNT = True; back3.G2_EARLY = True
    return build_s6(**kw)
def build_s8(**kw):
    import back3
    back3.STAGE_GATE = True
    return build_s7(**kw)
def build_s8w4():
    import common
    common.STAMP_TID = 256
    return build_s8()
def build_s8nb(): return build_s8(ISSUE_BARRIER=False)
def build_s7w4():
    import common
    common.STAMP_TID = 256
    return build_s7()
def build_s7noA(): return build_s7(EARLY_A=False)
def build_s6ncp(): return build_s6(CODE_PREFETCH=False)
def build_s6rot(): return build_s6(1, 7)
def build_s6m0(): return build_s6(0, 0)
if __name__ == "__main__":
    out = sys.argv[1]
    import common
    common.INSTR = len(sys.argv) > 2 and sys.argv[2] in ("instr", "dbg")
    common.DBGMODE = len(sys.argv) > 2 and sys.argv[2] == "dbg"
    ver = sys.argv[3] if len(sys.argv) > 3 else "v1"
    open(out, "w").write(globals()["build_" + ver]())
```
